```python
import torch

def _softmax(x, axis=-1):
    return torch.softmax(x, dim=axis)
def _gelu(x):
    return torch.nn.functional.gelu(x, approximate="tanh")
def _silu(x):
    return torch.nn.functional.silu(x)
def _sigmoid(x):
    return torch.sigmoid(x)
def _layernorm(x, axis=-1, eps=1e-5):
    m = x.mean(dim=axis, keepdim=True)
    v = x.var(dim=axis, keepdim=True, unbiased=False)
    return (x - m) / torch.sqrt(v + eps)
def _scatter_add(tgt, idx, src, axis=0):
    return tgt.clone().index_add_(axis, idx, src)
def _segment_sum(src, seg, n):
    out = torch.zeros((n,) + src.shape[1:], dtype=src.dtype)
    return out.index_add_(0, seg, src)
def _pad(x, pw):
    flat = tuple(v for pair in reversed(pw) for v in pair)
    return torch.nn.functional.pad(x, flat)

kernel_name = 'interleave_layers__sliding_local_dilated__dense_activation_squared_relu__prompt'

def setup_inputs():

    _w = (lambda a: (lambda t: t.to(torch.bfloat16) if t.is_floating_point() else t)(torch.as_tensor(a)))
    def _A_setup():
        B, S, D = 1, 2048, 640
        return {
            "x": _w((lambda *s: torch.randn(*s, dtype=torch.bfloat16) * 0.05)(B, S, D)),
            "wqkv": _w((lambda *s: torch.randn(*s, dtype=torch.bfloat16) * 0.05)(D, 3 * D)),
            "wo": _w((lambda *s: torch.randn(*s, dtype=torch.bfloat16) * 0.05)(D, D)),
        }
    _A_in = _A_setup()

    def _B_setup():
        B, S, D, F = 1, 2048, 640, 1536
        return {
            "x": _w((lambda *s: torch.randn(*s, dtype=torch.bfloat16) * 0.05)(B, S, D)),
            "w1": _w((lambda *s: torch.randn(*s, dtype=torch.bfloat16) * 0.05)(D, F)),
            "b1": _w((lambda *s: torch.randn(*s, dtype=torch.bfloat16) * 0.2)(F)),
            "w2": _w((lambda *s: torch.randn(*s, dtype=torch.bfloat16) * 0.05)(F, D)),
            "b2": _w((lambda *s: torch.randn(*s, dtype=torch.bfloat16) * 0.8)(D)),
        }
    _B_in = _B_setup()

    return {
        "A_x": _A_in["x"],
        "A_wqkv": _A_in["wqkv"],
        "A_wo": _A_in["wo"],
        "B_x": _B_in["x"],
        "B_w1": _B_in["w1"],
        "B_b1": _B_in["b1"],
        "B_w2": _B_in["w2"],
        "B_b2": _B_in["b2"],
    }

def reference(A_x, A_wqkv, A_wo, B_x, B_w1, B_b1, B_w2, B_b2):
    def _A_ref(x, wqkv, wo):
        B, S, D = x.shape
        H = 32; Dh = D // H
        W, dil = 8, 2
        qkv = (lambda x, *d: x.permute(*d))((x @ wqkv).reshape(B, S, 3, H, Dh), 2, 0, 3, 1, 4)
        q, k, v = qkv[0], qkv[1], qkv[2]
        scale = Dh ** -0.5
        pos = torch.arange(S)
        off = torch.arange(W) * dil
        idx = pos[:, None] - off[None, :]
        mask = idx >= 0
        idx_c = torch.where(mask, idx, 0).reshape(-1)
        kg = k[:, :, idx_c, :].reshape(B, H, S, W, Dh)
        vg = v[:, :, idx_c, :].reshape(B, H, S, W, Dh)
        logits = torch.einsum("bhsd,bhswd->bhsw", q, kg) * scale
        logits = torch.where(mask[None, None, :, :], logits, -1e9)
        attn = _softmax(logits, axis=-1)
        o = torch.einsum("bhsw,bhswd->bhsd", attn, vg)
        return (lambda x, *d: x.permute(*d))(o, 0, 2, 1, 3).reshape(B, S, D) @ wo

    def _B_ref(x, w1, b1, w2, b2):
        h = torch.einsum("bsd,df->bsf", x, w1) + b1
        zero = torch.zeros_like(h)
        r = torch.where(h > zero, h, zero)
        h = r * r
        out = torch.einsum("bsf,fd->bsd", h, w2) + b2
        return out

    x = A_x
    x = x + _A_ref(_layernorm(x, axis=-1), A_wqkv, A_wo)
    x = x + _B_ref(_layernorm(x, axis=-1), B_w1, B_b1, B_w2, B_b2)
    x = x + _A_ref(_layernorm(x, axis=-1), A_wqkv, A_wo)
    x = x + _B_ref(_layernorm(x, axis=-1), B_w1, B_b1, B_w2, B_b2)
    return x
```

```python
import re

_REG_RE = re.compile(r"\b([vas])(?:(\d+)|\[(\d+):(\d+)\])")


def regs_of(tok):
    out = []
    for m in _REG_RE.finditer(tok):
        k = m.group(1)
        if m.group(2) is not None:
            out.append((k, int(m.group(2))))
        else:
            out += [(k, i) for i in range(int(m.group(3)), int(m.group(4)) + 1)]
    if re.search(r"\bvcc\b", tok):
        out += [("s", "vcc")]
    if re.search(r"\bm0\b", tok):
        out += [("s", "m0")]
    if re.search(r"\bexec\b", tok):
        out += [("s", "exec")]
    return out


TRANS = ("v_exp_f32", "v_log_f32", "v_rcp_f32", "v_rsq_f32", "v_sqrt_f32", "v_sin_f32", "v_cos_f32")


def split_ops(s):
    ops, depth, cur = [], 0, ""
    for ch in s:
        if ch in "[(":
            depth += 1
        if ch in "])":
            depth -= 1
        if ch == "," and depth == 0:
            ops.append(cur.strip())
            cur = ""
        else:
            cur += ch
    if cur.strip():
        ops.append(cur.strip())
    return ops


class Ins:
    __slots__ = ("text", "op", "kind", "defs", "uses", "srcc", "ab", "wide_store", "states", "dpp", "lds_dma")

    def __init__(self, text):
        self.text = text
        t = text.split(";")[0].strip()
        parts = t.split(None, 1)
        op = parts[0]
        rest = parts[1] if len(parts) > 1 else ""
        ops = split_ops(rest)
        self.op = op
        self.defs, self.uses = [], []
        self.srcc, self.ab = [], []
        self.wide_store = []
        self.states = 1
        self.dpp = False
        self.lds_dma = False
        if op == "s_nop":
            self.kind = "salu"
            self.states = int(rest, 0) + 1
        elif op.startswith("v_mfma"):
            self.kind = "mfma"
            self.defs = regs_of(ops[0])
            self.ab = regs_of(ops[1]) + regs_of(ops[2])
            self.srcc = regs_of(ops[3])
            self.uses = self.ab + self.srcc
        elif op.startswith("v_"):
            self.kind = "valu"
            self.dpp = "_dpp" in op or "quad_perm" in rest or "row_" in rest
            clean = [o.split(" ")[0] if not o.startswith("abs(") else o for o in ops]
            if op.startswith("v_cmp"):
                self.defs = regs_of(clean[0])
                self.uses = sum((regs_of(o) for o in clean[1:]), [])
            elif op.startswith("v_permlane") and "swap" in op:
                self.defs = regs_of(clean[0]) + regs_of(clean[1])
                self.uses = list(self.defs)
            elif op.startswith(("v_add_co", "v_sub_co", "v_addc_co", "v_subb_co")):
                self.defs = regs_of(clean[0]) + regs_of(clean[1])
                self.uses = sum((regs_of(o) for o in clean[2:]), [])
            else:
                self.defs = regs_of(clean[0])
                self.uses = sum((regs_of(o) for o in clean[1:]), [])
                if op.startswith(("v_fmac", "v_dot2c", "v_writelane")) or self.dpp:
                    self.uses += self.defs
        elif op.startswith("buffer_") or op.startswith("global_"):
            self.kind = "vmem"
            if op in ("buffer_wbl2", "buffer_inv"):
                pass
            elif " lds" in (" " + rest):
                self.lds_dma = True
                self.uses = sum((regs_of(o.split(" ")[0]) for o in ops), []) + [("s", "m0")]
            elif "load" in op:
                self.defs = regs_of(ops[0])
                self.uses = sum((regs_of(o.split(" ")[0]) for o in ops[1:]), [])
            else:
                self.uses = sum((regs_of(o.split(" ")[0]) for o in ops), [])
                if op.endswith("x4") or op.endswith("x3"):
                    self.wide_store = regs_of(ops[0] if op.startswith("buffer_") else ops[1])
        elif op.startswith("ds_"):
            self.kind = "ds"
            if op.startswith("ds_read") or op.startswith("ds_bpermute") or op.startswith("ds_swizzle"):
                self.defs = regs_of(ops[0])
                self.uses = sum((regs_of(o.split(" ")[0]) for o in ops[1:]), [])
            else:
                self.uses = sum((regs_of(o.split(" ")[0]) for o in ops), [])
        elif op.startswith("s_"):
            self.kind = "salu"
            if op.startswith(("s_cmp", "s_cbranch", "s_branch", "s_waitcnt", "s_barrier", "s_endpgm", "s_sleep",
                              "s_setprio", "s_bitcmp")):
                self.uses = sum((regs_of(o) for o in ops), [])
            else:
                self.defs = regs_of(ops[0]) if ops else []
                self.uses = sum((regs_of(o) for o in ops[1:]), [])
                if "saveexec" in op:
                    self.defs += [("s", "exec")]
        else:
            raise ValueError("unknown instruction " + text)


def _is_vreg(r):
    return r[0] in ("v", "a")


def need_states(p, c):
    n = 0
    pd, cu, cd = set(p.defs), set(c.uses), set(c.defs)
    if p.kind == "valu":
        vd = {r for r in pd if _is_vreg(r)}
        sd = pd - vd
        isdot = p.op.startswith("v_dot")
        if c.kind == "mfma" and vd & cu:
            n = max(n, 3 if isdot else 2)
        if c.kind == "valu":
            if vd & cu:
                if c.op.startswith("v_permlane"):
                    n = max(n, 2)
                if c.dpp:
                    n = max(n, 2)
                if c.op.startswith(("v_readlane", "v_readfirstlane")):
                    n = max(n, 1)
                if p.op.startswith(TRANS) and not c.op.startswith(TRANS):
                    n = max(n, 1)
                if p.op.startswith(TRANS) and c.op.startswith(TRANS):
                    n = max(n, 1)
            if sd & cu:
                n = max(n, 4 if c.op.startswith(("v_readlane", "v_writelane")) else 2)
        if isdot and (vd & (cu | cd)):
            if c.op == p.op:
                t = split_ops(c.text.split(None, 1)[1])
                ab = set(regs_of(t[1]) + regs_of(t[2]))
                if vd & ab:
                    n = max(n, 3)
            else:
                n = max(n, 3)
        if c.kind == "vmem" and sd & cu:
            n = max(n, 5)
        if c.kind == "salu" and sd & cu:
            n = max(n, 1)
    elif p.kind == "mfma":
        if c.kind == "mfma":
            if pd & set(c.ab):
                n = max(n, 8)
            if pd & set(c.srcc):
                n = max(n, 0 if c.srcc == p.defs else 6)
            elif pd & cd:
                n = max(n, 6)
        else:
            if pd & (cu | cd):
                n = max(n, 8)
            if c.kind == "valu" and set(p.srcc) & cd:
                n = max(n, 3)
    elif p.kind == "salu":
        if ("s", "m0") in pd and c.lds_dma:
            n = max(n, 1)
    elif p.kind == "vmem":
        if p.wide_store and set(p.wide_store) & cd:
            n = max(n, 2)
    return n


class Asm:
    def __init__(self):
        self.lines = []
        self.hist = []
        self.vmq = []
        self.dsq = []
        self.nins = 0
        self.nnops = 0
        self._lab = 0

    def raw(self, s):
        self.lines.append(s)

    def comment(self, s):
        self.lines.append("    ; " + s)

    def newlabel(self, base="L"):
        self._lab += 1
        return "%s_%d" % (base, self._lab)

    def label(self, name):
        self.lines.append(name + ":")

    def fence_hazards(self, n=8):
        self.e("s_nop %d" % (n - 1))

    def e(self, text):
        ins = Ins(text)
        dist = 0
        need = 0
        for p in reversed(self.hist):
            r = need_states(p, ins)
            if r > dist:
                need = max(need, r - dist)
            dist += p.states
            if dist >= 12:
                break
        if need > 0:
            nop = Ins("s_nop %d" % (need - 1))
            self.lines.append("    " + nop.text)
            self.hist.append(nop)
            self.nnops += 1
        self.lines.append("    " + text)
        self.hist.append(ins)
        if len(self.hist) > 40:
            self.hist = self.hist[-24:]
        self.nins += 1
        return ins

    def vm(self, tag, text):
        self.e(text)
        self.vmq.append(tag)

    def ds(self, tag, text):
        self.e(text)
        self.dsq.append(tag)

    @staticmethod
    def _pos(q, tags):
        if not isinstance(tags, (list, tuple, set)):
            tags = [tags]
        last = -1
        for i, t in enumerate(q):
            if t in tags:
                last = i
        return last

    def wait(self, vm=None, ds=None):
        parts = []
        if vm is not None:
            i = self._pos(self.vmq, vm)
            if i >= 0:
                n = len(self.vmq) - 1 - i
                parts.append("vmcnt(%d)" % min(n, 63))
                self.vmq = self.vmq[i + 1:]
        if ds is not None:
            i = self._pos(self.dsq, ds)
            if i >= 0:
                n = len(self.dsq) - 1 - i
                parts.append("lgkmcnt(%d)" % min(n, 15))
                self.dsq = self.dsq[i + 1:]
        if parts:
            self.e("s_waitcnt " + " ".join(parts))

    def wait_all(self, vm=False, ds=False, force=False):
        parts = []
        if vm and (self.vmq or force):
            parts.append("vmcnt(0)")
            self.vmq = []
        if ds and (self.dsq or force):
            parts.append("lgkmcnt(0)")
            self.dsq = []
        if parts:
            self.e("s_waitcnt " + " ".join(parts))

    def text(self):
        return "\n".join(self.lines) + "\n"
```

```python
KB = 1024
S, D, F = 2048, 640, 1536

_off = 0


def _alloc(n, align=4096):
    global _off
    _off = (_off + align - 1) // align * align
    r = _off
    _off += n
    return r


WQ = _alloc(16 * 4 * 20 * 2 * KB)
WO = _alloc(8 * 4 * 5 * 5 * KB)
W1 = _alloc(16 * 4 * 10 * 3 * KB)
W2 = _alloc(8 * 4 * 12 * 5 * KB)
X0 = _alloc(128 * 20 * KB)
X1 = _alloc(128 * 20 * KB)
X2 = _alloc(128 * 20 * KB)
OB = _alloc(128 * 20 * KB)
HB = _alloc(128 * 48 * KB)
ST0 = _alloc(128 * KB)
ST1 = _alloc(128 * KB)
ST2 = _alloc(128 * KB)
HX = _alloc(32 * 20 * KB)
HS = _alloc(32 * KB)
CG = _alloc(4 * 16 * 2 * KB)
CB2 = _alloc(8 * 512)
FL = _alloc(16 * KB)
FLAG = FL
XT = FL + 4096
HFL = FL + 8192
DBG = _alloc(1024 * 256)
WS_USED = _alloc(0)


def wq_col(n):
    region, nn = divmod(n, 640)
    m, f = divmod(nn, 40)
    e = {0: 40 + f, 1: f, 2: 80 + f}[region]
    t8, slot = e >> 4, e & 15
    w, t = t8 >> 1, t8 & 1
    return WQ + (m * 4 + w) * 40 * KB + t * KB + slot * 16, CG + m * 2048 + e * 4


W1_TILE = {0: (0, 0), 1: (0, 1), 2: (0, 2), 3: (1, 2), 4: (1, 0), 5: (1, 1)}


def w1_col(n):
    m, f = divmod(n, 96)
    p, u = f >> 5, f & 31
    g, h, r = u >> 3, (u >> 2) & 1, u & 3
    ch, ct = W1_TILE[2 * p + h]
    slot = 4 * g + r
    idx = (ch * 3 + ct) * 16 + slot
    return W1 + (m * 4 + ch * 2) * 30 * KB + ct * KB + slot * 16, CG + m * 2048 + (120 + idx) * 4


def x_col(n):
    kx, u = n >> 5, n & 31
    g, h, r = u >> 3, (u >> 2) & 1, u & 3
    uu, v = divmod(kx, 5)
    if v < 2:
        cg, ct = 2 * uu, 2 * v + h
    elif v == 2:
        cg, ct = 2 * uu + h, 4
    else:
        cg, ct = 2 * uu + 1, 2 * (v - 3) + h
    return cg, ct, 4 * g + r


def wo_col(n):
    cg, ct, slot = x_col(n)
    return WO + cg * 100 * KB + ct * KB + slot * 16, 0


def w2_col(n):
    cg, ct, slot = x_col(n)
    return W2 + cg * 240 * KB + ct * KB + slot * 16, CB2 + cg * 512 + (ct * 16 + slot) * 4


def o_feature(q, j):
    m, i = divmod(q, 5)
    return 40 * m + 4 * i + (j & 3) + 20 * (j >> 2)
```

```python
import math
import struct
from asmlib import Asm
from layout import *

L_A = 0
L_HALO = 81920
L_RED = 81920
L_EX = 102400
L_E3 = 102400
L_CT = 143360
LDS_BYTES = 163840
EXS = 248
EXT = 16 * EXS

vL0, vL1, vL2, vAh, vFl = 1, 2, 3, 4, 5
vP3a, vP3b, vXw0, vXw1, vXp, vXc, vXv = 6, 7, 8, 9, 10, 11, 12
vM0, vM1, vM2, vM3 = 13, 14, 15, 16
vE3w, vE3r, vRw1, vRw2, vRw3, vRr = 17, 18, 19, 20, 21, 22
vC1a, vC1b, vC3, vC4, vHalf, vHh, vSt, vOut, vOutH, vStamp = 23, 24, 25, 26, 27, 28, 29, 30, 31, 32
vT0, vT1, vT2 = 33, 34, 35
vRes = 36
vPoll, vXt = 46, 47
W0 = 48
sWS, sOUT = "s[4:7]", "s[8:11]"
sW, sC, sM, sT, sCG, sMode, sSpin = 12, 13, 14, 15, 16, 17, 18
sOnes = 19
sMask16, sMaskA, sMaskB = 20, 22, 24
sFlBase, sFlOwn = 26, 27
sOdd, sPA, sPB, sG0, sPAx, sPBx = 28, 30, 32, 34, 36, 38
sWOb, sW1b, sW2b, sBcur = 40, 41, 42, 43
sRt = 44
sA0, sA1, sA2, sA3 = 48, 49, 50, 51
sTmp2 = 52
sScale, sInv640, sEps, sNeg = 54, 55, 56, 57
sLdsW = 58
sXcc = 59
sStamp = 60
sRtA, sRtB, sRtT = 62, 63, 64
sXk0, sXk1, sXkh = 65, 66, 67
sAll = 68
sMask8 = 70
sMaskX = 72


def fbits(x):
    return struct.unpack("<I", struct.pack("<f", x))[0]


def q(r):
    if isinstance(r, int):
        r = ("v", r)
    return "%s[%d:%d]" % (r[0], r[1], r[1] + 3)


def p2(n):
    return "v[%d:%d]" % (n, n + 1)


def sp(n):
    return "s[%d:%d]" % (n, n + 1)


class Gen:
    def __init__(self, stamps=False, opts=None):
        self.a = Asm()
        self.stamps = stamps
        self.nstamp = 0
        self.stamp_names = []
        self.opts = opts or {}
        self.free = [("v", n) for n in range(176, 256, 4)] + [("a", n) for n in range(160, 256, 4)]
        self.bq = []
        self.breg = {}
        self.bgroup = None

    def e(self, t):
        return self.a.e(t)

    def stamp(self, name):
        if not self.stamps:
            return
        a = self.a
        a.wait_all(ds=True)
        self.e("s_memtime %s" % sp(sStamp))
        self.e("s_waitcnt lgkmcnt(0)")
        self.e("v_writelane_b32 v%d, s%d, %d" % (vStamp, sStamp, self.nstamp))
        self.stamp_names.append(name)
        self.nstamp += 1

    def mfma(self, d, wa, xb, first=False):
        self.e("v_mfma_f32_16x16x32_bf16 %s, %s, %s, %s" % (q(d), q(wa), q(xb), "0" if first else q(d)))

    def voff(self, i):
        return (vL0, vL1, vL2)[i >> 2], (i & 3) * 1024

    def queue_b(self, name, base, n):
        self.bq += [((name, i), base, i) for i in range(n)]

    def bpref(self, n=1):
        done = 0
        while done < n and self.bq and self.free:
            key, base, i = self.bq.pop(0)
            grp = (base, i // 12)
            if self.bgroup != grp:
                self.e("s_add_u32 s%d, s%d, %d" % (sBcur, base, (i // 12) * 12288))
                self.bgroup = grp
            r = self.free.pop(0)
            self.breg[key] = r
            vo, imm = self.voff(i % 12)
            self.a.vm(key, "buffer_load_dwordx4 %s, v%d, %s, s%d offen offset:%d" % (q(r), vo, sWS, sBcur, imm))
            done += 1
        return done

    def bget(self, key):
        while key not in self.breg:
            assert self.bpref(1), "no free register for %s" % (key,)
        self.a.wait(vm=[key])
        return self.breg[key]

    def bfree(self, key):
        self.free.append(self.breg.pop(key))

    def poll(self, target, mask, soff=sFlBase, acquire=True):
        a = self.a
        lp, dn = a.newlabel("poll"), a.newlabel("polld")
        a.label(lp)
        self.e("buffer_load_dword v%d, v%d, %s, s%d offen sc1" % (vPoll, vFl, sWS, soff))
        self.e("s_waitcnt vmcnt(0)")
        a.vmq = []
        self.e("v_cmp_le_u32 vcc, %s, v%d" % (target, vPoll))
        self.e("s_andn2_b64 %s, %s, vcc" % (sp(sTmp2), sp(mask)))
        self.e("s_cbranch_scc0 %s" % dn)
        self.e("s_sub_u32 s%d, s%d, 1" % (sSpin, sSpin))
        self.e("s_cbranch_scc0 %s" % lp)
        self.e("s_endpgm")
        a.label(dn)
        if acquire:
            sk = a.newlabel("acq")
            self.e("s_cmp_eq_u32 s%d, 0" % sMode)
            self.e("s_cbranch_scc1 %s" % sk)
            self.e("buffer_inv sc1")
            self.e("s_waitcnt vmcnt(0)")
            a.label(sk)

    def publish(self, value, tags):
        a = self.a
        a.wait(vm=tags)
        fast, dn = a.newlabel("pubf"), a.newlabel("pubd")
        self.e("v_mov_b32 v%d, %d" % (vT0, value))
        self.e("s_mov_b64 exec, 1")
        self.e("s_cmp_eq_u32 s%d, 0" % sMode)
        self.e("s_cbranch_scc1 %s" % fast)
        self.e("buffer_wbl2 sc1")
        self.e("s_waitcnt vmcnt(0)")
        self.e("buffer_store_dword v%d, off, %s, s%d sc1" % (vT0, sWS, sFlOwn))
        self.e("s_branch %s" % dn)
        a.label(fast)
        self.e("buffer_store_dword v%d, off, %s, s%d" % (vT0, sWS, sFlOwn))
        a.label(dn)
        a.vmq.append("flag")
        self.e("s_mov_b64 exec, -1")

    def dma_main(self, xbase, srt, tag, chunks=range(5)):
        for j in chunks:
            if j == 0:
                self.e("s_add_u32 s%d, s%d, s%d" % (sA0, srt, sW))
                self.e("s_mul_i32 s%d, s%d, %d" % (sA0, sA0, 20 * KB))
                self.e("s_add_u32 s%d, s%d, %d" % (sA0, sA0, xbase))
            else:
                self.e("s_add_u32 s%d, s%d, 4096" % (sA0, sA0))
            self.e("s_add_u32 m0, s%d, %d" % (sLdsW, L_A + 4096 * j))
            for k in range(4):
                self.a.vm((tag, j), "buffer_load_dwordx4 v%d, %s, s%d offen offset:%d sc1 lds" % (vL0, sWS, sA0, 1024 * k))

    def dma_halo(self, soff, tag):
        self.e("s_mul_i32 s%d, s%d, 5120" % (sA2, sW))
        self.e("s_add_u32 s%d, s%d, s%d" % (sA1, soff, sA2))
        self.e("s_add_u32 m0, s%d, %d" % (sA2, L_HALO))
        for k in range(4):
            self.a.vm(tag, "buffer_load_dwordx4 v%d, %s, s%d offen offset:%d sc1 lds" % (vL0, sWS, sA1, 1024 * k))
        self.e("s_add_u32 m0, s%d, %d" % (sA2, L_HALO + 4096))
        self.e("s_add_u32 s%d, s%d, 4096" % (sA1, sA1))
        self.a.vm(tag, "buffer_load_dwordx4 v%d, %s, s%d offen sc1 lds" % (vL0, sWS, sA1))

    def stats_ops(self, raw, dst):
        r = raw
        return [
            "v_pk_add_f32 %s, %s, %s" % (p2(r), p2(r), p2(r + 2)),
            "v_permlane16_swap_b32 v%d, v%d" % (r, r + 1),
            "v_add_f32 v%d, v%d, v%d" % (r, r, r + 1),
            "v_mov_b32 v%d, v%d" % (r + 1, r),
            "v_permlane32_swap_b32 v%d, v%d" % (r, r + 1),
            "v_add_f32 v%d, v%d, v%d" % (r, r, r + 1),
            "v_mov_b32 v%d, v%d" % (r + 1, r),
            "v_permlane16_swap_b32 v%d, v%d" % (r, r + 1),
            "v_mul_f32 v%d, s%d, v%d" % (dst, sInv640, r),
            "v_mul_f32 v%d, s%d, v%d" % (r + 1, sInv640, r + 1),
            "v_fma_f32 v%d, -v%d, v%d, v%d" % (r + 1, dst, dst, r + 1),
            "v_max_f32 v%d, 0, v%d" % (r + 1, r + 1),
            "v_add_f32 v%d, s%d, v%d" % (r + 1, sEps, r + 1),
            "v_rsq_f32 v%d, v%d" % (dst + 1, r + 1),
        ]

    def prologue(self):
        a, e = self.a, self.e
        e("s_cmp_ge_u32 s2, 256")
        e("s_cbranch_scc0 main_go")
        e("s_endpgm")
        a.label("main_go")
        e("s_load_dwordx2 s[4:5], s[0:1], 0x50")
        e("s_load_dwordx2 s[8:9], s[0:1], 0x40")
        e("v_lshrrev_b32 v%d, 6, v0" % vT0)
        e("v_and_b32 v%d, 63, v0" % vT1)
        e("v_readfirstlane_b32 s%d, v%d" % (sW, vT0))
        e("v_lshlrev_b32 v%d, 4, v%d" % (vL0, vT1))
        e("s_mov_b32 s6, %d" % WS_USED)
        e("s_mov_b32 s7, 0x20000")
        e("s_mov_b32 s10, %d" % (S * D * 2))
        e("s_mov_b32 s11, 0x20000")
        e("s_and_b32 s%d, s2, 7" % sC)
        e("s_lshl_b32 s%d, s%d, 1" % (sC, sC))
        e("s_lshr_b32 s%d, s2, 7" % sA0)
        e("s_add_u32 s%d, s%d, s%d" % (sC, sC, sA0))
        e("s_bfe_u32 s%d, s2, 0x40003" % sM)
        e("s_lshr_b32 s%d, s%d, 3" % (sT, sM))
        e("s_and_b32 s%d, s%d, 7" % (sCG, sM))
        e("s_lshl_b32 s%d, s%d, 2" % (sRtA, sC))
        e("s_add_u32 s%d, s%d, 64" % (sRtB, sRtA))
        e("s_mul_i32 s%d, s%d, 20480" % (sLdsW, sW))
        e("s_lshl_b32 s%d, s%d, 2" % (sA3, sM))
        e("s_add_u32 s%d, s%d, s%d" % (sA3, sA3, sW))
        e("s_mul_i32 s%d, s%d, %d" % (sW1b, sA3, 30 * KB))
        e("s_add_u32 s%d, s%d, %d" % (sW1b, sW1b, W1))
        e("s_lshl_b32 s%d, s%d, 2" % (sFlOwn, sA3))
        e("s_mul_i32 s%d, s%d, %d" % (sA3, sA3, 40 * KB))
        e("s_add_u32 s%d, s%d, %d" % (sA3, sA3, WQ))
        e("s_cmp_eq_u32 s%d, 3" % sW)
        e("s_cselect_b32 s%d, 0xffffff7f, -1" % sA1)
        e("v_and_b32 v%d, s%d, v%d" % (vT2, sA1, vL0))
        e("s_waitcnt lgkmcnt(0)")
        self.stamp("start")
        for j in range(5):
            self.dma_main(X0, sRtA, "A", chunks=[j])
            for ks in range(4 * j, 4 * j + 4):
                if ks % 2 == 0 and ks > 0:
                    e("s_add_u32 s%d, s%d, 4096" % (sA3, sA3))
                for t in range(2):
                    r = ("a", (ks * 2 + t) * 4)
                    a.vm(("WQ", ks), "buffer_load_dwordx4 %s, v%d, %s, s%d offen offset:%d" %
                         (q(r), vL0 if t == 0 else vT2, sWS, sA3, (ks % 2) * 2048 + t * 1024))
        e("v_add_u32 v%d, 4096, v%d" % (vL1, vL0))
        e("v_add_u32 v%d, 4096, v%d" % (vL2, vL1))
        e("v_add_u32 v%d, 61440, v%d" % (vAh, vL0))
        e("v_lshlrev_b32 v%d, 2, v%d" % (vFl, vT1))
        self.halo_and_stats_l0(sRtA)
        e("s_mov_b32 s%d, 0x3f803f80" % sOnes)
        e("s_mov_b32 s%d, 0x%x" % (sScale, fbits(20 ** -0.5 * math.log2(math.e))))
        e("s_mov_b32 s%d, 0x%x" % (sInv640, fbits(1.0 / 640)))
        e("s_mov_b32 s%d, 0x%x" % (sEps, fbits(1e-5)))
        e("s_mov_b32 s%d, 0x%x" % (sNeg, fbits(-1e30)))
        e("s_mov_b32 s%d, %d" % (sSpin, 400000))
        e("s_mov_b32 s%d, 0" % sMode)
        e("s_mov_b64 %s, -1" % sp(sAll))
        e("s_mov_b64 %s, 0xff" % sp(sMask8))
        e("s_mov_b64 %s, 0xffff" % sp(sMaskX))
        e("s_lshl_b32 s%d, s%d, 4" % (sA0, sW))
        e("s_lshl_b64 %s, %s, s%d" % (sp(sMask16), sp(sMaskX), sA0))
        e("s_mov_b32 s%d, -1" % sMaskA)
        e("s_mov_b32 s%d, 0" % (sMaskA + 1))
        e("s_mov_b32 s%d, 0" % sMaskB)
        e("s_mov_b32 s%d, s%d" % (sMaskB + 1, sMaskA))
        e("s_lshl_b32 s%d, s%d, 8" % (sFlBase, sC))
        e("s_add_u32 s%d, s%d, %d" % (sFlBase, sFlBase, FLAG))
        e("s_add_u32 s%d, s%d, s%d" % (sFlOwn, sFlOwn, sFlBase))
        e("s_lshl_b32 s%d, s%d, 6" % (sRtT, sT))
        e("s_add_u32 s%d, s%d, s%d" % (sRtT, sRtT, sRtA))
        e("s_lshl_b32 s%d, s%d, 2" % (sA0, sCG))
        e("s_add_u32 s%d, s%d, s%d" % (sA0, sA0, sW))
        e("s_mul_i32 s%d, s%d, %d" % (sWOb, sA0, 25 * KB))
        e("s_add_u32 s%d, s%d, %d" % (sWOb, sWOb, WO))
        e("s_mul_i32 s%d, s%d, %d" % (sW2b, sA0, 60 * KB))
        e("s_add_u32 s%d, s%d, %d" % (sW2b, sW2b, W2))
        e("s_lshr_b32 s%d, s%d, 1" % (sA0, sCG))
        e("s_mul_i32 s%d, s%d, 5" % (sA0, sA0))
        e("s_and_b32 s%d, s%d, 1" % (sA1, sCG))
        e("s_add_u32 s%d, s%d, 2" % (sXkh, sA0))
        e("s_mul_i32 s%d, s%d, 3" % (sA2, sA1))
        e("s_add_u32 s%d, s%d, s%d" % (sXk0, sA0, sA2))
        e("s_lshl_b32 s%d, s%d, 3" % (sA1, sA1))
        e("v_add_u32 v%d, s%d, v%d" % (vHalf, sA1, vL0))
        e("s_getreg_b32 s%d, hwreg(HW_REG_XCC_ID)" % sXcc)
        e("s_and_b32 s%d, s%d, 15" % (sXcc, sXcc))
        e("s_add_u32 s%d, s%d, 1" % (sXcc, sXcc))
        e("s_lshl_b32 s%d, s%d, 7" % (sA2, sC))
        e("s_add_u32 s%d, s%d, %d" % (sXk1, sA2, XT))
        e("s_lshl_b32 s%d, s%d, 2" % (sA2, sM))
        e("s_add_u32 s%d, s%d, s%d" % (sA2, sA2, sXk1))
        e("v_mov_b32 v%d, s%d" % (vXt, sXcc))
        e("s_cmp_lg_u32 s%d, 0" % sW)
        e("s_cbranch_scc1 main_noxt")
        e("s_mov_b64 exec, 1")
        e("buffer_store_dword v%d, off, %s, s%d sc1" % (vXt, sWS, sA2))
        e("s_mov_b64 exec, -1")
        a.label("main_noxt")
        tok, g = W0 + 120, W0 + 121
        e("v_and_b32 v%d, 15, v%d" % (tok, vT1))
        e("v_lshrrev_b32 v%d, 4, v%d" % (g, vT1))
        e("s_add_u32 s%d, s%d, s%d" % (sA0, sRtT, sW))
        e("s_mul_i32 s%d, s%d, 20" % (sA0, sA0))
        e("s_add_u32 s%d, s%d, s%d" % (sA1, sA0, sXk0))
        e("s_lshl_b32 s%d, s%d, 10" % (sA1, sA1))
        e("s_add_u32 s%d, s%d, %d" % (sA1, sA1, X0))
        a.vm("res", "buffer_load_dwordx4 %s, v%d, %s, s%d offen" % (q(vRes), vL0, sWS, sA1))
        a.vm("res", "buffer_load_dwordx4 %s, v%d, %s, s%d offen offset:1024" % (q(vRes + 4), vL0, sWS, sA1))
        e("s_add_u32 s%d, s%d, s%d" % (sA1, sA0, sXkh))
        e("s_lshl_b32 s%d, s%d, 10" % (sA1, sA1))
        e("s_add_u32 s%d, s%d, %d" % (sA1, sA1, X0))
        a.vm("res", "buffer_load_dwordx2 %s, v%d, %s, s%d offen" % (p2(vRes + 8), vHalf, sWS, sA1))
        c0 = 176
        e("s_lshl_b32 s%d, s%d, 11" % (sA0, sM))
        e("s_add_u32 s%d, s%d, %d" % (sA0, sA0, CG))
        e("s_lshl_b32 s%d, s%d, 9" % (sA1, sCG))
        e("s_add_u32 s%d, s%d, %d" % (sA1, sA1, CB2 - 96 * 16))
        e("v_lshlrev_b32 v%d, 4, v0" % (c0 + 16))
        e("v_add_u32 v%d, s%d, v%d" % (c0 + 17, sA0, c0 + 16))
        e("v_add_u32 v%d, s%d, v%d" % (c0 + 18, sA1, c0 + 16))
        e("v_mov_b32 v%d, 0x7ffffff0" % (c0 + 19))
        e("v_cmp_gt_u32 vcc, 54, v0")
        e("v_cndmask_b32 v%d, v%d, v%d, vcc" % (c0 + 20, c0 + 19, c0 + 17))
        e("v_cmp_gt_u32 vcc, 78, v0")
        e("v_cndmask_b32 v%d, v%d, v%d, vcc" % (c0 + 17, c0 + 19, c0 + 17))
        e("v_subrev_u32 v%d, 96, v0" % (c0 + 21))
        e("v_cmp_gt_u32 vcc, 20, v%d" % (c0 + 21))
        e("v_cndmask_b32 v%d, v%d, v%d, vcc" % (c0 + 17, c0 + 17, c0 + 18))
        a.vm("ct", "buffer_load_dwordx4 %s, v%d, %s, 0 offen" % (q(c0), c0 + 17, sWS))
        for k in range(1, 4):
            e("s_mov_b32 s%d, %d" % (sA0, k * 32768))
            a.vm("ct", "buffer_load_dwordx4 %s, v%d, %s, s%d offen" % (q(c0 + 4 * k), c0 + 20, sWS, sA0))
        self.ct_regs = c0
        e("s_and_b32 s%d, s%d, 1" % (sA0, sW))
        e("s_lshr_b32 s%d, s%d, 1" % (sA1, sW))
        e("s_mul_i32 s%d, s%d, %d" % (sA2, sA0, 40960 + 1024))
        e("v_add_u32 v%d, s%d, v%d" % (vP3a, sA2, vL0))
        e("s_mul_i32 s%d, s%d, %d" % (sA2, sA0, -40960 + 1024))
        e("s_add_u32 s%d, s%d, 40960" % (sA2, sA2))
        e("v_add_u32 v%d, s%d, v%d" % (vP3b, sA2, vL0))
        e("s_lshl_b32 s%d, s%d, 3" % (sA2, sA1))
        e("v_add_u32 v%d, s%d, v%d" % (vHh, sA2, vL0))
        e("s_mul_i32 s%d, s%d, 192" % (sA2, sA1))
        e("s_add_u32 s%d, s%d, %d" % (sA2, sA2, L_CT + 480))
        e("v_lshl_add_u32 v%d, v%d, 4, s%d" % (vC3, g, sA2))
        e("s_mov_b32 s%d, %d" % (sA2, L_CT + 1536))
        e("v_lshl_add_u32 v%d, v%d, 4, s%d" % (vC4, g, sA2))
        e("s_mul_i32 s%d, s%d, 6144" % (sA2, sW))
        e("s_add_u32 s%d, s%d, %d" % (sA2, sA2, L_E3))
        e("v_add_u32 v%d, s%d, v%d" % (vE3w, sA2, vL0))
        e("s_xor_b32 s%d, s%d, 1" % (sA2, sW))
        e("s_mul_i32 s%d, s%d, 6144" % (sA2, sA2))
        e("s_add_u32 s%d, s%d, %d" % (sA2, sA2, L_E3))
        e("v_add_u32 v%d, s%d, v%d" % (vE3r, sA2, vL0))
        for i, vr in ((1, vRw1), (2, vRw2), (3, vRw3)):
            e("s_add_u32 s%d, s%d, %d" % (sA2, sW, i))
            e("s_and_b32 s%d, s%d, 3" % (sA2, sA2))
            e("s_mul_i32 s%d, s%d, 15360" % (sA2, sA2))
            e("s_add_u32 s%d, s%d, %d" % (sA2, sA2, L_RED + (i - 1) * 5120))
            e("v_add_u32 v%d, s%d, v%d" % (vr, sA2, vL0))
        e("s_mul_i32 s%d, s%d, 15360" % (sA2, sW))
        e("s_add_u32 s%d, s%d, %d" % (sA2, sA2, L_RED))
        e("v_add_u32 v%d, s%d, v%d" % (vRr, sA2, vL0))
        t0, t1 = W0 + 122, W0 + 123
        e("v_mul_u32_u24 v%d, %d, v%d" % (t0, EXS, tok))
        e("s_lshl_b32 s%d, s%d, 6" % (sA2, sW))
        e("s_add_u32 s%d, s%d, %d" % (sA0, sA2, L_EX))
        e("v_lshl_add_u32 v%d, v%d, 3, v%d" % (vXw0, g, t0))
        e("v_add_u32 v%d, s%d, v%d" % (vXw0, sA0, vXw0))
        e("s_cmp_eq_u32 s%d, 3" % sW)
        e("s_cselect_b32 s%d, 1, 3" % sA1)
        e("v_and_b32 v%d, s%d, v%d" % (t1, sA1, g))
        e("v_lshl_add_u32 v%d, v%d, 3, v%d" % (vXw1, t1, t0))
        e("s_add_u32 s%d, s%d, 32" % (sA0, sA0))
        e("v_add_u32 v%d, s%d, v%d" % (vXw1, sA0, vXw1))
        e("s_lshl_b32 s%d, s%d, 7" % (sA2, sW))
        e("s_add_u32 s%d, s%d, %d" % (sA0, sA2, L_CT))
        e("v_lshl_add_u32 v%d, v%d, 4, s%d" % (vC1a, g, sA0))
        e("s_add_u32 s%d, s%d, 64" % (sA0, sA0))
        e("v_lshl_add_u32 v%d, v%d, 4, s%d" % (vC1b, t1, sA0))
        e("s_mul_i32 s%d, s%d, %d" % (sA0, sW, EXT))
        e("s_add_u32 s%d, s%d, %d" % (sA0, sA0, L_EX))
        e("v_lshl_add_u32 v%d, v%d, 3, v%d" % (vXp, g, t0))
        e("v_add_u32 v%d, s%d, v%d" % (vXp, sA0, vXp))
        e("v_add_u32 v%d, %d, v%d" % (vXc, EXT, vXp))
        e("v_lshrrev_b32 v%d, 2, v%d" % (t0, vT1))
        e("v_mul_u32_u24 v%d, %d, v%d" % (t0, EXS, t0))
        e("v_and_b32 v%d, 3, v%d" % (t1, vT1))
        e("v_lshl_add_u32 v%d, v%d, 3, v%d" % (vXv, t1, t0))
        e("s_add_u32 s%d, s%d, 160" % (sA0, sA0))
        e("v_add_u32 v%d, s%d, v%d" % (vXv, sA0, vXv))
        e("v_and_b32 v%d, 1, v%d" % (t0, tok))
        e("v_cmp_eq_u32 %s, 1, v%d" % (sp(sOdd), t0))
        e("v_lshl_add_u32 v%d, v%d, 2, v%d" % (t0, g, t0))
        e("v_cmp_gt_u32 %s, v%d, v%d" % (sp(sPA), t0, tok))
        e("v_add_u32 v%d, 2, v%d" % (t0, t0))
        e("v_cmp_gt_u32 %s, v%d, v%d" % (sp(sPB), t0, tok))
        e("v_cmp_eq_u32 %s, 0, v%d" % (sp(sG0), g))
        e("v_mov_b32 v%d, 0xffff" % t0)
        e("v_mov_b32 v%d, 0xffff0000" % t1)
        e("v_cndmask_b32 v%d, v%d, v%d, %s" % (t0, t0, t1, sp(sOdd)))
        e("v_cndmask_b32 v%d, 0, v%d, %s" % (vM0, t0, sp(sPA)))
        e("v_cndmask_b32 v%d, v%d, 0, %s" % (vM2, t0, sp(sPA)))
        e("v_cndmask_b32 v%d, 0, v%d, %s" % (vM1, t0, sp(sPB)))
        e("v_cndmask_b32 v%d, v%d, 0, %s" % (vM3, t0, sp(sPB)))
        e("s_lshr_b32 s%d, s%d, 1" % (sA0, sCG))
        e("s_lshl_b32 s%d, s%d, 8" % (sA0, sA0))
        e("s_and_b32 s%d, s%d, 1" % (sA1, sCG))
        e("s_lshl_b32 s%d, s%d, 3" % (sA1, sA1))
        e("s_add_u32 s%d, s%d, s%d" % (sA0, sA0, sA1))
        e("v_and_b32 v%d, 1, v%d" % (t0, g))
        e("v_lshlrev_b32 v%d, 2, v%d" % (t0, t0))
        e("v_lshl_add_u32 v%d, v%d, 4, v%d" % (vSt, tok, t0))
        e("v_add_u32 v%d, s%d, v%d" % (vSt, sA0, vSt))
        e("v_mul_u32_u24 v%d, 1280, v%d" % (t0, tok))
        e("v_lshl_add_u32 v%d, v%d, 4, v%d" % (vOut, g, t0))
        e("v_add_u32 v%d, s%d, v%d" % (vOutH, sA1, vOut))

    def halo_and_stats_l0(self, srt):
        e = self.e
        e("s_sub_u32 s%d, s%d, 1" % (sTmp2, srt))
        e("s_max_i32 s%d, s%d, 0" % (sTmp2, sTmp2))
        e("s_mul_i32 s%d, s%d, %d" % (sTmp2 + 1, sTmp2, 20 * KB))
        e("s_add_u32 s%d, s%d, %d" % (sTmp2 + 1, sTmp2 + 1, X0))
        if srt == sRtA:
            self.stats_main(ST0, srt)
        self.dma_halo(sTmp2 + 1, "H")
        e("s_lshl_b32 s%d, s%d, 10" % (sTmp2, sTmp2))
        e("s_add_u32 s%d, s%d, %d" % (sTmp2, sTmp2, ST0))
        self.a.vm("SH", "buffer_load_dwordx4 %s, v%d, %s, s%d offen sc1" % (q(self.P1_RAW + 16), vL0, sWS, sTmp2))

    def halo_l1(self, srt):
        e = self.e
        e("s_lshr_b32 s%d, s%d, 2" % (sA3, srt))
        e("s_sub_u32 s%d, s%d, 1" % (sA3, sA3))
        e("s_max_i32 s%d, s%d, 0" % (sA3, sA3))
        e("s_lshl_b32 s%d, s%d, 7" % (sA2, sA3))
        e("s_add_u32 s%d, s%d, %d" % (sA2, sA2, HFL))
        self.poll(1, sMask8, soff=sA2)
        e("s_mul_i32 s%d, s%d, %d" % (sTmp2 + 1, sA3, 20 * KB))
        e("s_add_u32 s%d, s%d, %d" % (sTmp2 + 1, sTmp2 + 1, HX))
        e("s_lshl_b32 s%d, s%d, 10" % (sTmp2, sA3))
        e("s_add_u32 s%d, s%d, %d" % (sTmp2, sTmp2, HS))
        self.dma_halo(sTmp2 + 1, "H")
        self.a.vm("SH", "buffer_load_dwordx4 %s, v%d, %s, s%d offen sc1" % (q(self.P1_RAW + 16), vL0, sWS, sTmp2))

    P1_ACC = W0
    P1_AB = W0 + 40
    P1_RAW = W0 + 88
    P1_MS = W0 + 108
    P1_CS = W0 + 120

    def stats_main(self, stbase, srt):
        self.e("s_lshl_b32 s%d, s%d, 10" % (sA2, srt))
        self.e("s_add_u32 s%d, s%d, %d" % (sA2, sA2, stbase))
        for i in range(4):
            self.a.vm("S", "buffer_load_dwordx4 %s, v%d, %s, s%d offen offset:%d sc1" %
                      (q(self.P1_RAW + 4 * i), vL0, sWS, sA2, 1024 * i))

    def p1(self, layer, sb):
        a, e = self.a, self.e
        srt = sRtA if sb == 0 else sRtB
        first = layer == 0 and sb == 0
        chunked = sb == 0
        ACC, AB = self.P1_ACC, self.P1_AB
        self.stamp("p1_%d%s_begin" % (layer, "ab"[sb]))

        def rd(ks):
            for rt in range(4):
                base, off = (vL0, rt * 20480 + ks * 1024) if rt < 3 else (vAh, ks * 1024)
                yield ("X", ks, rt), "ds_read_b128 %s, v%d offset:%d" % (q(AB + (ks % 3) * 16 + rt * 4), base, off)

        def sync_chunk(j):
            a.wait(vm=[("A", j)])
            e("s_barrier")

        bg = []

        def bgstep(n=1):
            for _ in range(n):
                if bg:
                    x = bg.pop(0)
                    x() if callable(x) else e(x)

        if chunked:
            sync_chunk(0)
        else:
            a.wait(vm=[("A", 4)])
            e("s_barrier")
        for ks in (0, 1):
            for tag, ins in rd(ks):
                a.ds(tag, ins)
        for ks in range(20):
            nxt = list(rd(ks + 2)) if ks + 2 < 20 else []
            if nxt and chunked and (ks + 2) % 4 == 0:
                sync_chunk((ks + 2) // 4)
                if layer == 1 and ks + 2 == 12:
                    self.halo_l1(srt)
            if ks == 12:
                if first:
                    bg += [self.ct_write]
                bg += [lambda: a.wait(vm=["S"])]
                ops = [self.stats_ops(self.P1_RAW + 4 * i, self.P1_MS + 2 * i) for i in range(4)]
                for k in range(len(ops[0])):
                    bg += [o[k] for o in ops]
            if first:
                a.wait(vm=[("WQ", ks)])
            for rt in range(4):
                a.wait(ds=[("X", ks, rt)])
                for t in range(2):
                    self.mfma(ACC + (rt * 2 + t) * 4, ("a", (ks * 2 + t) * 4), AB + (ks % 3) * 16 + rt * 4, first=(ks == 0))
                    if t == 0 and nxt:
                        a.ds(*nxt.pop(0))
                    elif t == 1 and not first and ks < 12:
                        self.bpref(1)
                    bgstep(1 if t == 0 else 2)
        bgstep(1000)
        a.wait(vm=["H"])
        a.wait_all(ds=True)
        e("s_barrier")
        self.stamp("p1_%d%s_main" % (layer, "ab"[sb]))
        if sb == 0:
            a.wait(vm=["SH"])
            if layer == 1:
                self.poll(6, sMaskB)
            self.dma_main(X0 if layer == 0 else X2, sRtB, "A")
            self.stats_main(ST0 if layer == 0 else ST2, sRtB)
        else:
            a.wait(vm=["SH"])
        bg = self.stats_ops(self.P1_RAW + 16, self.P1_MS + 8)
        a.ds("cs", "ds_read_b128 %s, v%d" % (q(self.P1_CS), vC1a))
        a.ds("cs", "ds_read_b128 %s, v%d" % (q(self.P1_CS + 4), vC1b))

        def rdh(ks):
            a.ds(("Hh", ks), "ds_read_b128 %s, v%d offset:%d" % (q(AB + (ks % 12) * 4), vAh, 20480 + ks * 1024))

        def fix(rt):
            ops = []
            ms = self.P1_MS + 2 * rt
            for t in range(2):
                acc = ACC + (rt * 2 + t) * 4
                cs = self.P1_CS + 4 * t
                for hh in (0, 2):
                    ops.append("v_pk_fma_f32 %s, %s, %s, %s op_sel_hi:[1,0,1] neg_lo:[0,1,0] neg_hi:[0,1,0]" %
                               (p2(acc + hh), p2(cs + hh), p2(ms), p2(acc + hh)))
                for hh in (0, 2):
                    ops.append("v_pk_mul_f32 %s, %s, %s op_sel:[0,1] op_sel_hi:[1,1]" % (p2(acc + hh), p2(acc + hh), p2(ms)))
                ops.append("v_cvt_pk_bf16_f32 v%d, v%d, v%d" % (acc, acc, acc + 1))
                ops.append("v_cvt_pk_bf16_f32 v%d, v%d, v%d" % (acc + 1, acc + 2, acc + 3))
                row = 0 if rt == 4 else rt + 1
                ops.append(lambda acc=acc, t=t, row=row: a.ds("xw", "ds_write_b64 v%d, %s offset:%d" %
                                                           ((vXw0, vXw1)[t], p2(acc), row * EXT)))
            return ops

        for ks in range(6):
            rdh(ks)
        bg += [lambda: a.wait(ds=["cs"])]
        for rt in range(4):
            bg += fix(rt)
        for ks in range(20):
            a.wait(ds=[("Hh", ks)])
            for t in range(2):
                self.mfma(ACC + (8 + t) * 4, ("a", (ks * 2 + t) * 4), AB + (ks % 12) * 4, first=(ks == 0))
                if t == 0 and ks + 6 < 20:
                    rdh(ks + 6)
                bgstep(1 if t == 0 else 2)
        bgstep(1000)
        bg = fix(4)
        bgstep(1000)
        if layer == 1 and sb == 1:
            for n in range(0, 160, 4):
                self.free.append(("a", n))
        a.wait_all(ds=True)
        e("s_barrier")
        self.stamp("p1_%d%s_gemm" % (layer, "ab"[sb]))
        R = AB
        Qf = [R, R + 4]
        Kp = [R + 8, R + 12]
        Kc = [R + 16, R + 20]
        Va = [R + 24, R + 28]
        Vb = [R + 32, R + 36]
        Sp = [ACC, ACC + 4]
        Sc = [ACC + 8, ACC + 12]
        Pf = [ACC + 16, ACC + 20]
        Oa = [ACC + 24, ACC + 28]
        Ob = [ACC + 32, ACC + 36]
        for h in range(2):
            a.ds(("q", h), "ds_read2_b64 %s, v%d offset0:%d offset1:%d" % (q(Qf[h]), vXc, 10 + 5 * h, 14 + 5 * h))
            a.ds(("kp", h), "ds_read2_b64 %s, v%d offset0:%d offset1:%d" % (q(Kp[h]), vXp, 5 * h, 4 + 5 * h))
            a.ds(("kc", h), "ds_read2_b64 %s, v%d offset0:%d offset1:%d" % (q(Kc[h]), vXc, 5 * h, 4 + 5 * h))
        for h in range(2):
            for vv, o in ((Va[h], 0), (Vb[h], 32)):
                a.ds(("v", h), "ds_read_b64_tr_b16 %s, v%d offset:%d" % (p2(vv), vXv, 40 * h + o))
                a.ds(("v", h), "ds_read_b64_tr_b16 %s, v%d offset:%d" % (p2(vv + 2), vXv, 40 * h + o + EXT))
        if sb == 0:
            if layer == 0:
                self.halo_and_stats_l0(sRtB)
            else:
                self.halo_l1(sRtB)
            e("s_or_b32 s%d, s%d, s%d" % (sA0, sC, sW))
            e("s_cmp_eq_u32 s%d, 0" % sA0)
            e("s_cselect_b64 %s, %s, 0" % (sp(sPAx), sp(sPA)))
            e("s_cselect_b64 %s, %s, 0" % (sp(sPBx), sp(sPB)))
        for h in range(2):
            a.wait(ds=[("q", h)])
            e("v_cndmask_b32 v%d, 0, v%d, %s" % (Qf[h] + 2, Qf[h] + 2, sp(sG0)))
            e("v_cndmask_b32 v%d, 0, v%d, %s" % (Qf[h] + 3, Qf[h] + 3, sp(sG0)))
        for h in range(2):
            a.wait(ds=[("kc", h)])
            self.mfma(Sp[h], Kp[h], Qf[h], first=True)
            self.mfma(Sc[h], Kc[h], Qf[h], first=True)
        e("v_mov_b32 v%d, s%d" % (vT2, sNeg))
        sa = [R + 40, R + 41]
        sbb = [R + 42, R + 43]
        mx = [R + 44, R + 45]
        for h in range(2):
            s, c = Sp[h], Sc[h]
            e("v_cndmask_b32 v%d, v%d, v%d, %s" % (s, s, s + 1, sp(sOdd)))
            e("v_cndmask_b32 v%d, v%d, v%d, %s" % (s + 2, s + 2, s + 3, sp(sOdd)))
            e("v_cndmask_b32 v%d, v%d, v%d, %s" % (c, c, c + 1, sp(sOdd)))
            e("v_cndmask_b32 v%d, v%d, v%d, %s" % (c + 2, c + 2, c + 3, sp(sOdd)))
            e("v_cndmask_b32 v%d, v%d, v%d, %s" % (sa[h], c, s, sp(sPA)))
            e("v_cndmask_b32 v%d, v%d, v%d, %s" % (sbb[h], c + 2, s + 2, sp(sPB)))
            if sb == 0:
                e("v_cndmask_b32 v%d, v%d, v%d, %s" % (sa[h], sa[h], vT2, sp(sPAx)))
                e("v_cndmask_b32 v%d, v%d, v%d, %s" % (sbb[h], sbb[h], vT2, sp(sPBx)))
            e("v_max_f32 v%d, v%d, v%d" % (mx[h], sa[h], sbb[h]))

        def red2(op, x, y):
            e("v_permlane16_swap_b32 v%d, v%d" % (x, y))
            e("%s v%d, v%d, v%d" % (op, x, x, y))
            e("v_mov_b32 v%d, v%d" % (y, x))
            e("v_permlane32_swap_b32 v%d, v%d" % (x, y))
            e("%s v%d, v%d, v%d" % (op, x, x, y))
            e("v_mov_b32 v%d, v%d" % (y, x))
            e("v_permlane16_swap_b32 v%d, v%d" % (x, y))

        red2("v_max_f32", mx[0], mx[1])
        for h in range(2):
            e("v_mul_f32 v%d, s%d, v%d" % (mx[h], sScale, mx[h]))
        for h in range(2):
            e("v_fma_f32 v%d, v%d, s%d, -v%d" % (sa[h], sa[h], sScale, mx[h]))
            e("v_fma_f32 v%d, v%d, s%d, -v%d" % (sbb[h], sbb[h], sScale, mx[h]))
        for h in range(2):
            e("v_exp_f32 v%d, v%d" % (sa[h], sa[h]))
            e("v_exp_f32 v%d, v%d" % (sbb[h], sbb[h]))
        for h in range(2):
            e("v_add_f32 v%d, v%d, v%d" % (mx[h], sa[h], sbb[h]))
        red2("v_add_f32", mx[0], mx[1])
        for h in range(2):
            e("v_rcp_f32 v%d, v%d" % (mx[h], mx[h]))
        for h in range(2):
            e("v_mul_f32 v%d, v%d, v%d" % (sa[h], sa[h], mx[h]))
            e("v_mul_f32 v%d, v%d, v%d" % (sbb[h], sbb[h], mx[h]))
        for h in range(2):
            e("v_cvt_pk_bf16_f32 v%d, v%d, v%d" % (sa[h], sa[h], sa[h]))
            e("v_cvt_pk_bf16_f32 v%d, v%d, v%d" % (sbb[h], sbb[h], sbb[h]))
            e("v_and_b32 v%d, v%d, v%d" % (Pf[h], vM0, sa[h]))
            e("v_and_b32 v%d, v%d, v%d" % (Pf[h] + 1, vM1, sbb[h]))
            e("v_and_b32 v%d, v%d, v%d" % (Pf[h] + 2, vM2, sa[h]))
            e("v_and_b32 v%d, v%d, v%d" % (Pf[h] + 3, vM3, sbb[h]))
        a.wait_all(ds=True)
        for h in range(2):
            self.mfma(Oa[h], Va[h], Pf[h], first=True)
        for h in range(2):
            self.mfma(Ob[h], Vb[h], Pf[h], first=True)
        e("s_add_u32 s%d, s%d, s%d" % (sA0, srt, sW))
        e("s_mul_i32 s%d, s%d, %d" % (sA0, sA0, 20 * KB))
        e("s_mul_i32 s%d, s%d, 1280" % (sA1, sM))
        e("s_add_u32 s%d, s%d, s%d" % (sA0, sA0, sA1))
        e("s_add_u32 s%d, s%d, %d" % (sA0, sA0, OB))
        for src, dst in ((Oa, R), (Ob, R + 4)):
            for h in range(2):
                e("v_cvt_pk_bf16_f32 v%d, v%d, v%d" % (dst + 2 * h, src[h], src[h] + 1))
                e("v_cvt_pk_bf16_f32 v%d, v%d, v%d" % (dst + 2 * h + 1, src[h] + 2, src[h] + 3))
            if src is Oa:
                a.vm("st", "buffer_store_dwordx4 %s, v%d, %s, s%d offen" % (q(R), vL0, sWS, sA0))
        e("s_mov_b64 exec, %s" % sp(sMaskX))
        a.vm("st", "buffer_store_dwordx4 %s, v%d, %s, s%d offen offset:1024" % (q(R + 4), vL0, sWS, sA0))
        e("s_mov_b64 exec, -1")
        if first:
            self.mode_check()
        self.publish(6 * layer + 1 + sb, ["st"])
        self.stamp("p1_%d%s_end" % (layer, "ab"[sb]))

    def ct_write(self):
        a, e = self.a, self.e
        c0 = self.ct_regs
        a.wait(vm=["ct"])
        e("v_pk_add_f32 %s, %s, %s" % (p2(c0), p2(c0), p2(c0 + 4)))
        e("v_pk_add_f32 %s, %s, %s" % (p2(c0 + 2), p2(c0 + 2), p2(c0 + 6)))
        e("v_pk_add_f32 %s, %s, %s" % (p2(c0 + 8), p2(c0 + 8), p2(c0 + 12)))
        e("v_pk_add_f32 %s, %s, %s" % (p2(c0 + 10), p2(c0 + 10), p2(c0 + 14)))
        e("v_pk_add_f32 %s, %s, %s" % (p2(c0), p2(c0), p2(c0 + 8)))
        e("v_pk_add_f32 %s, %s, %s" % (p2(c0 + 2), p2(c0 + 2), p2(c0 + 10)))
        e("v_add_u32 v%d, %d, v%d" % (c0 + 16, L_CT, c0 + 16))
        a.ds("ctw", "ds_write_b128 v%d, %s" % (c0 + 16, q(c0)))

    def mode_check(self):
        e = self.e
        self.poll(1, sMaskX, soff=sXk1, acquire=False)
        e("v_cmp_ne_u32 vcc, s%d, v%d" % (sXcc, vPoll))
        e("s_and_b64 %s, %s, vcc" % (sp(sTmp2), sp(sMaskX)))
        e("s_cselect_b32 s%d, 1, 0" % sMode)
        if self.opts.get("force_slow"):
            e("s_mov_b32 s%d, 1" % sMode)

    def pk(self, layer, which):
        a, e = self.a, self.e
        is4 = which == 4
        NK = 12 if is4 else 5
        name = ("W2" if is4 else "WO", layer)
        ACC, AB = W0, W0 + 80
        self.stamp("p%d_%d_begin" % (which, layer))
        e("s_barrier")
        if is4:
            for ct in range(5):
                a.ds(("b2", ct), "ds_read_b128 %s, v%d offset:%d" % (q(ACC + 20 + 4 * ct), vC4, 64 * ct))
        if layer == 0 and not is4:
            a.wait(vm=["res"])
        for i in range(4):
            e("s_add_u32 s%d, s%d, %d" % (sRt + i, sW, i))
            e("s_and_b32 s%d, s%d, 3" % (sRt + i, sRt + i))
            e("s_add_u32 s%d, s%d, s%d" % (sRt + i, sRt + i, sRtT))
            e("s_mul_i32 s%d, s%d, %d" % (sRt + i, sRt + i, (48 if is4 else 20) * KB))
        e("s_mul_i32 s%d, s%d, %d" % (sA0, sW, NK * KB))
        e("s_add_u32 s%d, s%d, %d" % (sA0, sA0, HB if is4 else OB))
        for i in range(4):
            e("s_add_u32 s%d, s%d, s%d" % (sRt + i, sRt + i, sA0))
        for ct in range(5):
            for hh in range(2):
                src = vRes + 2 * ct + hh
                e("v_lshlrev_b32 v%d, 16, v%d" % (ACC + 4 * ct + 2 * hh, src))
                e("v_and_b32 v%d, 0xffff0000, v%d" % (ACC + 4 * ct + 2 * hh + 1, src))
        if is4:
            for ct in range(5):
                a.wait(ds=[("b2", ct)])
                for hh in (0, 2):
                    e("v_pk_add_f32 %s, %s, %s" % (p2(ACC + 4 * ct + hh), p2(ACC + 4 * ct + hh), p2(ACC + 20 + 4 * ct + hh)))
        e("s_add_u32 s%d, s%d, %d" % (sA1, sT, 6 * layer + (4 if is4 else 1)))
        self.poll("s%d" % sA1, sMask16)
        self.stamp("p%d_%d_poll" % (which, layer))
        head = NK - 4 if is4 else 0
        order = [(i, k) for k in range(head) for i in (1, 2, 3, 0)]
        order += [(i, k) for i in (1, 2, 3, 0) for k in range(head, NK)]
        NB = 12

        def lda(n):
            i, k = order[n]
            vo, imm = self.voff(k)
            a.vm(("Ak", n), "buffer_load_dwordx4 %s, v%d, %s, s%d offen offset:%d sc1" %
                 (q(AB + (n % NB) * 4), vo, sWS, sRt + i, imm))

        for n in range(NB):
            lda(n)
        bg = []
        started = set()
        lastuse = {}
        for n, (i, k) in enumerate(order):
            lastuse[k] = n
        for n, (i, k) in enumerate(order):
            regs = [self.bget((name, k * 5 + ct)) for ct in range(5)]
            a.wait(vm=[("Ak", n)])
            for ct in range(5):
                self.mfma(ACC + (i * 5 + ct) * 4, regs[ct], AB + (n % NB) * 4, first=(i != 0 and i not in started))
                if bg and ct % 2 == 0:
                    bg.pop(0)()
            started.add(i)
            if n + NB < len(order):
                lda(n + NB)
            if lastuse[k] == n:
                for ct in range(5):
                    self.bfree((name, k * 5 + ct))
            self.bpref(2 if n % 4 == 0 else 1)
            if i != 0 and k == NK - 1:
                for ct in range(5):
                    bg.append(lambda i=i, ct=ct: a.ds("rw", "ds_write_b128 v%d, %s offset:%d" %
                                                       ((vRw1, vRw2, vRw3)[i - 1], q(ACC + (i * 5 + ct) * 4), ct * 1024)))
        while bg:
            bg.pop(0)()
        a.wait_all(ds=True)
        e("s_barrier")
        self.stamp("p%d_%d_gemm" % (which, layer))
        for j in range(3):
            for ct in range(5):
                a.ds(("rr", j, ct), "ds_read_b128 %s, v%d offset:%d" % (q(ACC + 20 + (j * 5 + ct) * 4), vRr, (j * 5 + ct) * 1024))
        last = layer == 1 and is4
        e("s_add_u32 s%d, s%d, s%d" % (sA0, sRtT, sW))
        if last:
            e("s_mul_i32 s%d, s%d, %d" % (sA1, sA0, 16 * 1280))
            e("s_lshl_b32 s%d, s%d, 6" % (sA2, sXk0))
            e("s_add_u32 s%d, s%d, s%d" % (sA2, sA2, sA1))
            e("s_lshl_b32 s%d, s%d, 6" % (sA3, sXkh))
            e("s_add_u32 s%d, s%d, s%d" % (sA3, sA3, sA1))
        else:
            xb = X2 if is4 else X1
            e("s_mul_i32 s%d, s%d, %d" % (sA1, sA0, 20 * KB))
            e("s_add_u32 s%d, s%d, %d" % (sA1, sA1, xb))
            e("s_lshl_b32 s%d, s%d, 10" % (sA2, sXk0))
            e("s_lshl_b32 s%d, s%d, 10" % (sA3, sXkh))
            e("s_mov_b32 s%d, s%d" % (sRt, sA2))
            e("s_mov_b32 s%d, s%d" % (sRt + 1, sA3))
            e("s_add_u32 s%d, s%d, s%d" % (sA2, sA2, sA1))
            e("s_add_u32 s%d, s%d, s%d" % (sA3, sA3, sA1))
            e("s_lshl_b32 s%d, s%d, 10" % (sA0, sA0))
            e("s_add_u32 s%d, s%d, %d" % (sA0, sA0, ST2 if is4 else ST1))
        for j in range(3):
            for ct in range(5):
                a.wait(ds=[("rr", j, ct)])
                for hh in (0, 2):
                    e("v_pk_add_f32 %s, %s, %s" % (p2(ACC + 4 * ct + hh), p2(ACC + 4 * ct + hh),
                                                   p2(ACC + 20 + (j * 5 + ct) * 4 + hh)))
                if j == 2:
                    e("v_cvt_pk_bf16_f32 v%d, v%d, v%d" % (vRes + 2 * ct, ACC + 4 * ct, ACC + 4 * ct + 1))
                    e("v_cvt_pk_bf16_f32 v%d, v%d, v%d" % (vRes + 2 * ct + 1, ACC + 4 * ct + 2, ACC + 4 * ct + 3))
                    if last:
                        if ct == 1:
                            a.vm("st", "buffer_store_dwordx4 %s, v%d, %s, s%d offen" % (q(vRes), vOut, sOUT, sA2))
                        if ct == 3:
                            a.vm("st", "buffer_store_dwordx4 %s, v%d, %s, s%d offen offset:64" % (q(vRes + 4), vOut, sOUT, sA2))
                        if ct == 4:
                            a.vm("st", "buffer_store_dwordx2 %s, v%d, %s, s%d offen" % (p2(vRes + 8), vOutH, sOUT, sA3))
                    else:
                        if ct == 1:
                            a.vm("st", "buffer_store_dwordx4 %s, v%d, %s, s%d offen" % (q(vRes), vL0, sWS, sA2))
                        if ct == 3:
                            a.vm("st", "buffer_store_dwordx4 %s, v%d, %s, s%d offen offset:1024" % (q(vRes + 4), vL0, sWS, sA2))
                        if ct == 4:
                            a.vm("st", "buffer_store_dwordx2 %s, v%d, %s, s%d offen" % (p2(vRes + 8), vHalf, sWS, sA3))
        if last:
            self.stamp("p4_1_end")
            return
        s0, s1 = ACC + 20, ACC + 21
        for r in range(10):
            e("v_dot2_f32_bf16 v%d, v%d, s%d, %s" % (s0, vRes + r, sOnes, "0" if r == 0 else "v%d" % s0))
            e("v_dot2_f32_bf16 v%d, v%d, v%d, %s" % (s1, vRes + r, vRes + r, "0" if r == 0 else "v%d" % s1))
        e("v_permlane16_swap_b32 v%d, v%d" % (s0, s1))
        e("v_add_f32 v%d, v%d, v%d" % (s0, s0, s1))
        e("v_mov_b32 v%d, v%d" % (s1, s0))
        e("v_permlane32_swap_b32 v%d, v%d" % (s0, s1))
        e("v_add_f32 v%d, v%d, v%d" % (s0, s0, s1))
        e("s_mov_b64 exec, %s" % sp(sMaskA))
        a.vm("st", "buffer_store_dword v%d, v%d, %s, s%d offen" % (s0, vSt, sWS, sA0))
        e("s_mov_b64 exec, -1")
        self.publish(6 * layer + (6 if is4 else 3), ["st"])
        if is4:
            sk = a.newlabel("nohalo")
            e("s_cmp_lg_u32 s%d, 3" % sW)
            e("s_cbranch_scc1 %s" % sk)
            e("s_lshr_b32 s%d, s%d, 2" % (sA0, sRtT))
            e("s_mul_i32 s%d, s%d, %d" % (sA1, sA0, 20 * KB))
            e("s_add_u32 s%d, s%d, %d" % (sA1, sA1, HX))
            e("s_add_u32 s%d, s%d, s%d" % (sA2, sRt, sA1))
            e("s_add_u32 s%d, s%d, s%d" % (sA3, sRt + 1, sA1))
            e("buffer_store_dwordx4 %s, v%d, %s, s%d offen sc1" % (q(vRes), vL0, sWS, sA2))
            e("buffer_store_dwordx4 %s, v%d, %s, s%d offen offset:1024 sc1" % (q(vRes + 4), vL0, sWS, sA2))
            e("buffer_store_dwordx2 %s, v%d, %s, s%d offen sc1" % (p2(vRes + 8), vHalf, sWS, sA3))
            e("s_lshl_b32 s%d, s%d, 10" % (sA1, sA0))
            e("s_add_u32 s%d, s%d, %d" % (sA1, sA1, HS))
            e("s_mov_b64 exec, %s" % sp(sMaskA))
            e("buffer_store_dword v%d, v%d, %s, s%d offen sc1" % (s0, vSt, sWS, sA1))
            e("s_mov_b64 exec, 1")
            e("s_lshl_b32 s%d, s%d, 7" % (sA1, sA0))
            e("s_lshl_b32 s%d, s%d, 2" % (sA2, sCG))
            e("s_add_u32 s%d, s%d, s%d" % (sA1, sA1, sA2))
            e("s_add_u32 s%d, s%d, %d" % (sA1, sA1, HFL))
            e("v_mov_b32 v%d, 1" % vT0)
            e("s_waitcnt vmcnt(0)")
            e("buffer_store_dword v%d, off, %s, s%d sc1" % (vT0, sWS, sA1))
            e("s_mov_b64 exec, -1")
            a.label(sk)
        self.stamp("p%d_%d_end" % (which, layer))

    P3_ACC = W0
    P3_AB = W0 + 48
    P3_RAW = W0 + 96
    P3_MS = W0 + 112

    def p3_fetch(self, layer, sb):
        e = self.e
        srt = sRtA if sb == 0 else sRtB
        self.poll(6 * layer + 3, sMaskA if sb == 0 else sMaskB)
        self.dma_main(X1, srt, "A")

    def p3_stats(self, sb):
        e = self.e
        srt = sRtA if sb == 0 else sRtB
        e("s_and_b32 s%d, s%d, 1" % (sA2, sW))
        e("s_lshl_b32 s%d, s%d, 1" % (sA2, sA2))
        e("s_add_u32 s%d, s%d, s%d" % (sA2, sA2, srt))
        e("s_lshl_b32 s%d, s%d, 10" % (sA2, sA2))
        e("s_add_u32 s%d, s%d, %d" % (sA2, sA2, ST1))
        for i in range(2):
            self.a.vm("S3", "buffer_load_dwordx4 %s, v%d, %s, s%d offen offset:%d sc1" %
                      (q(self.P3_RAW + 4 * i), vL0, sWS, sA2, 1024 * i))

    def p3(self, layer, sb, deferred=None):
        a, e = self.a, self.e
        srt = sRtA if sb == 0 else sRtB
        name = ("W1", layer)
        ACC, AB = self.P3_ACC, self.P3_AB
        self.stamp("p3_%d%s_begin" % (layer, "ab"[sb]))
        if sb == 0:
            self.p3_fetch(layer, 0)

        def rd(k):
            for i in (2, 3, 0, 1):
                yield ("X", k, i), "ds_read_b128 %s, v%d offset:%d" % (
                    q(AB + (k % 3) * 16 + i * 4), vP3a if i < 2 else vP3b, (i & 1) * 20480 + k * 2048)

        def sync_chunk(j):
            a.wait(vm=[("A", j)])
            e("s_barrier")

        bg = []

        def bgstep(n=1):
            for _ in range(n):
                if bg:
                    x = bg.pop(0)
                    x() if callable(x) else e(x)

        sync_chunk(0)
        self.p3_stats(sb)
        for k in (0, 1):
            for tag, ins in rd(k):
                a.ds(tag, ins)
        for k in range(10):
            nxt = list(rd(k + 2)) if k + 2 < 10 else []
            if nxt and (k + 2) % 2 == 0:
                sync_chunk((k + 2) // 2)
                if k + 2 == 8:
                    if deferred:
                        deferred()
                    bg += [lambda: a.wait(vm=["S3"])]
                    ops = [self.stats_ops(self.P3_RAW + 4 * i, self.P3_MS + 2 * i) for i in range(2)]
                    for z in range(len(ops[0])):
                        bg += [o[z] for o in ops]
            regs = [self.bget((name, k * 3 + ct)) for ct in range(3)]
            for i in (2, 3, 0, 1):
                a.wait(ds=[("X", k, i)])
                for ct in range(3):
                    self.mfma(ACC + (i * 3 + ct) * 4, regs[ct], AB + (k % 3) * 16 + i * 4, first=(k == 0))
                    if ct == 0 and nxt:
                        a.ds(*nxt.pop(0))
                    elif ct == 1 and k >= 6:
                        self.bpref(1)
                    bgstep(1)
                if k == 9 and i == 3:
                    for ii in (2, 3):
                        for ct in range(3):
                            bg.append(lambda ii=ii, ct=ct: a.ds("ew", "ds_write_b128 v%d, %s offset:%d" %
                                                                (vE3w, q(ACC + (ii * 3 + ct) * 4), ((ii - 2) * 3 + ct) * 1024)))
            if sb == 1:
                for ct in range(3):
                    self.bfree((name, k * 3 + ct))
        bgstep(1000)
        a.wait_all(ds=True)
        e("s_barrier")
        self.stamp("p3_%d%s_gemm" % (layer, "ab"[sb]))
        for n in range(6):
            a.ds(("er", n), "ds_read_b128 %s, v%d offset:%d" % (q(ACC + 24 + 4 * n), vE3r, n * 1024))
        for ct in range(3):
            a.ds(("c3", ct), "ds_read_b128 %s, v%d offset:%d" % (q(AB + 8 * ct), vC3, 64 * ct))
            a.ds(("c3", ct), "ds_read_b128 %s, v%d offset:%d" % (q(AB + 8 * ct + 4), vC3, 384 + 64 * ct))
        if sb == 0:
            self.p3_fetch(layer, 1)
        e("s_and_b32 s%d, s%d, 1" % (sA1, sW))
        e("s_lshl_b32 s%d, s%d, 1" % (sA1, sA1))
        e("s_add_u32 s%d, s%d, s%d" % (sA1, sA1, srt))
        e("s_mul_i32 s%d, s%d, 48" % (sA1, sA1))
        e("s_mul_i32 s%d, s%d, 3" % (sA2, sM))
        e("s_add_u32 s%d, s%d, s%d" % (sA1, sA1, sA2))
        e("s_lshl_b32 s%d, s%d, 10" % (sA1, sA1))
        e("s_add_u32 s%d, s%d, %d" % (sA1, sA1, HB))
        e("s_and_b32 s%d, s%d, 2" % (sA2, sW))
        e("s_lshl_b32 s%d, s%d, 10" % (sA2, sA2))
        e("s_add_u32 s%d, s%d, s%d" % (sA2, sA2, sA1))
        OUT = AB + 24
        for i in range(2):
            ms = self.P3_MS + 2 * i
            for ct in range(3):
                acc = ACC + (i * 3 + ct) * 4
                oth = ACC + 24 + (i * 3 + ct) * 4
                a.wait(ds=[("er", i * 3 + ct), ("c3", ct)])
                for hh in (0, 2):
                    e("v_pk_add_f32 %s, %s, %s" % (p2(acc + hh), p2(acc + hh), p2(oth + hh)))
                for hh in (0, 2):
                    e("v_pk_fma_f32 %s, %s, %s, %s op_sel_hi:[1,0,1] neg_lo:[0,1,0] neg_hi:[0,1,0]" %
                      (p2(acc + hh), p2(AB + 8 * ct + hh), p2(ms), p2(acc + hh)))
                for hh in (0, 2):
                    e("v_pk_fma_f32 %s, %s, %s, %s op_sel:[0,1,0] op_sel_hi:[1,1,1]" %
                      (p2(acc + hh), p2(acc + hh), p2(ms), p2(AB + 8 * ct + 4 + hh)))
                for r in range(4):
                    e("v_max_f32 v%d, 0, v%d" % (acc + r, acc + r))
                for hh in (0, 2):
                    e("v_pk_mul_f32 %s, %s, %s" % (p2(acc + hh), p2(acc + hh), p2(acc + hh)))
                o = OUT + i * 8 + 2 * ct
                e("v_cvt_pk_bf16_f32 v%d, v%d, v%d" % (o, acc, acc + 1))
                e("v_cvt_pk_bf16_f32 v%d, v%d, v%d" % (o + 1, acc + 2, acc + 3))
                if ct == 1:
                    a.vm("st", "buffer_store_dwordx4 %s, v%d, %s, s%d offen" % (q(OUT + i * 8), vL0, sWS, sA2))
                if ct == 2:
                    a.vm("st", "buffer_store_dwordx2 %s, v%d, %s, s%d offen offset:1024" % (p2(o), vHh, sWS, sA1))
            if i == 0:
                e("s_add_u32 s%d, s%d, %d" % (sA1, sA1, 48 * KB))
                e("s_add_u32 s%d, s%d, %d" % (sA2, sA2, 48 * KB))
        if sb == 1:
            self.publish(6 * layer + 5, ["st"])
        self.stamp("p3_%d%s_end" % (layer, "ab"[sb]))

    def build(self):
        a, e = self.a, self.e
        a.label("main_kernel")
        self.prologue()
        for layer in range(2):
            self.queue_b(("WO", layer), sWOb, 25)
            self.queue_b(("W1", layer), sW1b, 30)
            self.queue_b(("W2", layer), sW2b, 60)
        for layer in range(2):
            if layer == 1:
                self.poll(6, sMaskA)
                self.dma_main(X2, sRtA, "A")
                self.stats_main(ST2, sRtA)
            self.p1(layer, 0)
            self.p1(layer, 1)
            self.pk(layer, 2)
            self.p3(layer, 0)
            self.p3(layer, 1, deferred=lambda: self.publish(6 * layer + 4, ["st"]))
            self.pk(layer, 4)
        if self.stamps:
            e("s_lshl_b32 s%d, s2, 2" % sA0)
            e("s_add_u32 s%d, s%d, s%d" % (sA0, sA0, sW))
            e("s_lshl_b32 s%d, s%d, 8" % (sA0, sA0))
            e("s_add_u32 s%d, s%d, %d" % (sA0, sA0, DBG))
            e("buffer_store_dword v%d, v%d, %s, s%d offen" % (vStamp, vFl, sWS, sA0))
        e("s_endpgm")
        a.label("main_end")
        return a.text()
```

```python
from asmlib import Asm
from layout import *

PREP_WGS = 480
TAB_WQ, TAB_W1, TAB_WO, TAB_W2 = 0, 480, 864, 1024
TAB_N = 1184


def table_words():
    t = []
    for c in range(480):
        t += list(wq_col(4 * c))
    for c in range(384):
        t += list(w1_col(4 * c))
    for c in range(160):
        t += list(wo_col(4 * c))
    for c in range(160):
        t += list(w2_col(4 * c))
    return t


def gen_prep(main_label, main_end_label):
    a = Asm()
    e = a.e
    a.label("prep_kernel")
    e("s_cmp_ge_u32 s2, %d" % PREP_WGS)
    e("s_cbranch_scc1 prep_done")
    e("s_load_dwordx16 s[16:31], s[0:1], 0x0")
    e("s_load_dwordx2 s[32:33], s[0:1], 0x50")
    e("v_lshrrev_b32 v1, 6, v0")
    e("v_and_b32 v2, 63, v0")
    e("v_readfirstlane_b32 s3, v1")
    e("s_getpc_b64 s[34:35]")
    a.label("prep_pc")
    e("s_mov_b32 s6, %d" % WS_USED)
    e("s_mov_b32 s7, 0x20000")
    e("s_mov_b32 s11, 0x20000")
    e("s_mov_b32 s15, 0x20000")
    e("s_mov_b32 s39, 0x20000")
    e("s_mov_b32 s60, 0x3f803f80")
    e("s_add_u32 s12, s34, prep_table-prep_pc")
    e("s_addc_u32 s13, s35, 0")
    e("s_mov_b32 s14, %d" % (TAB_N * 8))
    e("s_add_u32 s36, s34, %s-prep_pc" % main_label)
    e("s_addc_u32 s37, s35, 0")
    e("s_mov_b32 s38, %s-%s" % (main_end_label, main_label))
    e("s_lshr_b32 s40, s2, 4")
    e("s_cmp_lg_u32 s40, 8")
    e("s_cbranch_scc1 prep_nopf")
    e("s_bfe_u32 s40, s2, 0x10003")
    e("s_mul_i32 s40, s40, 40960")
    e("v_lshlrev_b32 v3, 7, v0")
    e("buffer_load_dword v63, v3, s[36:39], s40 offen")
    a.label("prep_nopf")
    e("s_waitcnt lgkmcnt(0)")
    e("s_mov_b32 s4, s32")
    e("s_mov_b32 s5, s33")
    e("s_cmp_lt_u32 s2, 128")
    e("s_cbranch_scc1 prep_x")
    e("s_cmp_lt_u32 s2, 248")
    e("s_cbranch_scc1 prep_wq")
    e("s_cmp_lt_u32 s2, 344")
    e("s_cbranch_scc1 prep_w1")
    e("s_cmp_lt_u32 s2, 384")
    e("s_cbranch_scc1 prep_wo")

    def lin10(start):
        e("s_sub_u32 s44, s2, %d" % start)
        e("s_mul_i32 s44, s44, 5")
        e("s_add_u32 s44, s44, s3")
        e("s_mul_i32 s55, s44, 6554")
        e("s_lshr_b32 s55, s55, 16")
        e("s_mul_i32 s45, s55, 10")
        e("s_sub_u32 s54, s44, s45")
        e("s_mov_b32 s57, -1")
        e("s_mov_b32 s52, %d" % (10 * KB))
        e("s_mov_b32 s53, %d" % (5 * KB))
        e("s_mov_b32 s40, 1280")

    def blk(start, ncb, magic):
        e("s_sub_u32 s44, s2, %d" % start)
        e("s_mul_i32 s57, s44, %d" % magic)
        e("s_lshr_b32 s57, s57, 16")
        e("s_mul_i32 s45, s57, %d" % ncb)
        e("s_sub_u32 s54, s44, s45")
        e("s_mul_i32 s55, s57, 5")
        e("s_add_u32 s55, s55, s3")

    def nat():
        e("s_mov_b32 s41, 8")
        e("s_mov_b32 s42, 0")
        e("s_mov_b32 s43, 4")

    e("s_mov_b32 s8, s28")
    e("s_mov_b32 s9, s29")
    e("s_mov_b32 s10, %d" % (F * D * 2))
    lin10(384)
    nat()
    e("s_mov_b32 s56, %d" % TAB_W2)
    e("s_cmp_eq_u32 s55, 0")
    e("s_cselect_b32 s58, 1, 0")
    e("s_mov_b32 s59, 0")
    e("s_mov_b32 s62, s30")
    e("s_mov_b32 s63, s31")
    e("s_mov_b32 s61, %d" % (D * 2))
    e("s_branch prep_w")
    a.label("prep_wo")
    e("s_mov_b32 s8, s20")
    e("s_mov_b32 s9, s21")
    e("s_mov_b32 s10, %d" % (D * D * 2))
    lin10(344)
    e("s_mov_b32 s41, 4")
    e("s_mov_b32 s42, 20")
    e("s_mov_b32 s43, 20")
    e("s_mov_b32 s56, %d" % TAB_WO)
    e("s_mov_b32 s58, 0")
    e("s_mov_b32 s59, 0")
    e("s_mov_b32 s62, s30")
    e("s_mov_b32 s63, s31")
    e("s_mov_b32 s61, %d" % (D * 2))
    e("s_branch prep_w")
    a.label("prep_w1")
    e("s_mov_b32 s8, s24")
    e("s_mov_b32 s9, s25")
    e("s_mov_b32 s10, %d" % (D * F * 2))
    blk(248, 24, 2731)
    nat()
    e("s_mov_b32 s40, %d" % (F * 2))
    e("s_mov_b32 s52, %d" % (3 * KB))
    e("s_mov_b32 s53, %d" % (30 * KB))
    e("s_mov_b32 s56, %d" % TAB_W1)
    e("s_cmp_eq_u32 s55, 0")
    e("s_cselect_b32 s58, 1, 0")
    e("s_mov_b32 s59, 384")
    e("s_mov_b32 s62, s26")
    e("s_mov_b32 s63, s27")
    e("s_mov_b32 s61, %d" % (F * 2))
    e("s_branch prep_w")
    a.label("prep_wq")
    e("s_mov_b32 s8, s18")
    e("s_mov_b32 s9, s19")
    e("s_mov_b32 s10, %d" % (D * 3 * D * 2))
    blk(128, 30, 2185)
    nat()
    e("s_mov_b32 s40, %d" % (3 * D * 2))
    e("s_mov_b32 s52, %d" % (4 * KB))
    e("s_mov_b32 s53, %d" % (2 * KB))
    e("s_mov_b32 s56, %d" % TAB_WQ)
    e("s_mov_b32 s58, 0")
    e("s_mov_b32 s59, 0")
    e("s_mov_b32 s62, s30")
    e("s_mov_b32 s63, s31")
    e("s_mov_b32 s61, %d" % (D * 2))

    a.label("prep_w")
    e("v_and_b32 v3, 31, v2")
    e("v_lshrrev_b32 v4, 5, v2")
    e("s_lshl_b32 s44, s55, 2")
    e("v_add_u32 v5, s44, v4")
    e("v_add_u32 v6, 2, v5")
    e("s_lshl_b32 s45, s54, 7")
    e("v_lshl_add_u32 v7, v3, 2, s45")
    for vq, vo in ((5, 8), (6, 9)):
        e("v_mul_u32_u24 v10, 205, v%d" % vq)
        e("v_lshrrev_b32 v10, 10, v10")
        e("v_mul_u32_u24 v10, s42, v10")
        e("v_mad_u32_u24 v10, v%d, s41, v10" % vq)
        e("v_mad_u32_u24 v%d, v10, s40, v7" % vo)
    e("s_mov_b32 s64, 0")
    e("s_mov_b32 s65, s40")
    e("s_lshl_b32 s66, s40, 1")
    e("s_add_u32 s67, s66, s40")
    e("s_mul_i32 s68, s40, s43")
    e("s_add_u32 s69, s68, s65")
    e("s_add_u32 s70, s68, s66")
    e("s_add_u32 s71, s68, s67")
    for gg in range(2):
        for j in range(8):
            a.vm("w", "buffer_load_dword v%d, v%d, s[8:11], s%d offen" % (16 + gg * 8 + j, 8 + gg, 64 + j))
    e("s_lshl_b32 s45, s54, 4")
    e("s_add_u32 s45, s45, s56")
    e("s_lshl_b32 s45, s45, 3")
    e("v_lshrrev_b32 v10, 1, v3")
    e("v_lshlrev_b32 v10, 3, v10")
    a.vm("t", "buffer_load_dwordx2 v[12:13], v10, s[12:15], s45 offen")
    e("s_lshr_b32 s46, s55, 1")
    e("s_mul_i32 s46, s46, s52")
    e("s_and_b32 s47, s55, 1")
    e("s_mul_i32 s47, s47, s53")
    e("s_add_u32 s46, s46, s47")
    e("s_mov_b32 s48, 0x05040100")
    e("s_mov_b32 s49, 0x07060302")
    e("v_and_b32 v11, 1, v3")
    e("v_lshlrev_b32 v11, 5, v11")
    e("v_lshl_add_u32 v11, v4, 8, v11")
    e("v_lshl_add_u32 v14, v3, 1, v4")
    e("v_and_b32 v15, 3, v14")
    e("v_lshlrev_b32 v15, 2, v15")
    a.wait(vm="t")
    e("v_add_u32 v11, v11, v12")
    e("v_add_u32 v15, v15, v13")
    for gg in range(2):
        for hi in range(2):
            for i in range(4):
                src = 16 + gg * 8 + 2 * i
                e("v_perm_b32 v%d, v%d, v%d, s%d" % (32 + (gg * 2 + hi) * 4 + i, src + 1, src, 48 + hi))
            r = 32 + (gg * 2 + hi) * 4
            a.vm("st", "buffer_store_dwordx4 v[%d:%d], v11, s[4:7], s46 offen offset:%d" % (r, r + 3, gg * 512 + hi * 16))
    e("s_cmp_eq_u32 s58, 0")
    e("s_cbranch_scc1 prep_nobias")
    e("s_mov_b32 s8, s62")
    e("s_mov_b32 s9, s63")
    e("s_mov_b32 s10, s61")
    e("s_lshl_b32 s45, s54, 7")
    e("v_lshlrev_b32 v50, 1, v14")
    e("buffer_load_ushort v51, v50, s[8:11], s45 offen")
    e("s_waitcnt vmcnt(0)")
    e("v_lshlrev_b32 v51, 16, v51")
    e("buffer_store_dword v51, v15, s[4:7], s59 offen")
    a.label("prep_nobias")
    e("s_cmp_lt_i32 s57, 0")
    e("s_cbranch_scc1 prep_done")
    e("v_mov_b32 v48, 0")
    e("v_mov_b32 v49, 0")
    for gg in range(2):
        for i in range(4):
            for hi in range(2):
                e("v_dot2_f32_bf16 v%d, v%d, s60, v%d" % (48 + hi, 32 + (gg * 2 + hi) * 4 + i, 48 + hi))
    e("v_permlane32_swap_b32 v48, v49")
    e("v_add_f32 v48, v48, v49")
    e("v_lshlrev_b32 v50, 2, v0")
    e("ds_write_b32 v50, v48")
    e("s_waitcnt lgkmcnt(0)")
    e("s_barrier")
    e("s_cmp_lg_u32 s3, 0")
    e("s_cbranch_scc1 prep_done")
    for k in range(1, 5):
        e("ds_read_b32 v%d, v50 offset:%d" % (51 + k, 256 * k))
    e("s_waitcnt lgkmcnt(0)")
    e("v_add_f32 v48, v48, v52")
    e("v_add_f32 v53, v53, v54")
    e("v_add_f32 v48, v48, v55")
    e("v_add_f32 v48, v48, v53")
    e("s_lshl_b32 s45, s57, 15")
    e("buffer_store_dword v48, v15, s[4:7], s45 offen")
    e("s_endpgm")

    a.label("prep_x")
    a.vmq = []
    e("s_mov_b32 s8, s16")
    e("s_mov_b32 s9, s17")
    e("s_mov_b32 s10, %d" % (S * D * 2))
    e("v_and_b32 v3, 15, v2")
    e("v_lshrrev_b32 v4, 4, v2")
    e("v_mul_u32_u24 v5, 1280, v3")
    e("v_lshl_add_u32 v5, v4, 4, v5")
    e("s_mul_i32 s44, s2, %d" % (16 * 1280))
    e("s_lshl_b32 s45, s3, 8")
    e("s_add_u32 s44, s44, s45")
    for k in range(4):
        a.vm("x%d" % k, "buffer_load_dwordx4 v[%d:%d], v5, s[8:11], s44 offen offset:%d" % (16 + 4 * k, 19 + 4 * k, 64 * k))
    e("v_lshlrev_b32 v6, 4, v2")
    e("s_mul_i32 s46, s2, %d" % (20 * KB))
    e("s_lshl_b32 s45, s3, 12")
    e("s_add_u32 s46, s46, s45")
    e("s_add_u32 s46, s46, %d" % X0)
    e("v_mov_b32 v48, 0")
    e("v_mov_b32 v49, 0")
    e("v_lshlrev_b32 v7, 2, v0")
    e("s_lshl_b32 s47, s2, 7")
    e("s_add_u32 s47, s47, %d" % FL)
    e("v_cmp_gt_u32 vcc, 32, v0")
    e("s_and_saveexec_b64 s[50:51], vcc")
    e("s_cbranch_execz prep_nz")
    e("buffer_store_dword v48, v7, s[4:7], s47 offen")
    a.label("prep_nz")
    e("s_mov_b64 exec, s[50:51]")
    e("s_waitcnt vmcnt(0)")
    a.vmq = []
    for k in range(4):
        e("buffer_store_dwordx4 v[%d:%d], v6, s[4:7], s46 offen offset:%d" % (16 + 4 * k, 19 + 4 * k, 1024 * k))
    for r in range(16, 32):
        e("v_dot2_f32_bf16 v48, v%d, s60, v48" % r)
        e("v_dot2_f32_bf16 v49, v%d, v%d, v49" % (r, r))
    e("v_permlane16_swap_b32 v48, v49")
    e("v_add_f32 v48, v48, v49")
    e("v_mov_b32 v49, v48")
    e("v_permlane32_swap_b32 v48, v49")
    e("v_add_f32 v48, v48, v49")
    e("s_min_u32 s45, s3, 2")
    e("s_add_u32 s45, s45, 5")
    e("v_mov_b32 v8, s3")
    e("v_mov_b32 v9, s45")
    e("v_cmp_gt_u32 vcc, 32, v2")
    e("v_cndmask_b32 v8, v9, v8, vcc")
    e("v_cndmask_b32 v48, 0, v48, vcc")
    e("v_lshrrev_b32 v9, 1, v8")
    e("v_lshlrev_b32 v9, 8, v9")
    e("v_and_b32 v8, 1, v8")
    e("v_lshl_add_u32 v9, v8, 3, v9")
    e("v_lshl_add_u32 v9, v3, 4, v9")
    e("v_and_b32 v8, 1, v4")
    e("v_lshl_add_u32 v9, v8, 2, v9")
    e("s_lshl_b32 s45, s2, 10")
    e("s_add_u32 s45, s45, %d" % ST0)
    e("buffer_store_dword v48, v9, s[4:7], s45 offen")
    a.label("prep_done")
    e("s_endpgm")
    a.raw(".p2align 3")
    a.raw(".type prep_table,@object")
    a.label("prep_table")
    t = table_words()
    for i in range(0, len(t), 8):
        a.raw("    .long " + ", ".join("0x%x" % v for v in t[i:i + 8]))
    a.raw(".size prep_table, %d" % (len(t) * 4))
    return a.text()
```

```python
import sys, os, json
sys.path.insert(0, os.path.dirname(os.path.abspath(__file__)))
from prep import gen_prep, PREP_WGS
from main import Gen, LDS_BYTES

NAME = "interleave_layers__sliding_local_dilated__dense_activation_squared_relu__prompt"

def kd(name, vgpr, accum, sgpr):
    return f""".p2align 6
.amdhsa_kernel {name}
  .amdhsa_next_free_vgpr {vgpr}
  .amdhsa_next_free_sgpr {sgpr}
  .amdhsa_accum_offset {accum}
  .amdhsa_group_segment_fixed_size 0
  .amdhsa_kernarg_size 88
  .amdhsa_user_sgpr_count 2
  .amdhsa_user_sgpr_kernarg_segment_ptr 1
  .amdhsa_system_sgpr_workgroup_id_x 1
  .amdhsa_float_denorm_mode_32 3
  .amdhsa_float_denorm_mode_16_64 3
.end_amdhsa_kernel
"""

def build(stamps=False, opts=None):
    g = Gen(stamps=stamps, opts=opts)
    main = g.build()
    prep = gen_prep("main_kernel", "main_end")
    hdr = open(os.path.join(os.path.dirname(os.path.abspath(__file__)), "..", "cdna_kernels", NAME + ".s.ref")).read().splitlines()
    hdr = [l for l in hdr[:12] if l.startswith(";") and "@launch" not in l]
    out = "\n".join(hdr) + "\n"
    out += "; Generated by a hand-written generator (gen/*.py): prep kernel + persistent main kernel.\n"
    out += f"; @launch kernel=prep_kernel grid=({PREP_WGS},1,1) block=(320,1,1) lds=1280\n"
    out += f"; @launch kernel=main_kernel grid=(256,1,1) block=(256,1,1) lds={LDS_BYTES}\n"
    out += '.amdgcn_target "amdgcn-amd-amdhsa--gfx950"\n.text\n'
    out += ".globl prep_kernel\n.p2align 8\n.type prep_kernel,@function\n" + prep
    out += ".globl main_kernel\n.p2align 8\n.type main_kernel,@function\n" + main
    out += '.section .rodata,"a"\n' + kd("prep_kernel", 64, 64, 80) + kd("main_kernel", 512, 256, 96)
    return out, g

if __name__ == "__main__":
    stamps = "--stamps" in sys.argv
    opts = {}
    for x in sys.argv[1:]:
        if x.startswith("--opt="):
            k, _, v = x[6:].partition(":")
            opts[k] = int(v) if v else 1
    outp = [x for x in sys.argv[1:] if not x.startswith("--")]
    path = outp[0] if outp else os.path.join(os.path.dirname(os.path.abspath(__file__)), "..", "cdna_kernels", NAME + ".s")
    txt, g = build(stamps, opts)
    open(path, "w").write(txt)
    if stamps:
        json.dump(g.stamp_names, open(path + ".stamps.json", "w"))
    print("wrote", path, "main instrs", g.a.nins, "nops", g.a.nnops, "left B queue", len(g.bq))
```

```python
KB = 1024
S, D, F = 2048, 640, 1536

_off = 0


def _alloc(n, align=4096):
    global _off
    _off = (_off + align - 1) // align * align
    r = _off
    _off += n
    return r


WQ = _alloc(16 * 4 * 20 * 2 * KB)
WO = _alloc(8 * 4 * 5 * 5 * KB)
W1 = _alloc(16 * 4 * 10 * 3 * KB)
W2 = _alloc(8 * 4 * 12 * 5 * KB)
X0 = _alloc(128 * 20 * KB)
X1 = X2 = X0
HB = _alloc(128 * 48 * KB)
OB = HB
ST0 = _alloc(128 * KB)
ST1 = ST2 = ST0
HX = _alloc(32 * 20 * KB)
HS = _alloc(32 * KB)
HX0 = _alloc(32 * 20 * KB)
HS0 = _alloc(32 * KB)
CG = _alloc(4 * 16 * 2 * KB)
CB2 = _alloc(8 * 512)
FL = _alloc(16 * KB)
FLAG = FL
XT = FL + 4096
HFL = FL + 8192
DBG = _alloc(1024 * 256)
WS_USED = _alloc(0)


def wq_col(n):
    region, nn = divmod(n, 640)
    m, f = divmod(nn, 40)
    e = {0: 40 + f, 1: f, 2: 80 + f}[region]
    t8, slot = e >> 4, e & 15
    w, t = t8 >> 1, t8 & 1
    return WQ + (m * 4 + w) * 40 * KB + t * KB + slot * 16, CG + m * 2048 + e * 4


W1_TILE = {0: (0, 0), 1: (0, 1), 2: (0, 2), 3: (1, 2), 4: (1, 0), 5: (1, 1)}


def w1_col(n):
    m, f = divmod(n, 96)
    p, u = f >> 5, f & 31
    g, h, r = u >> 3, (u >> 2) & 1, u & 3
    ch, ct = W1_TILE[2 * p + h]
    slot = 4 * g + r
    idx = (ch * 3 + ct) * 16 + slot
    return W1 + (m * 4 + ch * 2) * 30 * KB + ct * KB + slot * 16, CG + m * 2048 + (120 + idx) * 4


def x_col(n):
    kx, u = n >> 5, n & 31
    g, h, r = u >> 3, (u >> 2) & 1, u & 3
    uu, v = divmod(kx, 5)
    if v < 2:
        cg, ct = 2 * uu, 2 * v + h
    elif v == 2:
        cg, ct = 2 * uu + h, 4
    else:
        cg, ct = 2 * uu + 1, 2 * (v - 3) + h
    return cg, ct, 4 * g + r


def wo_col(n):
    cg, ct, slot = x_col(n)
    return WO + cg * 100 * KB + ct * KB + slot * 16, 0


def w2_col(n):
    cg, ct, slot = x_col(n)
    return W2 + cg * 240 * KB + ct * KB + slot * 16, CB2 + cg * 512 + (ct * 16 + slot) * 4


def o_feature(q, j):
    m, i = divmod(q, 5)
    return 40 * m + 4 * i + (j & 3) + 20 * (j >> 2)
```

```python
import math
import struct
from asmlib import Asm
from layout import *

L_A = 0
L_HALO = 81920
L_RED = 81920
L_EX = 102400
L_E3 = 102400
L_CT = 143360
LDS_BYTES = 163840
EXS = 248
EXT = 16 * EXS

vL0, vL1, vL2, vAh, vFl = 1, 2, 3, 4, 5
vP3a, vP3b, vXw0, vXw1, vXp, vXc, vXv = 6, 7, 8, 9, 10, 11, 12
vM0, vM1, vM2, vM3 = 13, 14, 15, 16
vE3w, vE3r, vRw1, vRw2, vRw3, vRr = 17, 18, 19, 20, 21, 22
vC1a, vC1b, vC3, vC4, vHalf, vHh, vSt, vOut, vOutH, vStamp = 23, 24, 25, 26, 27, 28, 29, 30, 31, 32
vT0, vT1, vT2 = 33, 34, 35
vRes = 36
vPoll, vXt = 46, 47
vAk = 47
W0 = 48
vHst = W0 + 98
sWS, sOUT = "s[4:7]", "s[8:11]"
sW, sC, sM, sT, sCG, sMode, sSpin = 12, 13, 14, 15, 16, 17, 18
sOnes = 19
sMask16, sMaskA, sMaskB = 20, 22, 24
sFlBase, sFlOwn = 26, 27
sOdd, sPA, sPB, sG0, sPAx, sPBx = 28, 30, 32, 34, 36, 38
sWOb, sW1b, sW2b, sBcur = 40, 41, 42, 43
sRt = 44
sA0, sA1, sA2, sA3 = 48, 49, 50, 51
sTmp2 = 52
sScale, sInv640, sEps, sNeg = 54, 55, 56, 57
sLdsW = 58
sXcc = 59
sStamp = 60
sRtA, sRtB, sRtT = 62, 63, 64
sXk0, sXk1, sXkh = 65, 66, 67
sAll = 68
sMask8 = 70
sMaskX = 72
sD0 = 74
sX1 = 75
sX3 = 76
sPar = 77
sBa, sBb = 78, 79
sHsrc, sHst, sHfl = 80, 81, 82
sWk = 83
sR2 = 84
sR4 = 88
sWQ = 94
sCode = "s[96:99]"
sE0, sE1 = 92, 93


def fbits(x):
    return struct.unpack("<I", struct.pack("<f", x))[0]


def q(r):
    if isinstance(r, int):
        r = ("v", r)
    return "%s[%d:%d]" % (r[0], r[1], r[1] + 3)


def p2(n):
    return "v[%d:%d]" % (n, n + 1)


def sp(n):
    return "s[%d:%d]" % (n, n + 1)


class Gen:
    def __init__(self, stamps=False, opts=None):
        self.a = Asm()
        self.stamps = stamps
        self.nstamp = 0
        self.stamp_names = []
        self.opts = opts or {}
        self.reset_state()

    def reset_state(self):
        self.free = [("a", n) for n in range(160, 256, 4)] + [("v", n) for n in range(252, 172, -4)]
        self.retire = set()
        self.bq = []
        self.breg = {}
        self.bgroup = None
        self.stream = []
        self.credit = 0
        self.period = 72
        self.b_period = None
        self.deadline = {}
        self.now = 0
        self.gap = 0
        self.fcredit = 0
        self.urgent = set()
        self.bissue = {}
        self.log = []

    def opt(self, k, d):
        return self.opts.get(k, d)

    def e(self, t):
        return self.a.e(t)

    def ev(self, t, dt=5):
        self.a.e(t)
        self.tick(dt)

    def stamp(self, name, fine=False):
        if not self.stamps:
            return
        only = self.opts.get("only")
        if only is not None:
            if name != "start" and not name.startswith(only):
                return
        elif fine:
            return
        self.a.wait_all(ds=True)
        self.e("s_memtime %s" % sp(sStamp))
        self.e("s_waitcnt lgkmcnt(0)")
        self.e("v_writelane_b32 v%d, s%d, %d" % (vStamp, sStamp, self.nstamp))
        if self.typ == 0:
            self.stamp_names.append(name)
        self.nstamp += 1

    def rstamp(self, lane):
        if not self.stamps:
            return
        self.a.wait_all(ds=True)
        self.e("s_memrealtime %s" % sp(sStamp))
        self.e("s_waitcnt lgkmcnt(0)")
        self.e("v_writelane_b32 v%d, s%d, %d" % (vStamp, sStamp, lane))

    def mfma(self, d, wa, xb, first=False):
        self.e("v_mfma_f32_16x16x32_bf16 %s, %s, %s, %s" % (q(d), q(wa), q(xb), "0" if first else q(d)))

    def voff(self, i):
        return (vL0, vL1, vL2)[i >> 2], (i & 3) * 1024

    def b_ready(self):
        return bool(self.bq and self.free and (self.b_stop is None or self.bq[0][0][0] == self.b_stop))

    def bcost(self):
        return self.opt("w1cost", 140) if self.bq[0][0][0][0] == "W1" else self.opt("wcost", 72)

    def tick(self, dt):
        self.now += dt
        period = self.period
        if self.stream and self.stream[0][0] in self.urgent:
            period = self.opt("uper", 32)
        self.credit = min(self.credit + dt, period + 16)
        self.fcredit = min(self.fcredit + dt, self.opt("fcap", 900))
        if self.credit < period:
            return False
        use_b = False
        if self.b_ready():
            db = self.deadline.get(self.bq[0][0])
            if db is not None:
                use_b = (not self.stream) or db < self.deadline.get(self.stream[0][0], -1)
            else:
                use_b = self.b_period is not None and not self.stream and self.fcredit >= self.bcost()
        if use_b:
            self.bpref(1)
        elif self.stream:
            self.stream.pop(0)[1]()
        else:
            return False
        self.credit -= period
        return True

    def flush(self, upto=None):
        if upto is None:
            n = len(self.stream)
        else:
            n = max([i + 1 for i, (t, _) in enumerate(self.stream) if t in upto] or [0])
        for _ in range(n):
            self.stream.pop(0)[1]()
        if n:
            self.credit = 0

    def vwait(self, tags):
        self.flush(upto=tags)
        self.a.wait(vm=tags)

    def queue_b(self, name, base, n):
        self.bq += [((name, i), base, i) for i in range(n)]

    def bpref(self, n=1):
        done = 0
        while done < n and self.bq and self.free:
            if self.b_stop is not None and self.bq[0][0][0] != self.b_stop:
                break
            self.fcredit = max(self.fcredit - self.bcost(), -400)
            key, base, i = self.bq.pop(0)
            grp = (base, i // 12)
            if self.bgroup != grp:
                self.e("s_add_u32 s%d, s%d, %d" % (sBcur, base, (i // 12) * 12288))
                self.bgroup = grp
            r = self.free.pop(0)
            self.breg[key] = r
            self.bissue[key] = self.now
            vo, imm = self.voff(i % 12)
            self.a.vm(key, "buffer_load_dwordx4 %s, v%d, %s, s%d offen offset:%d" % (q(r), vo, sWS, sBcur, imm))
            done += 1
        return done

    def bget(self, key):
        while key not in self.breg:
            assert self.bpref(1), "no free register for %s" % (key,)
        if key in self.bissue:
            self.log.append((key, self.now - self.bissue.pop(key)))
        self.a.wait(vm=[key])
        return self.breg[key]

    def bfree(self, key):
        r = self.breg.pop(key)
        if r not in self.retire:
            self.free.append(r)

    LEND = [("v", W0 + 108 + 4 * i) for i in range(5)]

    def lend(self):
        self.retire = set()
        self.free = self.LEND + self.free

    def unlend(self):
        self.retire = set(self.LEND)
        self.free = [r for r in self.free if r not in self.retire]

    def poll_issue(self, soff=sFlBase):
        self.a.vm("poll", "buffer_load_dword v%d, v%d, %s, s%d offen sc1" % (vPoll, vFl, sWS, soff))

    def poll_check(self, target, mask, soff=sFlBase, acquire=True):
        a = self.a
        lp, dn = a.newlabel("poll"), a.newlabel("polld")
        a.wait(vm=["poll"])
        a.label(lp)
        self.e("v_cmp_le_u32 vcc, %s, v%d" % (target, vPoll))
        self.e("s_andn2_b64 %s, %s, vcc" % (sp(sTmp2), sp(mask)))
        self.e("s_cbranch_scc0 %s" % dn)
        self.e("buffer_load_dword v%d, v%d, %s, s%d offen sc1" % (vPoll, vFl, sWS, soff))
        self.e("s_sub_u32 s%d, s%d, 1" % (sSpin, sSpin))
        self.e("s_waitcnt vmcnt(0)")
        self.e("s_cbranch_scc0 %s" % lp)
        self.e("s_endpgm")
        a.label(dn)
        if acquire:
            sk = a.newlabel("acq")
            self.e("s_cmp_eq_u32 s%d, 0" % sMode)
            self.e("s_cbranch_scc1 %s" % sk)
            self.e("buffer_inv sc1")
            self.e("s_waitcnt vmcnt(0)")
            a.label(sk)

    def poll(self, target, mask, soff=sFlBase, acquire=True):
        self.poll_issue(soff)
        self.poll_check(target, mask, soff, acquire)

    def publish(self, value, tags=("st",)):
        a = self.a
        a.wait(vm=list(tags))
        fast, dn = a.newlabel("pubf"), a.newlabel("pubd")
        self.e("v_mov_b32 v%d, %d" % (vT0, value))
        self.e("s_mov_b64 exec, 1")
        self.e("s_cmp_eq_u32 s%d, 0" % sMode)
        self.e("s_cbranch_scc1 %s" % fast)
        self.e("buffer_wbl2 sc1")
        self.e("s_waitcnt vmcnt(0)")
        self.e("buffer_store_dword v%d, off, %s, s%d sc1" % (vT0, sWS, sFlOwn))
        self.e("s_branch %s" % dn)
        a.label(fast)
        self.e("buffer_store_dword v%d, off, %s, s%d" % (vT0, sWS, sFlOwn))
        a.label(dn)
        a.vmq.append("flag")
        self.e("s_mov_b64 exec, -1")

    def dma(self, tag, soff, imm=0):
        self.a.vm(tag, "buffer_load_dwordx4 v%d, %s, s%d offen offset:%d sc1 lds" % (vL0, sWS, soff, imm))

    def items_p1(self, xbase, sb, half, tag):
        out = []
        for j in range(5):
            off = half * 40960 + j * 4096

            def f0(j=j, off=off):
                self.e("s_add_u32 s%d, s%d, s%d" % (sE0, (sBa, sBb)[sb], sX1))
                self.e("s_add_u32 m0, s%d, %d" % (sX1, L_A + off))
                self.e("s_add_u32 s%d, s%d, %d" % (sE0, sE0, xbase + off))
                self.dma((tag, half, j), sE0, 0)

            def f1(j=j):
                self.dma((tag, half, j), sE0, 1024)
            out += [((tag, half, j), f0), ((tag, half, j), f1)]
        return out

    def items_halo(self, tag):
        out = []
        for j in range(5):
            def f(j=j):
                self.e("s_add_u32 s%d, s%d, s%d" % (sE1, sHsrc, sWk))
                self.e("s_add_u32 m0, s%d, %d" % (sWk, L_HALO + 4096 * j))
                self.e("s_add_u32 s%d, s%d, %d" % (sE1, sE1, 4096 * j))
                self.dma((tag, j), sE1, 0)
            out.append(((tag, j), f))
        out.append(("SH", lambda: self.a.vm("SH", "buffer_load_dwordx4 %s, v%d, %s, s%d offen sc1" %
                                             (q(self.P1_RAW + 16), vL0, sWS, sHst))))
        return out

    def items_stats1(self, stbase, sb):
        out = []
        for i in range(4):
            def f(i=i):
                if i == 0:
                    self.e("s_lshl_b32 s%d, s%d, 10" % (sD0, (sRtA, sRtB)[sb]))
                    self.e("s_add_u32 s%d, s%d, %d" % (sD0, sD0, stbase))
                self.a.vm("S", "buffer_load_dwordx4 %s, v%d, %s, s%d offen offset:%d sc1" %
                          (q(self.P1_RAW + 4 * i), vL0, sWS, sD0, 1024 * i))
            out.append(("S", f))
        return out

    def items_p3(self, sb, st, tag):
        out = []
        for j in range(5):
            def f0(j=j):
                if st == 0:
                    self.e("s_add_u32 s%d, s%d, s%d" % (sE1, sX3, sPar))
                else:
                    self.e("s_sub_u32 s%d, s%d, s%d" % (sE1, sX3, sPar))
                c = j * 4096 + (1024 if st else 0)
                self.e("s_add_u32 m0, s%d, %d" % (sE1, L_A + c))
                self.e("s_add_u32 s%d, s%d, s%d" % (sE0, sE1, (sBa, sBb)[sb]))
                self.e("s_add_u32 s%d, s%d, %d" % (sE0, sE0, X1 + c))
                self.dma((tag, st, j), sE0, 0)

            def f1(j=j):
                self.dma((tag, st, j), sE0, 2048)
            out += [((tag, st, j), f0), ((tag, st, j), f1)]
        return out

    def items_stats3(self, sb):
        out = []
        for i in range(2):
            def f(i=i):
                if i == 0:
                    self.e("s_and_b32 s%d, s%d, 1" % (sD0, sW))
                    self.e("s_lshl_b32 s%d, s%d, 1" % (sD0, sD0))
                    self.e("s_add_u32 s%d, s%d, s%d" % (sD0, sD0, (sRtA, sRtB)[sb]))
                    self.e("s_lshl_b32 s%d, s%d, 10" % (sD0, sD0))
                    self.e("s_add_u32 s%d, s%d, %d" % (sD0, sD0, ST1))
                self.a.vm("S3", "buffer_load_dwordx4 %s, v%d, %s, s%d offen offset:%d sc1" %
                          (q(self.P3_RAW + 4 * i), vL0, sWS, sD0, 1024 * i))
            out.append(("S3", f))
        return out

    def pk_order(self, is4):
        NK = 12 if is4 else 5
        head = NK - 4 if is4 else self.opt("p2head", 0)
        order = [(i, k) for k in range(head) for i in (1, 2, 3, 0)]
        if head >= 2:
            order.remove((0, 0))
            order.insert(order.index((0, 1)), (0, 0))
        order += [(i, k) for i in (1, 2, 3, 0) for k in range(head, NK)]
        return order

    def item_pk(self, is4, n):
        i, k = self.pk_order(is4)[n]

        def f():
            self.e("s_add_u32 m0, s%d, %d" % (sX3, L_A + (n % 20) * 1024))
            self.e("s_add_u32 s%d, s%d, %d" % (sE0, (sR4 if is4 else sR2) + i, (HB if is4 else OB) + k * 1024))
            self.dma(("Ak", n), sE0, 0)
        return (("Ak", n), f)

    def item_touch(self, nlines, mstride):
        def f():
            e = self.e
            e("v_lshrrev_b32 v%d, 2, v%d" % (vT0, vFl))
            e("v_and_b32 v%d, 31, v%d" % (vT1, vT0))
            e("v_min_u32 v%d, %d, v%d" % (vT1, nlines - 1, vT1))
            e("v_lshlrev_b32 v%d, 7, v%d" % (vT1, vT1))
            e("v_lshrrev_b32 v%d, 5, v%d" % (vT0, vT0))
            e("s_mov_b32 s%d, %d" % (sD0, 64 * 48 * KB))
            e("v_mad_u32_u24 v%d, v%d, s%d, v%d" % (vT1, vT0, sD0, vT1))
            e("s_add_u32 s%d, s%d, s%d" % (sD0, sRtA, sW))
            e("s_mul_i32 s%d, s%d, %d" % (sD0, sD0, 48 * KB))
            e("s_mul_i32 s%d, s%d, %d" % (sTmp2, sM, mstride))
            e("s_add_u32 s%d, s%d, s%d" % (sD0, sD0, sTmp2))
            e("s_add_u32 s%d, s%d, %d" % (sD0, sD0, HB))
            self.a.vm("touch", "buffer_load_dword v0, v%d, %s, s%d offen" % (vT1, sWS, sD0))
        return ("touch", f)

    def item_code(self):
        def f():
            e = self.e
            e("s_lshl_b32 s%d, s%d, 2" % (sD0, sCG))
            e("s_add_u32 s%d, s%d, s%d" % (sD0, sD0, sW))
            e("s_lshl_b32 s%d, s%d, 11" % (sD0, sD0))
            e("v_lshlrev_b32 v%d, 5, v%d" % (vT1, vFl))
            e("v_and_b32 v%d, 0x780, v%d" % (vT1, vT1))
            self.a.vm("touch", "buffer_load_dword v0, v%d, %s, s%d offen" % (vT1, sCode, sD0))
        return ("touch", f)

    def halo_src(self, layer, sb):
        e = self.e
        srt = (sRtA, sRtB)[sb]
        e("s_lshr_b32 s%d, s%d, 2" % (sHst, srt))
        e("s_sub_u32 s%d, s%d, 1" % (sHst, sHst))
        e("s_max_i32 s%d, s%d, 0" % (sHst, sHst))
        if layer == 0:
            bx, bs = HX0, HS0
        else:
            e("s_lshl_b32 s%d, s%d, 7" % (sHfl, sHst))
            e("s_add_u32 s%d, s%d, %d" % (sHfl, sHfl, HFL))
            bx, bs = HX, HS
        e("s_mul_i32 s%d, s%d, %d" % (sHsrc, sHst, 20 * KB))
        e("s_add_u32 s%d, s%d, %d" % (sHsrc, sHsrc, bx))
        e("s_lshl_b32 s%d, s%d, 10" % (sHst, sHst))
        e("s_add_u32 s%d, s%d, %d" % (sHst, sHst, bs))

    def stats_ops(self, raw, dst):
        r = raw
        return [
            "v_add_f32 v%d, v%d, v%d" % (r, r, r + 2),
            "v_add_f32 v%d, v%d, v%d" % (r + 1, r + 1, r + 3),
            "v_permlane16_swap_b32 v%d, v%d" % (r, r + 1),
            "v_add_f32 v%d, v%d, v%d" % (r, r, r + 1),
            "v_mov_b32 v%d, v%d" % (r + 1, r),
            "v_permlane32_swap_b32 v%d, v%d" % (r, r + 1),
            "v_add_f32 v%d, v%d, v%d" % (r, r, r + 1),
            "v_mov_b32 v%d, v%d" % (r + 1, r),
            "v_permlane16_swap_b32 v%d, v%d" % (r, r + 1),
            "v_mul_f32 v%d, s%d, v%d" % (dst, sInv640, r),
            "v_mul_f32 v%d, s%d, v%d" % (r + 1, sInv640, r + 1),
            "v_fma_f32 v%d, -v%d, v%d, v%d" % (r + 1, dst, dst, r + 1),
            "v_max_f32 v%d, 0, v%d" % (r + 1, r + 1),
            "v_add_f32 v%d, s%d, v%d" % (r + 1, sEps, r + 1),
            "v_rsq_f32 v%d, v%d" % (dst + 1, r + 1),
        ]

    @staticmethod
    def zipops(lists):
        out = []
        for k in range(max(len(x) for x in lists)):
            out += [x[k] for x in lists if k < len(x)]
        return out

    def unit_loop(self, n, read, compute, look, pre_read=None, pre_unit=None, fill=2, wait_every=1, name="", every=4):
        a = self.a
        pre_read = pre_read or {}
        pre_unit = pre_unit or {}

        def rd(u):
            if u in pre_read:
                pre_read[u]()
            a.ds(("U", u), read(u))

        for u in range(min(look, n)):
            rd(u)
        for u in range(n):
            if u % every == 0:
                self.stamp("%s_u%d" % (name, u), fine=True)
            if u in pre_unit:
                pre_unit[u]()
            ms = compute(u)
            if u % wait_every == 0:
                a.wait(ds=[("U", min(u + wait_every - 1, n - 1))])
            budget = fill
            for j, m in enumerate(ms):
                m()
                if j == 0 and u + look < n:
                    rd(u + look)
                if self.tick(16):
                    budget -= 1
                k = (budget + (len(ms) - 1 - j)) // (len(ms) - j) if budget > 0 else 0
                if self.gap > 0:
                    self.gap -= 1
                    k = 0
                for _ in range(k):
                    if self.bg:
                        x = self.bg.pop(0)
                        if isinstance(x, int):
                            self.gap = x
                            break
                        x() if callable(x) else self.e(x)
                        budget -= 1

    def drain_bg(self):
        self.gap = 0
        while self.bg:
            x = self.bg.pop(0)
            if isinstance(x, int):
                continue
            x() if callable(x) else self.ev(x)

    def prologue(self):
        a, e, ev = self.a, self.e, self.ev
        e("s_cmp_ge_u32 s2, 256")
        e("s_cbranch_scc0 main_go")
        e("s_endpgm")
        a.label("main_go")
        e("s_load_dwordx2 s[4:5], s[0:1], 0x50")
        e("s_load_dwordx2 s[8:9], s[0:1], 0x40")
        e("v_lshrrev_b32 v%d, 6, v0" % vT0)
        e("v_and_b32 v%d, 63, v0" % vT1)
        e("v_readfirstlane_b32 s%d, v%d" % (sW, vT0))
        e("v_lshlrev_b32 v%d, 4, v%d" % (vL0, vT1))
        e("s_mov_b32 s6, %d" % WS_USED)
        e("s_mov_b32 s7, 0x20000")
        e("s_mov_b32 s10, %d" % (S * D * 2))
        e("s_mov_b32 s11, 0x20000")
        e("s_and_b32 s%d, s2, 7" % sC)
        e("s_lshl_b32 s%d, s%d, 1" % (sC, sC))
        e("s_lshr_b32 s%d, s2, 7" % sA0)
        e("s_add_u32 s%d, s%d, s%d" % (sC, sC, sA0))
        e("s_bfe_u32 s%d, s2, 0x40003" % sM)
        e("s_lshl_b32 s%d, s%d, 2" % (sRtA, sC))
        e("s_add_u32 s%d, s%d, 64" % (sRtB, sRtA))
        e("s_mul_i32 s%d, s%d, %d" % (sBa, sRtA, 20 * KB))
        e("s_add_u32 s%d, s%d, %d" % (sBb, sBa, 64 * 20 * KB))
        e("s_lshl_b32 s%d, s%d, 10" % (sWk, sW))
        e("s_and_b32 s%d, s%d, 1" % (sA0, sW))
        e("s_mul_i32 s%d, s%d, 20480" % (sX1, sA0))
        e("s_and_b32 s%d, s%d, 2048" % (sA0, sWk))
        e("s_add_u32 s%d, s%d, s%d" % (sX1, sX1, sA0))
        e("s_lshl_b32 s%d, s%d, 2" % (sA3, sM))
        e("s_add_u32 s%d, s%d, s%d" % (sA3, sA3, sW))
        e("s_mul_i32 s%d, s%d, %d" % (sWQ, sA3, 40 * KB))
        e("s_cmp_eq_u32 s%d, 3" % sW)
        e("s_cselect_b32 s%d, 0xffffff7f, -1" % sA1)
        e("v_and_b32 v%d, s%d, v%d" % (vT2, sA1, vL0))
        self.halo_src(0, 0)
        e("s_waitcnt lgkmcnt(0)")
        self.rstamp(62)
        self.stamp("start")
        assert WQ == 0
        h0, h1, hh = self.items_p1(X0, 0, 0, "A0"), self.items_p1(X0, 0, 1, "A0"), self.items_halo("H0")

        def wq(ks, t):
            def f():
                if t == 0 and ks % 2 == 0 and ks > 0:
                    e("s_add_u32 s%d, s%d, 4096" % (sWQ, sWQ))
                a.vm(("WQ", ks), "buffer_load_dwordx4 %s, v%d, %s, s%d offen offset:%d" %
                     (q(("a", (ks * 2 + t) * 4)), vL0 if t == 0 else vT2, sWS, sWQ, (ks % 2) * 2048 + t * 1024))
            return (("WQ", ks), f)

        def chunk(j):
            return ([wq(4 * j, 0), wq(4 * j, 1)] + h0[2 * j:2 * j + 2] + h1[2 * j:2 * j + 2] + [hh[j]] +
                    [wq(ks, t) for ks in range(4 * j + 1, 4 * j + 4) for t in range(2)])

        self.stream = chunk(0)
        self.flush()
        self.stream = chunk(1)
        self.period = 24
        ev("s_lshr_b32 s%d, s%d, 3" % (sT, sM))
        ev("s_and_b32 s%d, s%d, 7" % (sCG, sM))
        ev("s_mul_i32 s%d, s%d, 20480" % (sX3, sW))
        ev("s_mul_i32 s%d, s%d, %d" % (sW1b, sA3, 30 * KB))
        ev("s_add_u32 s%d, s%d, %d" % (sW1b, sW1b, W1))
        ev("s_lshl_b32 s%d, s%d, 2" % (sFlOwn, sA3))
        ev("v_add_u32 v%d, 4096, v%d" % (vL1, vL0))
        ev("v_add_u32 v%d, 4096, v%d" % (vL2, vL1))
        ev("v_add_u32 v%d, 61440, v%d" % (vAh, vL0))
        ev("v_lshlrev_b32 v%d, 2, v%d" % (vFl, vT1))
        ev("s_lshl_b32 s%d, s%d, 6" % (sRtT, sT))
        ev("s_add_u32 s%d, s%d, s%d" % (sRtT, sRtT, sRtA))
        ev("s_lshr_b32 s%d, s%d, 1" % (sA0, sCG))
        ev("s_mul_i32 s%d, s%d, 5" % (sA0, sA0))
        ev("s_and_b32 s%d, s%d, 1" % (sA1, sCG))
        ev("s_add_u32 s%d, s%d, 2" % (sXkh, sA0))
        ev("s_mul_i32 s%d, s%d, 3" % (sA2, sA1))
        ev("s_add_u32 s%d, s%d, s%d" % (sXk0, sA0, sA2))
        ev("s_lshl_b32 s%d, s%d, 3" % (sA1, sA1))
        ev("v_add_u32 v%d, s%d, v%d" % (vHalf, sA1, vL0))
        ev("s_getreg_b32 s%d, hwreg(HW_REG_XCC_ID)" % sXcc)
        ev("s_and_b32 s%d, s%d, 15" % (sXcc, sXcc))
        ev("s_add_u32 s%d, s%d, 1" % (sXcc, sXcc))
        ev("s_lshl_b32 s%d, s%d, 7" % (sA2, sC))
        ev("s_add_u32 s%d, s%d, %d" % (sXk1, sA2, XT))
        ev("s_lshl_b32 s%d, s%d, 2" % (sA2, sM))
        ev("s_add_u32 s%d, s%d, s%d" % (sA2, sA2, sXk1))
        ev("v_mov_b32 v%d, s%d" % (vXt, sXcc))
        e("s_cmp_lg_u32 s%d, 0" % sW)
        e("s_cbranch_scc1 main_noxt")
        e("s_mov_b64 exec, 1")
        e("buffer_store_dword v%d, off, %s, s%d sc1" % (vXt, sWS, sA2))
        e("s_mov_b64 exec, -1")
        a.label("main_noxt")
        tok, g = W0 + 100, W0 + 101
        ev("v_and_b32 v%d, 15, v%d" % (tok, vT1))
        ev("v_lshrrev_b32 v%d, 4, v%d" % (g, vT1))
        c0 = 176
        ev("s_lshl_b32 s%d, s%d, 11" % (sA0, sM))
        ev("s_add_u32 s%d, s%d, %d" % (sA0, sA0, CG))
        ev("s_lshl_b32 s%d, s%d, 9" % (sA1, sCG))
        ev("s_add_u32 s%d, s%d, %d" % (sA1, sA1, CB2 - 96 * 16))
        ev("v_lshlrev_b32 v%d, 4, v0" % (c0 + 16))
        ev("v_add_u32 v%d, s%d, v%d" % (c0 + 17, sA0, c0 + 16))
        ev("v_add_u32 v%d, s%d, v%d" % (c0 + 18, sA1, c0 + 16))
        ev("v_mov_b32 v%d, 0x7ffffff0" % (c0 + 19))
        ev("v_cmp_gt_u32 vcc, 54, v0")
        ev("v_cndmask_b32 v%d, v%d, v%d, vcc" % (c0 + 20, c0 + 19, c0 + 17))
        ev("v_cmp_gt_u32 vcc, 78, v0")
        ev("v_cndmask_b32 v%d, v%d, v%d, vcc" % (c0 + 17, c0 + 19, c0 + 17))
        ev("v_subrev_u32 v%d, 96, v0" % (c0 + 21))
        ev("v_cmp_gt_u32 vcc, 20, v%d" % (c0 + 21))
        ev("v_cndmask_b32 v%d, v%d, v%d, vcc" % (c0 + 17, c0 + 17, c0 + 18))
        self.flush()
        a.vm("ct", "buffer_load_dwordx4 %s, v%d, %s, 0 offen" % (q(c0), c0 + 17, sWS))
        for k in range(1, 4):
            e("s_mov_b32 s%d, %d" % (sA0, k * 32768))
            a.vm("ct", "buffer_load_dwordx4 %s, v%d, %s, s%d offen" % (q(c0 + 4 * k), c0 + 20, sWS, sA0))
        self.ct_regs = c0
        self.stream = self.items_stats1(ST0, 0) + [hh[5]]
        self.period = 120
        ev("s_mov_b32 s%d, 0x3f803f80" % sOnes)
        ev("s_mov_b32 s%d, 0x%x" % (sScale, fbits(20 ** -0.5 * math.log2(math.e))))
        ev("s_mov_b32 s%d, 0x%x" % (sInv640, fbits(1.0 / 640)))
        ev("s_mov_b32 s%d, 0x%x" % (sEps, fbits(1e-5)))
        ev("s_mov_b32 s%d, 0x%x" % (sNeg, fbits(-1e30)))
        ev("s_mov_b32 s%d, %d" % (sSpin, 400000))
        ev("s_mov_b32 s%d, 0" % sMode)
        ev("s_mov_b64 %s, 0xff" % sp(sMask8))
        ev("s_mov_b64 %s, 0xffff" % sp(sMaskX))
        ev("s_lshl_b32 s%d, s%d, 4" % (sA0, sW))
        ev("s_lshl_b64 %s, %s, s%d" % (sp(sMask16), sp(sMaskX), sA0))
        ev("s_mov_b32 s%d, -1" % sMaskA)
        ev("s_mov_b32 s%d, 0" % (sMaskA + 1))
        ev("s_mov_b32 s%d, 0" % sMaskB)
        ev("s_mov_b32 s%d, -1" % (sMaskB + 1))
        ev("s_lshl_b32 s%d, s%d, 8" % (sFlBase, sC))
        ev("s_add_u32 s%d, s%d, %d" % (sFlBase, sFlBase, FLAG))
        ev("s_add_u32 s%d, s%d, s%d" % (sFlOwn, sFlOwn, sFlBase))
        ev("s_lshl_b32 s%d, s%d, 2" % (sA0, sCG))
        ev("s_add_u32 s%d, s%d, s%d" % (sA0, sA0, sW))
        ev("s_mul_i32 s%d, s%d, %d" % (sWOb, sA0, 25 * KB))
        ev("s_add_u32 s%d, s%d, %d" % (sWOb, sWOb, WO))
        ev("s_mul_i32 s%d, s%d, %d" % (sW2b, sA0, 60 * KB))
        ev("s_add_u32 s%d, s%d, %d" % (sW2b, sW2b, W2))
        e("s_cmp_lt_u32 s%d, 2" % sW)
        ev("s_cselect_b32 s%d, 1024, 0" % sPar)
        ev("s_mul_i32 s%d, s%d, 5" % (sA1, sWk))
        ev("s_mul_i32 s%d, s%d, 12" % (sA2, sWk))
        for i in range(4):
            ev("s_add_u32 s%d, s%d, %d" % (sA0, sW, i))
            ev("s_and_b32 s%d, s%d, 3" % (sA0, sA0))
            ev("s_add_u32 s%d, s%d, s%d" % (sA0, sA0, sRtT))
            ev("s_mul_i32 s%d, s%d, %d" % (sR2 + i, sA0, 48 * KB))
            ev("s_add_u32 s%d, s%d, s%d" % (sR2 + i, sR2 + i, sA1))
            ev("s_mul_i32 s%d, s%d, %d" % (sR4 + i, sA0, 48 * KB))
            ev("s_add_u32 s%d, s%d, s%d" % (sR4 + i, sR4 + i, sA2))
        ev("v_add_u32 v%d, s%d, v%d" % (vAk, sX3, vL0))
        ev("s_and_b32 s%d, s%d, 1" % (sA0, sW))
        ev("s_lshr_b32 s%d, s%d, 1" % (sA1, sW))
        ev("s_mul_i32 s%d, s%d, %d" % (sA2, sA0, 40960 + 1024))
        ev("v_add_u32 v%d, s%d, v%d" % (vP3a, sA2, vL0))
        ev("s_mul_i32 s%d, s%d, %d" % (sA2, sA0, -40960 + 1024))
        ev("s_add_u32 s%d, s%d, 40960" % (sA2, sA2))
        ev("v_add_u32 v%d, s%d, v%d" % (vP3b, sA2, vL0))
        ev("s_lshl_b32 s%d, s%d, 3" % (sA2, sA1))
        ev("v_add_u32 v%d, s%d, v%d" % (vHh, sA2, vL0))
        ev("s_mul_i32 s%d, s%d, 192" % (sA2, sA1))
        ev("s_add_u32 s%d, s%d, %d" % (sA2, sA2, L_CT + 480))
        ev("v_lshl_add_u32 v%d, v%d, 4, s%d" % (vC3, g, sA2))
        ev("s_mov_b32 s%d, %d" % (sA2, L_CT + 1536))
        ev("v_lshl_add_u32 v%d, v%d, 4, s%d" % (vC4, g, sA2))
        ev("s_mul_i32 s%d, s%d, 6144" % (sA2, sW))
        ev("s_add_u32 s%d, s%d, %d" % (sA2, sA2, L_E3))
        ev("v_add_u32 v%d, s%d, v%d" % (vE3w, sA2, vL0))
        ev("s_xor_b32 s%d, s%d, 1" % (sA2, sW))
        ev("s_mul_i32 s%d, s%d, 6144" % (sA2, sA2))
        ev("s_add_u32 s%d, s%d, %d" % (sA2, sA2, L_E3))
        ev("v_add_u32 v%d, s%d, v%d" % (vE3r, sA2, vL0))
        for i, vr in ((1, vRw1), (2, vRw2), (3, vRw3)):
            ev("s_add_u32 s%d, s%d, %d" % (sA2, sW, i))
            ev("s_and_b32 s%d, s%d, 3" % (sA2, sA2))
            ev("s_mul_i32 s%d, s%d, 15360" % (sA2, sA2))
            ev("s_add_u32 s%d, s%d, %d" % (sA2, sA2, L_RED + (i - 1) * 5120))
            ev("v_add_u32 v%d, s%d, v%d" % (vr, sA2, vL0))
        ev("s_mul_i32 s%d, s%d, 15360" % (sA2, sW))
        ev("s_add_u32 s%d, s%d, %d" % (sA2, sA2, L_RED))
        ev("v_add_u32 v%d, s%d, v%d" % (vRr, sA2, vL0))
        t0, t1 = W0 + 102, W0 + 103
        ev("v_mul_u32_u24 v%d, %d, v%d" % (t0, EXS, tok))
        ev("s_lshl_b32 s%d, s%d, 6" % (sA2, sW))
        ev("s_add_u32 s%d, s%d, %d" % (sA0, sA2, L_EX))
        ev("v_lshl_add_u32 v%d, v%d, 3, v%d" % (vXw0, g, t0))
        ev("v_add_u32 v%d, s%d, v%d" % (vXw0, sA0, vXw0))
        e("s_cmp_eq_u32 s%d, 3" % sW)
        ev("s_cselect_b32 s%d, 1, 3" % sA1)
        ev("v_and_b32 v%d, s%d, v%d" % (t1, sA1, g))
        ev("v_lshl_add_u32 v%d, v%d, 3, v%d" % (vXw1, t1, t0))
        ev("s_add_u32 s%d, s%d, 32" % (sA0, sA0))
        ev("v_add_u32 v%d, s%d, v%d" % (vXw1, sA0, vXw1))
        ev("s_lshl_b32 s%d, s%d, 7" % (sA2, sW))
        ev("s_add_u32 s%d, s%d, %d" % (sA0, sA2, L_CT))
        ev("v_lshl_add_u32 v%d, v%d, 4, s%d" % (vC1a, g, sA0))
        ev("s_add_u32 s%d, s%d, 64" % (sA0, sA0))
        ev("v_lshl_add_u32 v%d, v%d, 4, s%d" % (vC1b, t1, sA0))
        ev("s_mul_i32 s%d, s%d, %d" % (sA0, sW, EXT))
        ev("s_add_u32 s%d, s%d, %d" % (sA0, sA0, L_EX))
        ev("v_lshl_add_u32 v%d, v%d, 3, v%d" % (vXp, g, t0))
        ev("v_add_u32 v%d, s%d, v%d" % (vXp, sA0, vXp))
        ev("v_add_u32 v%d, %d, v%d" % (vXc, EXT, vXp))
        ev("v_lshrrev_b32 v%d, 2, v%d" % (t0, vT1))
        ev("v_mul_u32_u24 v%d, %d, v%d" % (t0, EXS, t0))
        ev("v_and_b32 v%d, 3, v%d" % (t1, vT1))
        ev("v_lshl_add_u32 v%d, v%d, 3, v%d" % (vXv, t1, t0))
        ev("s_add_u32 s%d, s%d, 160" % (sA0, sA0))
        ev("v_add_u32 v%d, s%d, v%d" % (vXv, sA0, vXv))
        ev("v_and_b32 v%d, 1, v%d" % (t0, tok))
        ev("v_cmp_eq_u32 %s, 1, v%d" % (sp(sOdd), t0))
        ev("v_lshl_add_u32 v%d, v%d, 2, v%d" % (t0, g, t0))
        ev("v_cmp_gt_u32 %s, v%d, v%d" % (sp(sPA), t0, tok))
        ev("v_add_u32 v%d, 2, v%d" % (t0, t0))
        ev("v_cmp_gt_u32 %s, v%d, v%d" % (sp(sPB), t0, tok))
        ev("v_cmp_eq_u32 %s, 0, v%d" % (sp(sG0), g))
        ev("v_mov_b32 v%d, 0xffff" % t0)
        ev("v_mov_b32 v%d, 0xffff0000" % t1)
        ev("v_cndmask_b32 v%d, v%d, v%d, %s" % (t0, t0, t1, sp(sOdd)))
        ev("v_cndmask_b32 v%d, 0, v%d, %s" % (vM0, t0, sp(sPA)))
        ev("v_cndmask_b32 v%d, v%d, 0, %s" % (vM2, t0, sp(sPA)))
        ev("v_cndmask_b32 v%d, 0, v%d, %s" % (vM1, t0, sp(sPB)))
        ev("v_cndmask_b32 v%d, v%d, 0, %s" % (vM3, t0, sp(sPB)))
        e("s_or_b32 s%d, s%d, s%d" % (sA0, sC, sW))
        e("s_cmp_eq_u32 s%d, 0" % sA0)
        e("s_cselect_b64 %s, %s, 0" % (sp(sPAx), sp(sPA)))
        ev("s_cselect_b64 %s, %s, 0" % (sp(sPBx), sp(sPB)))
        ev("s_lshr_b32 s%d, s%d, 1" % (sA0, sCG))
        ev("s_lshl_b32 s%d, s%d, 8" % (sA0, sA0))
        ev("s_and_b32 s%d, s%d, 1" % (sA1, sCG))
        ev("s_lshl_b32 s%d, s%d, 3" % (sA1, sA1))
        ev("s_add_u32 s%d, s%d, s%d" % (sA0, sA0, sA1))
        ev("v_and_b32 v%d, 1, v%d" % (t0, g))
        ev("v_lshlrev_b32 v%d, 2, v%d" % (t0, t0))
        ev("v_lshl_add_u32 v%d, v%d, 4, v%d" % (vSt, tok, t0))
        ev("v_add_u32 v%d, s%d, v%d" % (vSt, sA0, vSt))
        ev("v_mul_u32_u24 v%d, 1280, v%d" % (t0, tok))
        ev("v_lshl_add_u32 v%d, v%d, 4, v%d" % (vOut, g, t0))
        ev("v_add_u32 v%d, s%d, v%d" % (vOutH, sA1, vOut))

        def res(k):
            def f():
                e("s_add_u32 s%d, s%d, s%d" % (sD0, sRtT, sW))
                e("s_mul_i32 s%d, s%d, 20" % (sD0, sD0))
                e("s_add_u32 s%d, s%d, s%d" % (sD0, sD0, sXk0 if k < 2 else sXkh))
                e("s_lshl_b32 s%d, s%d, 10" % (sD0, sD0))
                e("s_add_u32 s%d, s%d, %d" % (sD0, sD0, X0))
                if k < 2:
                    a.vm("res", "buffer_load_dwordx4 %s, v%d, %s, s%d offen offset:%d" % (q(vRes + 4 * k), vL0, sWS, sD0, 1024 * k))
                else:
                    a.vm("res", "buffer_load_dwordx2 %s, v%d, %s, s%d offen" % (p2(vRes + 8), vHalf, sWS, sD0))
            return ("res", f)
        flagtouch = ("touch", lambda: a.vm("touch", "buffer_load_dword v0, v%d, %s, s%d offen sc1" % (vFl, sWS, sFlBase)))
        self.stream += chunk(2) + chunk(3) + chunk(4) + [self.item_touch(10, 1280), flagtouch, res(0), res(1), res(2)]
        self.period = 24

    P1_ACC = W0
    P1_AB = W0 + 40
    P1_MS = W0 + 88
    P1_CS = W0 + 100
    P1_RAW = W0 + 108

    def p1(self, layer, sb):
        a, e, ev = self.a, self.e, self.ev
        typ = self.typ
        srt = (sRtA, sRtB)[sb]
        first = layer == 0 and sb == 0
        ACC, AB = self.P1_ACC, self.P1_AB
        A, H = "A%d" % sb, "H%d" % sb
        xn, sn = (X0, ST0) if layer == 0 else (X2, ST2)
        self.stamp("p1_%d%s_begin" % (layer, "ab"[sb]))
        passes = [[0, 1, 2, 3, 4]] if first else [[0, 1], [2, 3], [4]]
        units = [(rt, ks) for p in passes for ks in range(20) for rt in p]
        idx = {u: i for i, u in enumerate(units)}
        seen = set()

        def read(u):
            rt, ks = units[u]
            base, off = (vL0, rt * 20480 + ks * 1024) if rt < 3 else (vAh, (rt - 3) * 20480 + ks * 1024)
            return "ds_read_b128 %s, v%d offset:%d" % (q(AB + (u % 12) * 4), base, off)

        def compute(u):
            rt, ks = units[u]
            return [lambda t=t: self.mfma(ACC + (rt * 2 + t) * 4, ("a", (ks * 2 + t) * 4), AB + (u % 12) * 4, first=(ks == 0))
                    for t in range(2)]

        def sync(tags):
            def f():
                self.vwait(tags)
                e("s_barrier")
            return f

        def fix(rt, packed=False):
            ops = []
            ms = self.P1_MS + 2 * rt
            for t in range(2):
                acc = ACC + (rt * 2 + t) * 4
                cs = self.P1_CS + 4 * t
                if packed:
                    for hh in (0, 2):
                        ops.append("v_pk_fma_f32 %s, %s, %s, %s op_sel_hi:[1,0,1] neg_lo:[0,1,0] neg_hi:[0,1,0]" %
                                   (p2(acc + hh), p2(cs + hh), p2(ms), p2(acc + hh)))
                    for hh in (0, 2):
                        ops.append("v_pk_mul_f32 %s, %s, %s op_sel:[0,1] op_sel_hi:[1,1]" % (p2(acc + hh), p2(acc + hh), p2(ms)))
                else:
                    for r in range(4):
                        ops.append("v_fma_f32 v%d, -v%d, v%d, v%d" % (acc + r, cs + r, ms, acc + r))
                    for r in range(4):
                        ops.append("v_mul_f32 v%d, v%d, v%d" % (acc + r, acc + r, ms + 1))
                ops.append("v_cvt_pk_bf16_f32 v%d, v%d, v%d" % (acc, acc, acc + 1))
                ops.append("v_cvt_pk_bf16_f32 v%d, v%d, v%d" % (acc + 1, acc + 2, acc + 3))
                row = 0 if rt == 4 else rt + 1
                ops.append(lambda acc=acc, t=t, row=row: a.ds("xw", "ds_write_b64 v%d, %s offset:%d" %
                                                           ((vXw0, vXw1)[t], p2(acc), row * EXT)))
            return ops

        def cs_read():
            a.ds("cs", "ds_read_b128 %s, v%d" % (q(self.P1_CS), vC1a))
            a.ds("cs", "ds_read_b128 %s, v%d" % (q(self.P1_CS + 4), vC1b))

        stat4 = self.zipops([self.stats_ops(self.P1_RAW + 4 * i, self.P1_MS + 2 * i) for i in range(4)])
        stath = self.stats_ops(self.P1_RAW + 16, self.P1_MS + 8)
        self.bg = []
        pre_read, pre_unit = {}, {}

        def addhook(d, u, f):
            old = d.get(u)
            d[u] = f if old is None else (lambda: (old(), f()))

        if first:
            nb0, nb1 = self.items_p1(X0, 1, 0, "A1"), self.items_p1(X0, 1, 1, "A1")
            nbh = self.items_halo("H1")
            for j in range(5):
                addhook(pre_read, idx[(0, 4 * j)], sync([(A, 0, j), (A, 1, j), (H, j)]))
                if j == 4:
                    addhook(pre_read, idx[(0, 4 * j)], lambda: self.halo_src(0, 1))
                    addhook(pre_read, idx[(0, 4 * j)], lambda: self.stream.extend(
                        [x for jj in range(3) for x in nb0[2 * jj:2 * jj + 2] + nb1[2 * jj:2 * jj + 2] + [nbh[jj]]]))
            for ks in range(20):
                addhook(pre_unit, idx[(0, ks)], lambda ks=ks: self.vwait([("WQ", ks)]))
            addhook(pre_unit, idx[(0, 8)], lambda: self.bg.extend(
                [self.ct_write, lambda: self.vwait(["S", "SH"])] + stat4 + stath))
            addhook(pre_unit, idx[(0, 18)], cs_read)

            def bon():
                self.period = self.opt("per1", 64)
                self.b_period = 1
                self.fcredit = 0
            addhook(pre_unit, idx[(0, 16)], bon)
        else:
            if sb == 0:
                addhook(pre_read, idx[(0, 0)], sync([(A, 0, 0), (A, 0, 1)]))
                addhook(pre_read, idx[(0, 8)], sync([(A, 0, 2), (A, 0, 3), (A, 0, 4)]))
                addhook(pre_read, idx[(2, 0)], sync([(A, 1, j) for j in range(5)]))
                addhook(pre_unit, idx[(0, 12)], lambda: self.poll_issue())
                for f, at in zip(self.pending, ((0, 1), (4, 4), None)):
                    if f is not None and at is not None:
                        addhook(pre_unit, idx[at], f)

                def p2start():
                    e("s_barrier")
                    self.poll_check(6, sMaskB)
                    self.halo_src(1, 0)
                    self.poll_issue(sHfl)
                    self.stream.extend(self.items_p1(xn, 1, 0, "A1")[:4])
                addhook(pre_unit, idx[(2, 0)], p2start)

                def halo_go():
                    self.poll_check(1, sMask8, sHfl)
                    self.stream.extend(self.items_halo(H) + self.items_p1(xn, 1, 0, "A1")[4:])
                addhook(pre_unit, idx[(2, 5)], halo_go)
                addhook(pre_read, idx[(4, 0)], sync([(H, j) for j in range(5)]))

                def p3start():
                    e("s_barrier")
                    self.stream.extend(self.items_p1(xn, 1, 1, "A1") + self.items_stats1(sn, 1))
                addhook(pre_unit, idx[(4, 0)], p3start)
                addhook(pre_unit, idx[(4, 1)], lambda: self.bg.extend([lambda: self.vwait(["SH"])] + stath))
            else:
                addhook(pre_read, idx[(0, 0)], sync([(A, h, j) for h in range(2) for j in range(5)]))
                addhook(pre_unit, idx[(0, 6)], lambda: self.publish(6 * layer + 1))
                addhook(pre_unit, idx[(0, 8)], lambda: self.stream.extend([self.item_touch(24, 3072), self.item_code()]))
                if layer == 1:
                    addhook(pre_unit, idx[(0, 18)], lambda: (self.halo_src(1, 1), self.poll_issue(sHfl)))
                    addhook(pre_unit, idx[(2, 4)], lambda: (self.poll_check(1, sMask8, sHfl),
                                                            self.stream.extend(self.items_halo(H))))
                addhook(pre_read, idx[(4, 0)], sync([(H, j) for j in range(5)]))
                addhook(pre_unit, idx[(2, 17)], lambda: self.bg.extend([lambda: self.vwait(["SH"])] + stath))
                if typ == 0:
                    addhook(pre_unit, idx[(2, 12)], lambda: self.poll_issue())

                    def a2go():
                        e("s_barrier")
                        self.poll_check(6 * layer + 1, sMask16)
                        self.stream.extend([self.item_pk(False, n) for n in range(20)])
                    addhook(pre_unit, idx[(4, 0)], a2go)
            addhook(pre_unit, idx[(0, 5 if sb == 0 else 1)], lambda: self.bg.extend([lambda: self.vwait(["S"])] + stat4))
            addhook(pre_unit, idx[(0, 17)], cs_read)
            addhook(pre_unit, idx[(2, 2)], lambda: self.bg.extend([lambda: a.wait(ds=["cs"])] + fix(0) + fix(1)))
            addhook(pre_unit, idx[(4, 3)], lambda: self.bg.extend(fix(2) + fix(3)))
        if not first:
            self.period = self.opt("per1", 64)
            self.b_period = self.opt("bper1", 80)
        self.unit_loop(len(units), read, compute, look=self.opt("look1", 7), pre_read=pre_read, pre_unit=pre_unit,
                       fill=self.opt("fill1", 2), wait_every=2, name="p1_%d%s" % (layer, "ab"[sb]), every=8)
        self.period = self.opt("per1", 64)
        self.stamp("p1_%d%s_loop" % (layer, "ab"[sb]))
        self.drain_bg()
        a.wait(ds=["cs"])
        self.bg = [x for rt in (range(5) if first else [4]) for x in fix(rt, packed=True)]
        self.drain_bg()
        if layer == 1 and sb == 1:
            for n in range(0, 160, 4):
                self.free.append(("a", n))
        a.wait_all(ds=True)
        e("s_barrier")
        self.stamp("p1_%d%s_gemm" % (layer, "ab"[sb]))
        if sb == 1:
            self.b_period = None
        R = AB
        Qf = [R, R + 4]
        Kp = [R + 8, R + 12]
        Kc = [R + 16, R + 20]
        Va = [R + 24, R + 28]
        Vb = [R + 32, R + 36]
        Sp = [ACC, ACC + 4]
        Sc = [ACC + 8, ACC + 12]
        Pf = [ACC + 16, ACC + 20]
        Oa = [ACC + 24, ACC + 28]
        Ob = [ACC + 32, ACC + 36]
        for h in range(2):
            a.ds(("q", h), "ds_read2_b64 %s, v%d offset0:%d offset1:%d" % (q(Qf[h]), vXc, 10 + 5 * h, 14 + 5 * h))
            a.ds(("kp", h), "ds_read2_b64 %s, v%d offset0:%d offset1:%d" % (q(Kp[h]), vXp, 5 * h, 4 + 5 * h))
            a.ds(("kc", h), "ds_read2_b64 %s, v%d offset0:%d offset1:%d" % (q(Kc[h]), vXc, 5 * h, 4 + 5 * h))
        for h in range(2):
            for vv, o in ((Va[h], 0), (Vb[h], 32)):
                a.ds(("v", h), "ds_read_b64_tr_b16 %s, v%d offset:%d" % (p2(vv), vXv, 40 * h + o))
                a.ds(("v", h), "ds_read_b64_tr_b16 %s, v%d offset:%d" % (p2(vv + 2), vXv, 40 * h + o + EXT))
        if first:
            self.poll_issue(sXk1)
            self.stream.extend([x for jj in (3, 4) for x in nb0[2 * jj:2 * jj + 2] + nb1[2 * jj:2 * jj + 2] + [nbh[jj]]]
                               + self.items_stats1(ST0, 1) + [nbh[5]])
        ev("s_add_u32 s%d, s%d, s%d" % (sA0, srt, sW), 40)
        ev("s_mul_i32 s%d, s%d, %d" % (sA0, sA0, 48 * KB))
        ev("s_mul_i32 s%d, s%d, 1280" % (sA1, sM), 40)
        ev("s_add_u32 s%d, s%d, s%d" % (sA0, sA0, sA1))
        ev("s_add_u32 s%d, s%d, %d" % (sA0, sA0, OB))
        ev("v_mov_b32 v%d, s%d" % (vT2, sNeg))
        for h in range(2):
            a.wait(ds=[("q", h)])
            ev("v_cndmask_b32 v%d, 0, v%d, %s" % (Qf[h] + 2, Qf[h] + 2, sp(sG0)))
            ev("v_cndmask_b32 v%d, 0, v%d, %s" % (Qf[h] + 3, Qf[h] + 3, sp(sG0)))
        for h in range(2):
            a.wait(ds=[("kc", h)])
            self.mfma(Sp[h], Kp[h], Qf[h], first=True)
            self.mfma(Sc[h], Kc[h], Qf[h], first=True)
        self.tick(80)
        sa = [R + 40, R + 41]
        sbb = [R + 42, R + 43]
        mx = [R + 44, R + 45]
        for h in range(2):
            s, c = Sp[h], Sc[h]
            ev("v_cndmask_b32 v%d, v%d, v%d, %s" % (s, s, s + 1, sp(sOdd)))
            ev("v_cndmask_b32 v%d, v%d, v%d, %s" % (s + 2, s + 2, s + 3, sp(sOdd)))
            ev("v_cndmask_b32 v%d, v%d, v%d, %s" % (c, c, c + 1, sp(sOdd)))
            ev("v_cndmask_b32 v%d, v%d, v%d, %s" % (c + 2, c + 2, c + 3, sp(sOdd)))
            ev("v_cndmask_b32 v%d, v%d, v%d, %s" % (sa[h], c, s, sp(sPA)))
            ev("v_cndmask_b32 v%d, v%d, v%d, %s" % (sbb[h], c + 2, s + 2, sp(sPB)))
            if sb == 0:
                ev("v_cndmask_b32 v%d, v%d, v%d, %s" % (sa[h], sa[h], vT2, sp(sPAx)))
                ev("v_cndmask_b32 v%d, v%d, v%d, %s" % (sbb[h], sbb[h], vT2, sp(sPBx)))
            ev("v_max_f32 v%d, v%d, v%d" % (mx[h], sa[h], sbb[h]))

        def red2(op, x, y):
            ev("v_permlane16_swap_b32 v%d, v%d" % (x, y), 12)
            ev("%s v%d, v%d, v%d" % (op, x, x, y))
            ev("v_mov_b32 v%d, v%d" % (y, x))
            ev("v_permlane32_swap_b32 v%d, v%d" % (x, y), 12)
            ev("%s v%d, v%d, v%d" % (op, x, x, y))
            ev("v_mov_b32 v%d, v%d" % (y, x))
            ev("v_permlane16_swap_b32 v%d, v%d" % (x, y), 12)

        red2("v_max_f32", mx[0], mx[1])
        for h in range(2):
            ev("v_mul_f32 v%d, s%d, v%d" % (mx[h], sScale, mx[h]))
        for h in range(2):
            ev("v_fma_f32 v%d, v%d, s%d, -v%d" % (sa[h], sa[h], sScale, mx[h]))
            ev("v_fma_f32 v%d, v%d, s%d, -v%d" % (sbb[h], sbb[h], sScale, mx[h]))
        for h in range(2):
            ev("v_exp_f32 v%d, v%d" % (sa[h], sa[h]), 8)
            ev("v_exp_f32 v%d, v%d" % (sbb[h], sbb[h]), 8)
        for h in range(2):
            ev("v_add_f32 v%d, v%d, v%d" % (mx[h], sa[h], sbb[h]))
        red2("v_add_f32", mx[0], mx[1])
        for h in range(2):
            ev("v_rcp_f32 v%d, v%d" % (mx[h], mx[h]), 8)
        for h in range(2):
            ev("v_mul_f32 v%d, v%d, v%d" % (sa[h], sa[h], mx[h]))
            ev("v_mul_f32 v%d, v%d, v%d" % (sbb[h], sbb[h], mx[h]))
        for h in range(2):
            ev("v_cvt_pk_bf16_f32 v%d, v%d, v%d" % (sa[h], sa[h], sa[h]))
            ev("v_cvt_pk_bf16_f32 v%d, v%d, v%d" % (sbb[h], sbb[h], sbb[h]))
            ev("v_and_b32 v%d, v%d, v%d" % (Pf[h], vM0, sa[h]))
            ev("v_and_b32 v%d, v%d, v%d" % (Pf[h] + 1, vM1, sbb[h]))
            ev("v_and_b32 v%d, v%d, v%d" % (Pf[h] + 2, vM2, sa[h]))
            ev("v_and_b32 v%d, v%d, v%d" % (Pf[h] + 3, vM3, sbb[h]))
        a.wait_all(ds=True)
        for h in range(2):
            self.mfma(Oa[h], Va[h], Pf[h], first=True)
        for h in range(2):
            self.mfma(Ob[h], Vb[h], Pf[h], first=True)
        for src, dst in ((Oa, R), (Ob, R + 4)):
            for h in range(2):
                e("v_cvt_pk_bf16_f32 v%d, v%d, v%d" % (dst + 2 * h, src[h], src[h] + 1))
                e("v_cvt_pk_bf16_f32 v%d, v%d, v%d" % (dst + 2 * h + 1, src[h] + 2, src[h] + 3))
            if src is Oa:
                a.vm("st", "buffer_store_dwordx4 %s, v%d, %s, s%d offen" % (q(R), vL0, sWS, sA0))
        e("s_mov_b64 exec, %s" % sp(sMaskX))
        a.vm("st", "buffer_store_dwordx4 %s, v%d, %s, s%d offen offset:1024" % (q(R + 4), vL0, sWS, sA0))
        e("s_mov_b64 exec, -1")
        if first:
            self.mode_check()
        elif sb == 0 and len(self.pending) == 3:
            self.pending[2]()
        if sb == 1:
            self.lend()
        if sb == 1:
            self.flush()
            self.publish(6 * layer + 2)
        self.stamp("p1_%d%s_end" % (layer, "ab"[sb]))

    def ct_write(self):
        a, e = self.a, self.e
        c0 = self.ct_regs
        a.wait(vm=["ct"])
        for r in range(4):
            e("v_add_f32 v%d, v%d, v%d" % (c0 + r, c0 + r, c0 + 4 + r))
        for r in range(4):
            e("v_add_f32 v%d, v%d, v%d" % (c0 + 8 + r, c0 + 8 + r, c0 + 12 + r))
        for r in range(4):
            e("v_add_f32 v%d, v%d, v%d" % (c0 + r, c0 + r, c0 + 8 + r))
        e("v_add_u32 v%d, %d, v%d" % (c0 + 16, L_CT, c0 + 16))
        a.ds("ctw", "ds_write_b128 v%d, %s" % (c0 + 16, q(c0)))

    def mode_check(self):
        e = self.e
        self.poll_check(1, sMaskX, soff=sXk1, acquire=False)
        e("v_cmp_ne_u32 vcc, s%d, v%d" % (sXcc, vPoll))
        e("s_and_b64 %s, %s, vcc" % (sp(sTmp2), sp(sMaskX)))
        e("s_cselect_b32 s%d, 1, 0" % sMode)
        if self.opts.get("force_slow"):
            e("s_mov_b32 s%d, 1" % sMode)

    def pk(self, layer, which):
        a, e, ev = self.a, self.e, self.ev
        typ = self.typ
        is4 = which == 4
        NK = 12 if is4 else 5
        name = ("W2" if is4 else "WO", layer)
        ACC, AB = W0, W0 + 80
        last = layer == 1 and is4
        order = self.pk_order(is4)
        n_units = len(order)
        self.stamp("p%d_%d_begin" % (which, layer))
        e("s_barrier")
        if typ == 1:
            if not is4:
                self.bpref(self.opt("bwait2", 5))
            self.poll(6 * layer + (5 if is4 else 2), sMask16)
            self.stream.extend([self.item_pk(is4, n) for n in range(20)])
            self.flush(upto=[("Ak", 7)])
        self.urgent = set(("Ak", n) for n in range(20))
        self.stamp("p%d_%d_poll" % (which, layer))
        if is4:
            self.unlend()
        init = []
        if layer == 0 and not is4:
            init.append(lambda: self.vwait(["res"]))
        BT = W0 + 96
        for ct in range(5):
            if is4:
                init.append(lambda ct=ct: a.ds(("b2", ct), "ds_read_b128 %s, v%d offset:%d" % (q(BT + 4 * (ct % 3)), vC4, 64 * ct)))
            for hh in range(2):
                src = vRes + 2 * ct + hh
                init.append("v_lshlrev_b32 v%d, 16, v%d" % (ACC + 4 * ct + 2 * hh, src))
                init.append("v_and_b32 v%d, 0xffff0000, v%d" % (ACC + 4 * ct + 2 * hh + 1, src))
            if is4 and ct >= 1:
                c = ct - 1
                init.append(lambda c=c: a.wait(ds=[("b2", c)]))
                init += ["v_add_f32 v%d, v%d, v%d" % (ACC + 4 * c + r, ACC + 4 * c + r, BT + 4 * (c % 3) + r) for r in range(4)]
        if is4:
            init.append(lambda: a.wait(ds=[("b2", 4)]))
            init += ["v_add_f32 v%d, v%d, v%d" % (ACC + 16 + r, ACC + 16 + r, BT + 4 + r) for r in range(4)]
        self.init_done = False
        init.append(lambda: setattr(self, "init_done", True))
        self.bg = init
        started = set()
        lastuse = {}
        for n, (i, k) in enumerate(order):
            lastuse[k] = n
        fin = {i: max(n for n, (ii, k) in enumerate(order) if ii == i) for i in range(4)}

        def read(n):
            return "ds_read_b128 %s, v%d offset:%d" % (q(AB + (n % 4) * 4), vAk, (n % 20) * 1024)

        def compute(n):
            i, k = order[n]
            if i == 0 and 0 not in started:
                self.drain_bg_upto_init()
            regs = [self.bget((name, k * 5 + ct)) for ct in range(5)]
            fst = i != 0 and i not in started
            started.add(i)

            def mk(ct):
                def f():
                    self.mfma(ACC + (i * 5 + ct) * 4, regs[ct], AB + (n % 4) * 4, first=fst)
                    if ct == 0 and n + 20 < n_units:
                        self.stream.append(self.item_pk(is4, n + 20))
                    if ct == 4 and lastuse[k] == n:
                        for c in range(5):
                            self.bfree((name, k * 5 + c))
                return f
            return [mk(ct) for ct in range(5)]

        self.init_left = len(init)
        pre_read = {n: (lambda n=n: self.vwait([("Ak", n)])) for n in range(n_units)}
        pre_unit = {}

        def writes(i):
            return [lambda ct=ct: a.ds("rw", "ds_write_b128 v%d, %s offset:%d" %
                                       ((vRw1, vRw2, vRw3)[i - 1], q(ACC + (i * 5 + ct) * 4), ct * 1024)) for ct in range(5)]

        def spaced(ws):
            out = []
            for w in ws:
                out += [w, 2]
            return out

        pre_unit[fin[1] + 1] = lambda: self.bg.extend([1] + spaced(writes(1)))
        pre_unit[fin[2] + 1] = lambda: self.bg.extend([1] + spaced(writes(2)))

        def stage1():
            self.b_period = None
            self.drain_bg()
            a.wait(ds=["rw"])
            e("s_barrier")
            if typ == 1 and not last:
                self.poll_issue()
            ops = []
            w3 = writes(3)
            for ct in range(5):
                ops.append(w3[ct])
                for j in range(2):
                    ops.append(lambda j=j, ct=ct: a.ds(("rr", j, ct), "ds_read_b128 %s, v%d offset:%d" %
                                                       (q(ACC + 20 + (j * 5 + ct) * 4), vRr, (j * 5 + ct) * 1024)))
            for ct in range(5):
                ops.append(lambda ct=ct: a.wait(ds=[("rr", 1, ct)]))
                ops += ["v_add_f32 v%d, v%d, v%d" % (ACC + 20 + 4 * ct + r, ACC + 20 + 4 * ct + r, ACC + 40 + 4 * ct + r)
                        for r in range(4)]
            self.bg.extend(ops)
        pre_unit[fin[3] + 1] = stage1
        self.deadline = {("Ak", n): n for n in range(n_units)}
        for n, (i, k) in reversed(list(enumerate(order))):
            for ct in range(5):
                self.deadline[(name, k * 5 + ct)] = n - self.opt("blead", 8)
        self.period = self.opt("perk", 48)
        self.b_period = 1
        self.b_stop = name if is4 else None
        self.unit_loop(n_units, read, compute, look=3, pre_read=pre_read, pre_unit=pre_unit, fill=self.opt("fillk", 7),
                       name="p%d_%d" % (which, layer))
        self.b_period = None
        self.b_stop = None
        self.deadline = {}
        self.stamp("p%d_%d_loop" % (which, layer))
        self.drain_bg()
        a.wait_all(ds=True)
        e("s_barrier")
        self.stamp("p%d_%d_gemm" % (which, layer))
        for ct in range(5):
            a.ds(("rr", 2, ct), "ds_read_b128 %s, v%d offset:%d" % (q(ACC + 60 + ct * 4), vRr, (10 + ct) * 1024))
        self.period = self.opt("pere", 64)
        if typ == 1 and not last:
            self.poll_check(6 * layer + (6 if is4 else 3), sMaskA)
            self.next_fetch(layer, is4)
        ev("s_add_u32 s%d, s%d, s%d" % (sA0, sRtT, sW))
        if last:
            ev("s_mul_i32 s%d, s%d, %d" % (sA1, sA0, 16 * 1280))
            ev("s_lshl_b32 s%d, s%d, 6" % (sA2, sXk0))
            ev("s_add_u32 s%d, s%d, s%d" % (sA2, sA2, sA1))
            ev("s_lshl_b32 s%d, s%d, 6" % (sA3, sXkh))
            ev("s_add_u32 s%d, s%d, s%d" % (sA3, sA3, sA1))
        else:
            xb = X2 if is4 else X1
            ev("s_mul_i32 s%d, s%d, %d" % (sA1, sA0, 20 * KB))
            ev("s_add_u32 s%d, s%d, %d" % (sA1, sA1, xb))
            ev("s_lshl_b32 s%d, s%d, 10" % (sRt, sXk0))
            ev("s_lshl_b32 s%d, s%d, 10" % (sRt + 1, sXkh))
            ev("s_add_u32 s%d, s%d, s%d" % (sA2, sRt, sA1))
            ev("s_add_u32 s%d, s%d, s%d" % (sA3, sRt + 1, sA1))
            ev("s_lshl_b32 s%d, s%d, 10" % (sA0, sA0))
            ev("s_add_u32 s%d, s%d, %d" % (sA0, sA0, ST2 if is4 else ST1))
        for ct in range(5):
            for hh in (0, 2):
                ev("v_pk_add_f32 %s, %s, %s" % (p2(ACC + 4 * ct + hh), p2(ACC + 4 * ct + hh), p2(ACC + 20 + 4 * ct + hh)), 8)
        srd, v0_, vh, o2 = (sOUT, vOut, vOutH, 64) if last else (sWS, vL0, vHalf, 1024)
        for ct in range(5):
            a.wait(ds=[("rr", 2, ct)])
            for hh in (0, 2):
                ev("v_pk_add_f32 %s, %s, %s" % (p2(ACC + 4 * ct + hh), p2(ACC + 4 * ct + hh), p2(ACC + 60 + 4 * ct + hh)), 8)
            ev("v_cvt_pk_bf16_f32 v%d, v%d, v%d" % (vRes + 2 * ct, ACC + 4 * ct, ACC + 4 * ct + 1))
            ev("v_cvt_pk_bf16_f32 v%d, v%d, v%d" % (vRes + 2 * ct + 1, ACC + 4 * ct + 2, ACC + 4 * ct + 3))
            if ct == 1:
                a.vm("st", "buffer_store_dwordx4 %s, v%d, %s, s%d offen" % (q(vRes), v0_, srd, sA2))
            if ct == 3:
                a.vm("st", "buffer_store_dwordx4 %s, v%d, %s, s%d offen offset:%d" % (q(vRes + 4), v0_, srd, sA2, o2))
            if ct == 4:
                a.vm("st", "buffer_store_dwordx2 %s, v%d, %s, s%d offen" % (p2(vRes + 8), vh, srd, sA3))
        if last:
            self.stamp("p4_1_end")
            return
        s0, s1 = vT1, vT2
        for r in range(10):
            ev("v_dot2_f32_bf16 v%d, v%d, s%d, %s" % (s0, vRes + r, sOnes, "0" if r == 0 else "v%d" % s0))
            ev("v_dot2_f32_bf16 v%d, v%d, v%d, %s" % (s1, vRes + r, vRes + r, "0" if r == 0 else "v%d" % s1))
        ev("v_permlane16_swap_b32 v%d, v%d" % (s0, s1))
        ev("v_add_f32 v%d, v%d, v%d" % (s0, s0, s1))
        ev("v_mov_b32 v%d, v%d" % (s1, s0))
        ev("v_permlane32_swap_b32 v%d, v%d" % (s0, s1))
        ev("v_add_f32 v%d, v%d, v%d" % (s0, s0, s1))
        e("s_mov_b64 exec, %s" % sp(sMaskA))
        a.vm("st", "buffer_store_dword v%d, v%d, %s, s%d offen" % (s0, vSt, sWS, sA0))
        e("s_mov_b64 exec, -1")
        if is4:
            e("s_lshr_b32 s%d, s%d, 2" % (sA0, sRtT))
            e("s_mul_i32 s%d, s%d, %d" % (sA1, sA0, 20 * KB))
            e("s_add_u32 s%d, s%d, %d" % (sA1, sA1, HX))
            e("s_add_u32 s%d, s%d, s%d" % (sRt, sRt, sA1))
            e("s_add_u32 s%d, s%d, s%d" % (sRt + 1, sRt + 1, sA1))
            e("s_lshl_b32 s%d, s%d, 10" % (sRt + 3, sA0))
            e("s_add_u32 s%d, s%d, %d" % (sRt + 3, sRt + 3, HS))
            e("v_mov_b32 v%d, v%d" % (vHst, s0))
            e("s_lshl_b32 s%d, s%d, 7" % (sRt + 2, sA0))
            e("s_lshl_b32 s%d, s%d, 2" % (sA0, sCG))
            e("s_add_u32 s%d, s%d, s%d" % (sRt + 2, sRt + 2, sA0))
            e("s_add_u32 s%d, s%d, %d" % (sRt + 2, sRt + 2, HFL))
        val = 6 * layer + (6 if is4 else 3)

        def halo_out():
            sk = a.newlabel("nohalo")
            e("s_cmp_lg_u32 s%d, 3" % sW)
            e("s_cbranch_scc1 %s" % sk)
            e("buffer_store_dwordx4 %s, v%d, %s, s%d offen sc1" % (q(vRes), vL0, sWS, sRt))
            e("buffer_store_dwordx4 %s, v%d, %s, s%d offen offset:1024 sc1" % (q(vRes + 4), vL0, sWS, sRt))
            e("buffer_store_dwordx2 %s, v%d, %s, s%d offen sc1" % (p2(vRes + 8), vHalf, sWS, sRt + 1))
            e("s_mov_b64 exec, %s" % sp(sMaskA))
            e("buffer_store_dword v%d, v%d, %s, s%d offen sc1" % (vHst, vSt, sWS, sRt + 3))
            e("s_mov_b64 exec, -1")
            a.label(sk)
            a.vm("hmark", "buffer_load_dword v0, v%d, %s, s%d offen" % (vFl, sWS, sFlBase))

        def halo_flag():
            a.wait(vm=["hmark"])
            sk = a.newlabel("nohf")
            e("s_cmp_lg_u32 s%d, 3" % sW)
            e("s_cbranch_scc1 %s" % sk)
            e("v_mov_b32 v%d, 1" % vT0)
            e("s_mov_b64 exec, 1")
            e("buffer_store_dword v%d, off, %s, s%d sc1" % (vT0, sWS, sRt + 2))
            e("s_mov_b64 exec, -1")
            a.label(sk)

        if typ == 0:
            self.publish(val)
            if is4:
                halo_out()
            self.bpref(self.opt("bwait", 8))
            self.poll(val, sMaskA)
            self.next_fetch(layer, is4)
            self.flush(upto=[("A0", 0, 4)])
            self.pending = [halo_flag] if is4 else []
        else:
            self.flush(upto=[self.stream[min(3, len(self.stream) - 1)][0]] if self.stream else [])
            self.publish(val)
            self.pending = []
            if is4:
                self.pending = [None, halo_out, halo_flag]
        self.stamp("p%d_%d_end" % (which, layer))

    def drain_bg_upto_init(self):
        while not self.init_done:
            x = self.bg.pop(0)
            x() if callable(x) else self.e(x)

    def next_fetch(self, layer, is4):
        if is4:
            i0, i1 = self.items_p1(X2, 0, 0, "A0"), self.items_p1(X2, 0, 1, "A0")
            it = i0[:4] + self.items_stats1(ST2, 0) + i0[4:] + i1
        else:
            i0 = self.items_p3(0, 0, "A0")
            it = i0[:4] + self.items_stats3(0) + i0[4:] + self.items_p3(0, 1, "A0")
        self.urgent = set(t for t, _ in it)
        self.stream.extend(it)

    P3_ACC = W0
    P3_AB = W0 + 48
    P3_CT = W0 + 80
    P3_RAW = W0 + 80
    P3_MS = W0 + 104

    def p3(self, layer, sb):
        a, e, ev = self.a, self.e, self.ev
        typ = self.typ
        srt = (sRtA, sRtB)[sb]
        name = ("W1", layer)
        ACC, AB, CT = self.P3_ACC, self.P3_AB, self.P3_CT
        A = "A%d" % sb
        self.stamp("p3_%d%s_begin" % (layer, "ab"[sb]))
        head = self.opt("p3head", 5) if (sb == 1 and layer == 0) else 0
        units = [(i, k) for k in range(head) for i in (2, 3, 0, 1)]
        units += [(i, k) for k in range(head, 10) for i in (2, 3)]
        units += [(i, k) for k in range(head, 10) for i in (0, 1)]
        idx = {u: n for n, u in enumerate(units)}
        lastuse = {}
        for n, (i, k) in enumerate(units):
            lastuse[k] = n

        def read(u):
            i, k = units[u]
            return "ds_read_b128 %s, v%d offset:%d" % (q(AB + (u % 8) * 4), vP3a if i < 2 else vP3b, (i & 1) * 20480 + k * 2048)

        def compute(u):
            i, k = units[u]
            regs = [self.bget((name, k * 3 + ct)) for ct in range(3)]

            def mk(ct):
                def f():
                    self.mfma(ACC + (i * 3 + ct) * 4, regs[ct], AB + (u % 8) * 4, first=(k == 0))
                    if ct == 2 and sb == 1 and lastuse[k] == u:
                        for c in range(3):
                            self.bfree((name, k * 3 + c))
                return f
            return [mk(ct) for ct in range(3)]

        def sync(tags):
            def f():
                self.vwait(tags)
                e("s_barrier")
            return f

        pre_read, pre_unit = {}, {}

        def addhook(d, u, f):
            old = d.get(u)
            d[u] = f if old is None else (lambda: (old(), f()))

        self.bg = []
        if sb == 0:
            addhook(pre_read, idx[(2, 0)], sync([(A, 0, 0), (A, 0, 1)]))
            addhook(pre_read, idx[(2, 4)], sync([(A, 0, 2), (A, 0, 3), (A, 0, 4)]))
            addhook(pre_read, idx[(0, 0)], sync([(A, 1, j) for j in range(5)]))
        elif head == 0:
            addhook(pre_read, idx[(2, 0)], sync([(A, 0, j) for j in range(5)]))
            addhook(pre_read, idx[(0, 0)], sync([(A, 1, j) for j in range(5)]))
        else:
            addhook(pre_read, idx[(2, 0)], sync([(A, 0, j) for j in range(5)] + [(A, 1, 0)]))
            addhook(pre_read, idx[(2, 2)], sync([(A, 1, 1)]))
            addhook(pre_read, idx[(2, 4)], sync([(A, 1, j) for j in range(2, 5)]))
        addhook(pre_unit, 3, lambda: self.bg.extend(
            [lambda: self.vwait(["S3"])] +
            self.zipops([self.stats_ops(self.P3_RAW + 4 * i, self.P3_MS + 2 * i) for i in range(2)])))
        if sb == 1:
            addhook(pre_unit, 6, lambda: self.publish(6 * layer + 4))
            addhook(pre_unit, 8, lambda: self.stream.append(self.item_code()))
        own0 = idx[(0, head)]

        def sendw():
            self.drain_bg()
            ops = [1]
            for ii in (2, 3):
                for ct in range(3):
                    ops.append(lambda ii=ii, ct=ct: a.ds("ew", "ds_write_b128 v%d, %s offset:%d" %
                                                         (vE3w, q(ACC + (ii * 3 + ct) * 4), ((ii - 2) * 3 + ct) * 1024)))
                    ops.append(lambda n=(ii - 2) * 3 + ct: a.ds(("c3", n // 2), "ds_read_b128 %s, v%d offset:%d" %
                                                                (q(CT + 4 * n), vC3, (n % 2) * 384 + (n // 2) * 64)))
            self.bg.extend(ops)
            if sb == 0 or typ == 0:
                self.poll_issue()
        addhook(pre_unit, own0, sendw)

        def mid():
            self.drain_bg()
            a.wait(ds=["ew"])
            e("s_barrier")
            if sb == 0:
                self.poll_check(6 * layer + 3, sMaskB)
                self.stream.extend(self.items_p3(1, 0, "A1"))
            ops = []
            for n in range(6):
                ops.append(lambda n=n: a.ds(("er", n), "ds_read_b128 %s, v%d offset:%d" % (q(ACC + 24 + 4 * n), vE3r, n * 1024)))
            for i in range(2):
                ms = self.P3_MS + 2 * i
                for ct in range(3):
                    oth = ACC + 24 + (i * 3 + ct) * 4
                    ops.append(lambda n=i * 3 + ct: a.wait(ds=[("er", n)]))
                    ops += ["v_fma_f32 v%d, -v%d, v%d, v%d" % (oth + r, CT + 8 * ct + r, ms, oth + r) for r in range(4)]
                    ops += ["v_fma_f32 v%d, v%d, v%d, v%d" % (oth + r, oth + r, ms + 1, CT + 8 * ct + 4 + r) for r in range(4)]
            self.bg.extend(ops)
        addhook(pre_unit, own0 + 5, mid)
        self.deadline = {}
        for n, (i, k) in reversed(list(enumerate(units))):
            self.deadline[(A, 0 if i >= 2 else 1, k // 2)] = n
            self.deadline[("A1", 0 if i >= 2 else 1, k // 2)] = n + (40 if sb == 0 else 0)
            for ct in range(3):
                self.deadline[(name, k * 3 + ct)] = n - self.opt("blead3", 12)
        self.period = self.opt("per3", 56)
        self.b_period = self.opt("bper3", 80)
        if sb == 1:
            addhook(pre_unit, len(units) - self.opt("bstop3", 4), lambda: setattr(self, "b_period", None))
        self.unit_loop(len(units), read, compute, look=self.opt("look3", 5), pre_read=pre_read, pre_unit=pre_unit, fill=self.opt("fill3", 4),
                       name="p3_%d%s" % (layer, "ab"[sb]))
        self.b_period = None
        self.deadline = {}
        self.stamp("p3_%d%s_loop" % (layer, "ab"[sb]))
        self.period = self.opt("pere", 64)
        if sb == 0 or typ == 0:
            e("s_barrier")
            if sb == 0:
                self.stream.extend(self.items_p3(1, 1, "A1"))
            else:
                self.poll_check(6 * layer + 4, sMask16)
                self.stream.extend([self.item_pk(True, n) for n in range(20)])
        ev("s_and_b32 s%d, s%d, 1" % (sA1, sW))
        ev("s_lshl_b32 s%d, s%d, 1" % (sA1, sA1))
        ev("s_add_u32 s%d, s%d, s%d" % (sA1, sA1, srt))
        ev("s_mul_i32 s%d, s%d, 48" % (sA1, sA1))
        ev("s_mul_i32 s%d, s%d, 3" % (sA2, sM))
        ev("s_add_u32 s%d, s%d, s%d" % (sA1, sA1, sA2))
        ev("s_lshl_b32 s%d, s%d, 10" % (sA1, sA1))
        ev("s_add_u32 s%d, s%d, %d" % (sA1, sA1, HB))
        ev("s_and_b32 s%d, s%d, 2" % (sA2, sW))
        ev("s_lshl_b32 s%d, s%d, 10" % (sA2, sA2))
        ev("s_add_u32 s%d, s%d, s%d" % (sA2, sA2, sA1))
        self.drain_bg()
        if sb == 0:
            self.stream[0:0] = self.items_stats3(1)
        OUT = CT
        for i in range(2):
            ms = self.P3_MS + 2 * i
            for ct in range(3):
                acc = ACC + (i * 3 + ct) * 4
                oth = ACC + 24 + (i * 3 + ct) * 4
                for hh in (0, 2):
                    ev("v_pk_fma_f32 %s, %s, %s, %s op_sel:[0,1,0] op_sel_hi:[1,1,1]" %
                       (p2(acc + hh), p2(acc + hh), p2(ms), p2(oth + hh)), 8)
                for r in range(4):
                    ev("v_max_f32 v%d, 0, v%d" % (acc + r, acc + r))
                for hh in (0, 2):
                    ev("v_pk_mul_f32 %s, %s, %s" % (p2(acc + hh), p2(acc + hh), p2(acc + hh)), 8)
                o = OUT + 8 + i * 8 + 2 * ct
                ev("v_cvt_pk_bf16_f32 v%d, v%d, v%d" % (o, acc, acc + 1))
                ev("v_cvt_pk_bf16_f32 v%d, v%d, v%d" % (o + 1, acc + 2, acc + 3))
                if ct == 1:
                    a.vm("st", "buffer_store_dwordx4 %s, v%d, %s, s%d offen" % (q(OUT + 8 + i * 8), vL0, sWS, sA2))
                if ct == 2:
                    a.vm("st", "buffer_store_dwordx2 %s, v%d, %s, s%d offen offset:1024" % (p2(o), vHh, sWS, sA1))
            if i == 0:
                ev("s_add_u32 s%d, s%d, %d" % (sA1, sA1, 48 * KB))
                ev("s_add_u32 s%d, s%d, %d" % (sA2, sA2, 48 * KB))
        if sb == 1:
            if typ == 0:
                self.flush(upto=[self.stream[min(4, len(self.stream) - 1)][0]] if self.stream else [])
            else:
                self.bpref(self.opt("bwait3", 6))
            self.publish(6 * layer + 5)
        self.stamp("p3_%d%s_end" % (layer, "ab"[sb]))

    def program(self):
        e = self.e
        lab = "prog_%d" % self.typ
        self.a.label(lab)
        e("s_getpc_b64 s[96:97]")
        e("s_mov_b32 s98, %s-%s-4" % ("main_typeb" if self.typ == 0 else "main_end", lab))
        e("s_mov_b32 s99, 0x20000")
        for layer in range(2):
            self.queue_b(("WO", layer), sWOb, 25)
            self.queue_b(("W1", layer), sW1b, 30)
            self.queue_b(("W2", layer), sW2b, 60)
        self.pending = []
        for layer in range(2):
            self.p1(layer, 0)
            self.p1(layer, 1)
            self.pk(layer, 2)
            self.p3(layer, 0)
            self.p3(layer, 1)
            self.pk(layer, 4)
        if self.stamps:
            self.rstamp(63)
            e("s_lshl_b32 s%d, s2, 2" % sA0)
            e("s_add_u32 s%d, s%d, s%d" % (sA0, sA0, sW))
            e("s_lshl_b32 s%d, s%d, 8" % (sA0, sA0))
            e("s_add_u32 s%d, s%d, %d" % (sA0, sA0, DBG))
            e("buffer_store_dword v%d, v%d, %s, s%d offen" % (vStamp, vFl, sWS, sA0))
        e("s_endpgm")

    def build(self):
        a, e = self.a, self.e
        self.typ = 0
        self.b_stop = None
        a.label("main_kernel")
        self.prologue()
        e("s_cmp_eq_u32 s%d, 0" % sT)
        e("s_cbranch_scc0 main_typeb")
        saved = (list(a.vmq), list(a.dsq), list(self.stream), self.credit, self.period, self.nstamp, list(a.hist))
        self.program()
        a.label("main_typeb")
        self.log_a = self.log
        self.reset_state()
        self.typ = 1
        a.vmq, a.dsq, self.stream, self.credit, self.period, self.nstamp, a.hist = saved
        self.program()
        a.label("main_end")
        return a.text()
```

```python
from asmlib import Asm
from layout import *

PREP_WGS = 480
TAB_WQ, TAB_W1, TAB_WO, TAB_W2 = 0, 480, 864, 1024
TAB_N = 1184


def table_words():
    t = []
    for c in range(480):
        t += list(wq_col(4 * c))
    for c in range(384):
        t += list(w1_col(4 * c))
    for c in range(160):
        t += list(wo_col(4 * c))
    for c in range(160):
        t += list(w2_col(4 * c))
    return t


def gen_prep(main_label, main_end_label):
    a = Asm()
    e = a.e
    a.label("prep_kernel")
    e("s_cmp_ge_u32 s2, %d" % PREP_WGS)
    e("s_cbranch_scc1 prep_done")
    e("s_load_dwordx16 s[16:31], s[0:1], 0x0")
    e("s_load_dwordx2 s[32:33], s[0:1], 0x50")
    e("v_lshrrev_b32 v1, 6, v0")
    e("v_and_b32 v2, 63, v0")
    e("v_readfirstlane_b32 s3, v1")
    e("s_getpc_b64 s[34:35]")
    a.label("prep_pc")
    e("s_mov_b32 s6, %d" % WS_USED)
    e("s_mov_b32 s7, 0x20000")
    e("s_mov_b32 s11, 0x20000")
    e("s_mov_b32 s15, 0x20000")
    e("s_mov_b32 s39, 0x20000")
    e("s_mov_b32 s60, 0x3f803f80")
    e("s_add_u32 s12, s34, prep_table-prep_pc")
    e("s_addc_u32 s13, s35, 0")
    e("s_mov_b32 s14, %d" % (TAB_N * 8))
    e("s_add_u32 s36, s34, %s-prep_pc" % main_label)
    e("s_addc_u32 s37, s35, 0")
    e("s_mov_b32 s38, %s-%s" % (main_end_label, main_label))
    e("s_lshr_b32 s40, s2, 5")
    e("s_cmp_lg_u32 s40, 4")
    e("s_cbranch_scc1 prep_nopf")
    e("s_bfe_u32 s40, s2, 0x20003")
    e("s_mul_i32 s40, s40, 40960")
    e("v_lshlrev_b32 v3, 7, v0")
    e("buffer_load_dword v63, v3, s[36:39], s40 offen")
    a.label("prep_nopf")
    e("s_waitcnt lgkmcnt(0)")
    e("s_mov_b32 s4, s32")
    e("s_mov_b32 s5, s33")
    e("s_cmp_lt_u32 s2, 128")
    e("s_cbranch_scc1 prep_x")
    e("s_cmp_lt_u32 s2, 248")
    e("s_cbranch_scc1 prep_wq")
    e("s_cmp_lt_u32 s2, 344")
    e("s_cbranch_scc1 prep_w1")
    e("s_cmp_lt_u32 s2, 384")
    e("s_cbranch_scc1 prep_wo")

    def lin10(start):
        e("s_sub_u32 s44, s2, %d" % start)
        e("s_mul_i32 s44, s44, 5")
        e("s_add_u32 s44, s44, s3")
        e("s_mul_i32 s55, s44, 6554")
        e("s_lshr_b32 s55, s55, 16")
        e("s_mul_i32 s45, s55, 10")
        e("s_sub_u32 s54, s44, s45")
        e("s_mov_b32 s57, -1")
        e("s_mov_b32 s52, %d" % (10 * KB))
        e("s_mov_b32 s53, %d" % (5 * KB))
        e("s_mov_b32 s40, 1280")

    def blk(start, ncb, magic):
        e("s_sub_u32 s44, s2, %d" % start)
        e("s_mul_i32 s57, s44, %d" % magic)
        e("s_lshr_b32 s57, s57, 16")
        e("s_mul_i32 s45, s57, %d" % ncb)
        e("s_sub_u32 s54, s44, s45")
        e("s_mul_i32 s55, s57, 5")
        e("s_add_u32 s55, s55, s3")

    def nat():
        e("s_mov_b32 s41, 8")
        e("s_mov_b32 s42, 0")
        e("s_mov_b32 s43, 4")

    e("s_mov_b32 s8, s28")
    e("s_mov_b32 s9, s29")
    e("s_mov_b32 s10, %d" % (F * D * 2))
    lin10(384)
    nat()
    e("s_mov_b32 s56, %d" % TAB_W2)
    e("s_cmp_eq_u32 s55, 0")
    e("s_cselect_b32 s58, 1, 0")
    e("s_mov_b32 s59, 0")
    e("s_mov_b32 s62, s30")
    e("s_mov_b32 s63, s31")
    e("s_mov_b32 s61, %d" % (D * 2))
    e("s_branch prep_w")
    a.label("prep_wo")
    e("s_mov_b32 s8, s20")
    e("s_mov_b32 s9, s21")
    e("s_mov_b32 s10, %d" % (D * D * 2))
    lin10(344)
    e("s_mov_b32 s41, 4")
    e("s_mov_b32 s42, 20")
    e("s_mov_b32 s43, 20")
    e("s_mov_b32 s56, %d" % TAB_WO)
    e("s_mov_b32 s58, 0")
    e("s_mov_b32 s59, 0")
    e("s_mov_b32 s62, s30")
    e("s_mov_b32 s63, s31")
    e("s_mov_b32 s61, %d" % (D * 2))
    e("s_branch prep_w")
    a.label("prep_w1")
    e("s_mov_b32 s8, s24")
    e("s_mov_b32 s9, s25")
    e("s_mov_b32 s10, %d" % (D * F * 2))
    blk(248, 24, 2731)
    nat()
    e("s_mov_b32 s40, %d" % (F * 2))
    e("s_mov_b32 s52, %d" % (3 * KB))
    e("s_mov_b32 s53, %d" % (30 * KB))
    e("s_mov_b32 s56, %d" % TAB_W1)
    e("s_cmp_eq_u32 s55, 0")
    e("s_cselect_b32 s58, 1, 0")
    e("s_mov_b32 s59, 384")
    e("s_mov_b32 s62, s26")
    e("s_mov_b32 s63, s27")
    e("s_mov_b32 s61, %d" % (F * 2))
    e("s_branch prep_w")
    a.label("prep_wq")
    e("s_mov_b32 s8, s18")
    e("s_mov_b32 s9, s19")
    e("s_mov_b32 s10, %d" % (D * 3 * D * 2))
    blk(128, 30, 2185)
    nat()
    e("s_mov_b32 s40, %d" % (3 * D * 2))
    e("s_mov_b32 s52, %d" % (4 * KB))
    e("s_mov_b32 s53, %d" % (2 * KB))
    e("s_mov_b32 s56, %d" % TAB_WQ)
    e("s_mov_b32 s58, 0")
    e("s_mov_b32 s59, 0")
    e("s_mov_b32 s62, s30")
    e("s_mov_b32 s63, s31")
    e("s_mov_b32 s61, %d" % (D * 2))

    a.label("prep_w")
    e("v_and_b32 v3, 31, v2")
    e("v_lshrrev_b32 v4, 5, v2")
    e("s_lshl_b32 s44, s55, 2")
    e("v_add_u32 v5, s44, v4")
    e("v_add_u32 v6, 2, v5")
    e("s_lshl_b32 s45, s54, 7")
    e("v_lshl_add_u32 v7, v3, 2, s45")
    for vq, vo in ((5, 8), (6, 9)):
        e("v_mul_u32_u24 v10, 205, v%d" % vq)
        e("v_lshrrev_b32 v10, 10, v10")
        e("v_mul_u32_u24 v10, s42, v10")
        e("v_mad_u32_u24 v10, v%d, s41, v10" % vq)
        e("v_mad_u32_u24 v%d, v10, s40, v7" % vo)
    e("s_mov_b32 s64, 0")
    e("s_mov_b32 s65, s40")
    e("s_lshl_b32 s66, s40, 1")
    e("s_add_u32 s67, s66, s40")
    e("s_mul_i32 s68, s40, s43")
    e("s_add_u32 s69, s68, s65")
    e("s_add_u32 s70, s68, s66")
    e("s_add_u32 s71, s68, s67")
    for gg in range(2):
        for j in range(8):
            a.vm("w", "buffer_load_dword v%d, v%d, s[8:11], s%d offen" % (16 + gg * 8 + j, 8 + gg, 64 + j))
    e("s_lshl_b32 s45, s54, 4")
    e("s_add_u32 s45, s45, s56")
    e("s_lshl_b32 s45, s45, 3")
    e("v_lshrrev_b32 v10, 1, v3")
    e("v_lshlrev_b32 v10, 3, v10")
    a.vm("t", "buffer_load_dwordx2 v[12:13], v10, s[12:15], s45 offen")
    e("s_lshr_b32 s46, s55, 1")
    e("s_mul_i32 s46, s46, s52")
    e("s_and_b32 s47, s55, 1")
    e("s_mul_i32 s47, s47, s53")
    e("s_add_u32 s46, s46, s47")
    e("s_mov_b32 s48, 0x05040100")
    e("s_mov_b32 s49, 0x07060302")
    e("v_and_b32 v11, 1, v3")
    e("v_lshlrev_b32 v11, 5, v11")
    e("v_lshl_add_u32 v11, v4, 8, v11")
    e("v_lshl_add_u32 v14, v3, 1, v4")
    e("v_and_b32 v15, 3, v14")
    e("v_lshlrev_b32 v15, 2, v15")
    a.wait(vm="t")
    e("v_add_u32 v11, v11, v12")
    e("v_add_u32 v15, v15, v13")
    for gg in range(2):
        for hi in range(2):
            for i in range(4):
                src = 16 + gg * 8 + 2 * i
                e("v_perm_b32 v%d, v%d, v%d, s%d" % (32 + (gg * 2 + hi) * 4 + i, src + 1, src, 48 + hi))
            r = 32 + (gg * 2 + hi) * 4
            a.vm("st", "buffer_store_dwordx4 v[%d:%d], v11, s[4:7], s46 offen offset:%d" % (r, r + 3, gg * 512 + hi * 16))
    e("s_cmp_eq_u32 s58, 0")
    e("s_cbranch_scc1 prep_nobias")
    e("s_mov_b32 s8, s62")
    e("s_mov_b32 s9, s63")
    e("s_mov_b32 s10, s61")
    e("s_lshl_b32 s45, s54, 7")
    e("v_lshlrev_b32 v50, 1, v14")
    e("buffer_load_ushort v51, v50, s[8:11], s45 offen")
    e("s_waitcnt vmcnt(0)")
    e("v_lshlrev_b32 v51, 16, v51")
    e("buffer_store_dword v51, v15, s[4:7], s59 offen")
    a.label("prep_nobias")
    e("s_cmp_lt_i32 s57, 0")
    e("s_cbranch_scc1 prep_done")
    e("v_mov_b32 v48, 0")
    e("v_mov_b32 v49, 0")
    for gg in range(2):
        for i in range(4):
            for hi in range(2):
                e("v_dot2_f32_bf16 v%d, v%d, s60, v%d" % (48 + hi, 32 + (gg * 2 + hi) * 4 + i, 48 + hi))
    e("v_permlane32_swap_b32 v48, v49")
    e("v_add_f32 v48, v48, v49")
    e("v_lshlrev_b32 v50, 2, v0")
    e("ds_write_b32 v50, v48")
    e("s_waitcnt lgkmcnt(0)")
    e("s_barrier")
    e("s_cmp_lg_u32 s3, 0")
    e("s_cbranch_scc1 prep_done")
    for k in range(1, 5):
        e("ds_read_b32 v%d, v50 offset:%d" % (51 + k, 256 * k))
    e("s_waitcnt lgkmcnt(0)")
    e("v_add_f32 v48, v48, v52")
    e("v_add_f32 v53, v53, v54")
    e("v_add_f32 v48, v48, v55")
    e("v_add_f32 v48, v48, v53")
    e("s_lshl_b32 s45, s57, 15")
    e("buffer_store_dword v48, v15, s[4:7], s45 offen")
    e("s_endpgm")

    a.label("prep_x")
    a.vmq = []
    e("s_and_b32 s44, s2, 7")
    e("s_lshr_b32 s45, s2, 3")
    e("s_lshl_b32 s44, s44, 3")
    e("s_and_b32 s46, s45, 3")
    e("s_add_u32 s44, s44, s46")
    e("s_bfe_u32 s46, s45, 0x10003")
    e("s_lshl_b32 s46, s46, 2")
    e("s_add_u32 s44, s44, s46")
    e("s_bfe_u32 s46, s45, 0x10002")
    e("s_lshl_b32 s46, s46, 6")
    e("s_add_u32 s2, s44, s46")
    e("s_mov_b32 s8, s16")
    e("s_mov_b32 s9, s17")
    e("s_mov_b32 s10, %d" % (S * D * 2))
    e("v_and_b32 v3, 15, v2")
    e("v_lshrrev_b32 v4, 4, v2")
    e("v_mul_u32_u24 v5, 1280, v3")
    e("v_lshl_add_u32 v5, v4, 4, v5")
    e("s_mul_i32 s44, s2, %d" % (16 * 1280))
    e("s_lshl_b32 s45, s3, 8")
    e("s_add_u32 s44, s44, s45")
    for k in range(4):
        a.vm("x%d" % k, "buffer_load_dwordx4 v[%d:%d], v5, s[8:11], s44 offen offset:%d" % (16 + 4 * k, 19 + 4 * k, 64 * k))
    e("s_mul_i32 s54, s2, %d" % (48 * KB))
    e("s_add_u32 s54, s54, %d" % HB)
    e("v_lshlrev_b32 v60, 7, v0")
    e("v_min_u32 v61, 63, v0")
    e("v_lshlrev_b32 v61, 7, v61")
    e("v_lshlrev_b32 v6, 4, v2")
    e("s_mul_i32 s46, s2, %d" % (20 * KB))
    e("s_lshl_b32 s45, s3, 12")
    e("s_add_u32 s46, s46, s45")
    e("s_add_u32 s46, s46, %d" % X0)
    e("v_mov_b32 v48, 0")
    e("v_mov_b32 v49, 0")
    e("v_lshlrev_b32 v7, 2, v0")
    e("s_lshl_b32 s47, s2, 7")
    e("s_add_u32 s47, s47, %d" % FL)
    e("v_cmp_gt_u32 vcc, 32, v0")
    e("s_and_saveexec_b64 s[50:51], vcc")
    e("s_cbranch_execz prep_nz")
    e("buffer_store_dword v48, v7, s[4:7], s47 offen")
    a.label("prep_nz")
    e("s_mov_b64 exec, s[50:51]")
    e("s_waitcnt vmcnt(0)")
    a.vmq = []
    for k in range(4):
        e("buffer_store_dwordx4 v[%d:%d], v6, s[4:7], s46 offen offset:%d" % (16 + 4 * k, 19 + 4 * k, 1024 * k))
    e("buffer_load_dword v62, v60, s[4:7], s54 offen")
    e("s_add_u32 s54, s54, 40960")
    e("buffer_load_dword v63, v61, s[4:7], s54 offen")
    e("s_and_b32 s52, s2, 3")
    e("s_lshr_b32 s53, s2, 2")
    e("s_cmp_lg_u32 s52, 3")
    e("s_cbranch_scc1 prep_nh1")
    e("s_mul_i32 s46, s53, %d" % (20 * KB))
    e("s_lshl_b32 s45, s3, 12")
    e("s_add_u32 s46, s46, s45")
    e("s_add_u32 s46, s46, %d" % HX0)
    for k in range(4):
        e("buffer_store_dwordx4 v[%d:%d], v6, s[4:7], s46 offen offset:%d" % (16 + 4 * k, 19 + 4 * k, 1024 * k))
    a.label("prep_nh1")
    for r in range(16, 32):
        e("v_dot2_f32_bf16 v48, v%d, s60, v48" % r)
        e("v_dot2_f32_bf16 v49, v%d, v%d, v49" % (r, r))
    e("v_permlane16_swap_b32 v48, v49")
    e("v_add_f32 v48, v48, v49")
    e("v_mov_b32 v49, v48")
    e("v_permlane32_swap_b32 v48, v49")
    e("v_add_f32 v48, v48, v49")
    e("s_min_u32 s45, s3, 2")
    e("s_add_u32 s45, s45, 5")
    e("v_mov_b32 v8, s3")
    e("v_mov_b32 v9, s45")
    e("v_cmp_gt_u32 vcc, 32, v2")
    e("v_cndmask_b32 v8, v9, v8, vcc")
    e("v_cndmask_b32 v48, 0, v48, vcc")
    e("v_lshrrev_b32 v9, 1, v8")
    e("v_lshlrev_b32 v9, 8, v9")
    e("v_and_b32 v8, 1, v8")
    e("v_lshl_add_u32 v9, v8, 3, v9")
    e("v_lshl_add_u32 v9, v3, 4, v9")
    e("v_and_b32 v8, 1, v4")
    e("v_lshl_add_u32 v9, v8, 2, v9")
    e("s_lshl_b32 s45, s2, 10")
    e("s_add_u32 s45, s45, %d" % ST0)
    e("buffer_store_dword v48, v9, s[4:7], s45 offen")
    e("s_cmp_lg_u32 s52, 3")
    e("s_cbranch_scc1 prep_done")
    e("s_lshl_b32 s45, s53, 10")
    e("s_add_u32 s45, s45, %d" % HS0)
    e("buffer_store_dword v48, v9, s[4:7], s45 offen")
    a.label("prep_done")
    e("s_endpgm")
    a.raw(".p2align 3")
    a.raw(".type prep_table,@object")
    a.label("prep_table")
    t = table_words()
    for i in range(0, len(t), 8):
        a.raw("    .long " + ", ".join("0x%x" % v for v in t[i:i + 8]))
    a.raw(".size prep_table, %d" % (len(t) * 4))
    return a.text()
```

```python
import sys, os, json
sys.path.insert(0, os.path.dirname(os.path.abspath(__file__)))
from prep import gen_prep, PREP_WGS
from main import Gen, LDS_BYTES

NAME = "interleave_layers__sliding_local_dilated__dense_activation_squared_relu__prompt"

def kd(name, vgpr, accum, sgpr):
    return f""".p2align 6
.amdhsa_kernel {name}
  .amdhsa_next_free_vgpr {vgpr}
  .amdhsa_next_free_sgpr {sgpr}
  .amdhsa_accum_offset {accum}
  .amdhsa_group_segment_fixed_size 0
  .amdhsa_kernarg_size 88
  .amdhsa_user_sgpr_count 2
  .amdhsa_user_sgpr_kernarg_segment_ptr 1
  .amdhsa_system_sgpr_workgroup_id_x 1
  .amdhsa_float_denorm_mode_32 3
  .amdhsa_float_denorm_mode_16_64 3
.end_amdhsa_kernel
"""

def build(stamps=False, opts=None):
    g = Gen(stamps=stamps, opts=opts)
    main = g.build()
    prep = gen_prep("main_kernel", "main_end")
    hdr = open(os.path.join(os.path.dirname(os.path.abspath(__file__)), "..", "cdna_kernels", NAME + ".s.ref")).read().splitlines()
    hdr = [l for l in hdr[:12] if l.startswith(";") and "@launch" not in l]
    out = "\n".join(hdr) + "\n"
    out += "; Generated by a hand-written generator (gen/*.py): prep kernel + persistent main kernel.\n"
    out += f"; @launch kernel=prep_kernel grid=({PREP_WGS},1,1) block=(320,1,1) lds=1280\n"
    out += f"; @launch kernel=main_kernel grid=(256,1,1) block=(256,1,1) lds={LDS_BYTES}\n"
    out += '.amdgcn_target "amdgcn-amd-amdhsa--gfx950"\n.text\n'
    out += ".globl prep_kernel\n.p2align 8\n.type prep_kernel,@function\n" + prep
    out += ".globl main_kernel\n.p2align 8\n.type main_kernel,@function\n" + main
    out += '.section .rodata,"a"\n' + kd("prep_kernel", 64, 64, 80) + kd("main_kernel", 512, 256, 102)
    return out, g

if __name__ == "__main__":
    stamps = "--stamps" in sys.argv
    opts = {}
    for x in sys.argv[1:]:
        if x.startswith("--opt="):
            k, _, v = x[6:].partition(":")
            opts[k] = (int(v) if v.lstrip('-').isdigit() else v) if v else 1
    outp = [x for x in sys.argv[1:] if not x.startswith("--")]
    path = outp[0] if outp else os.path.join(os.path.dirname(os.path.abspath(__file__)), "..", "cdna_kernels", NAME + ".s")
    txt, g = build(stamps, opts)
    open(path, "w").write(txt)
    if stamps:
        json.dump(g.stamp_names, open(path + ".stamps.json", "w"))
    if "--log" in sys.argv:
        for nm, lg in (("A", g.log_a), ("B", g.log)):
            cur = None
            for key, d in lg:
                if key[0] != cur:
                    cur = key[0]; print("\n", nm, cur, end=": ")
                print(d, end=" ")
        print()
    print("wrote", path, "main instrs", g.a.nins, "nops", g.a.nnops, "left B queue", len(g.bq))
```

```python
import re

_REG_RE = re.compile(r"\b([vas])(?:(\d+)|\[(\d+):(\d+)\])")


def regs_of(tok):
    out = []
    for m in _REG_RE.finditer(tok):
        k = m.group(1)
        if m.group(2) is not None:
            out.append((k, int(m.group(2))))
        else:
            out += [(k, i) for i in range(int(m.group(3)), int(m.group(4)) + 1)]
    if re.search(r"\bvcc\b", tok):
        out += [("s", "vcc")]
    if re.search(r"\bm0\b", tok):
        out += [("s", "m0")]
    if re.search(r"\bexec\b", tok):
        out += [("s", "exec")]
    return out


TRANS = ("v_exp_f32", "v_log_f32", "v_rcp_f32", "v_rsq_f32", "v_sqrt_f32", "v_sin_f32", "v_cos_f32")


def split_ops(s):
    ops, depth, cur = [], 0, ""
    for ch in s:
        if ch in "[(":
            depth += 1
        if ch in "])":
            depth -= 1
        if ch == "," and depth == 0:
            ops.append(cur.strip())
            cur = ""
        else:
            cur += ch
    if cur.strip():
        ops.append(cur.strip())
    return ops


class Ins:
    __slots__ = ("text", "op", "kind", "defs", "uses", "srcc", "ab", "wide_store", "states", "dpp", "lds_dma")

    def __init__(self, text):
        self.text = text
        t = text.split(";")[0].strip()
        parts = t.split(None, 1)
        op = parts[0]
        rest = parts[1] if len(parts) > 1 else ""
        ops = split_ops(rest)
        self.op = op
        self.defs, self.uses = [], []
        self.srcc, self.ab = [], []
        self.wide_store = []
        self.states = 1
        self.dpp = False
        self.lds_dma = False
        if op == "s_nop":
            self.kind = "salu"
            self.states = int(rest, 0) + 1
        elif op.startswith("v_mfma"):
            self.kind = "mfma"
            self.defs = regs_of(ops[0])
            self.ab = regs_of(ops[1]) + regs_of(ops[2])
            self.srcc = regs_of(ops[3])
            self.uses = self.ab + self.srcc
        elif op.startswith("v_"):
            self.kind = "valu"
            self.dpp = "_dpp" in op or "quad_perm" in rest or "row_" in rest
            clean = [o.split(" ")[0] if not o.startswith("abs(") else o for o in ops]
            if op.startswith("v_cmp"):
                self.defs = regs_of(clean[0])
                self.uses = sum((regs_of(o) for o in clean[1:]), [])
            elif op.startswith("v_permlane") and "swap" in op:
                self.defs = regs_of(clean[0]) + regs_of(clean[1])
                self.uses = list(self.defs)
            elif op.startswith(("v_add_co", "v_sub_co", "v_addc_co", "v_subb_co")):
                self.defs = regs_of(clean[0]) + regs_of(clean[1])
                self.uses = sum((regs_of(o) for o in clean[2:]), [])
            else:
                self.defs = regs_of(clean[0])
                self.uses = sum((regs_of(o) for o in clean[1:]), [])
                if op.startswith(("v_fmac", "v_dot2c", "v_writelane")) or self.dpp:
                    self.uses += self.defs
        elif op.startswith("buffer_") or op.startswith("global_"):
            self.kind = "vmem"
            if op in ("buffer_wbl2", "buffer_inv"):
                pass
            elif " lds" in (" " + rest):
                self.lds_dma = True
                self.uses = sum((regs_of(o.split(" ")[0]) for o in ops), []) + [("s", "m0")]
            elif "load" in op:
                self.defs = regs_of(ops[0])
                self.uses = sum((regs_of(o.split(" ")[0]) for o in ops[1:]), [])
            else:
                self.uses = sum((regs_of(o.split(" ")[0]) for o in ops), [])
                if op.endswith("x4") or op.endswith("x3"):
                    self.wide_store = regs_of(ops[0] if op.startswith("buffer_") else ops[1])
        elif op.startswith("ds_"):
            self.kind = "ds"
            if op.startswith("ds_read") or op.startswith("ds_bpermute") or op.startswith("ds_swizzle"):
                self.defs = regs_of(ops[0])
                self.uses = sum((regs_of(o.split(" ")[0]) for o in ops[1:]), [])
            else:
                self.uses = sum((regs_of(o.split(" ")[0]) for o in ops), [])
        elif op.startswith("s_"):
            self.kind = "salu"
            if op.startswith(("s_cmp", "s_cbranch", "s_branch", "s_waitcnt", "s_barrier", "s_endpgm", "s_sleep",
                              "s_setprio", "s_bitcmp")):
                self.uses = sum((regs_of(o) for o in ops), [])
            else:
                self.defs = regs_of(ops[0]) if ops else []
                self.uses = sum((regs_of(o) for o in ops[1:]), [])
                if "saveexec" in op:
                    self.defs += [("s", "exec")]
        else:
            raise ValueError("unknown instruction " + text)


def _is_vreg(r):
    return r[0] in ("v", "a")


def need_states(p, c):
    n = 0
    pd, cu, cd = set(p.defs), set(c.uses), set(c.defs)
    if p.kind == "valu":
        vd = {r for r in pd if _is_vreg(r)}
        sd = pd - vd
        isdot = p.op.startswith("v_dot")
        if c.kind == "mfma" and vd & cu:
            n = max(n, 3 if isdot else 2)
        if c.kind == "valu":
            if vd & cu:
                if c.op.startswith("v_permlane"):
                    n = max(n, 2)
                if c.dpp:
                    n = max(n, 2)
                if c.op.startswith(("v_readlane", "v_readfirstlane")):
                    n = max(n, 1)
                if p.op.startswith(TRANS) and not c.op.startswith(TRANS):
                    n = max(n, 1)
                if p.op.startswith(TRANS) and c.op.startswith(TRANS):
                    n = max(n, 1)
            if sd & cu:
                n = max(n, 4 if c.op.startswith(("v_readlane", "v_writelane")) else 2)
        if isdot and (vd & (cu | cd)):
            if c.op == p.op:
                t = split_ops(c.text.split(None, 1)[1])
                ab = set(regs_of(t[1]) + regs_of(t[2]))
                if vd & ab:
                    n = max(n, 3)
            else:
                n = max(n, 3)
        if c.kind == "vmem" and sd & cu:
            n = max(n, 5)
        if c.kind == "salu" and sd & cu:
            n = max(n, 1)
    elif p.kind == "mfma":
        big = "32x32x16" in p.op
        rd, ov, war = (12, 10, 7) if big else (8, 6, 3)
        if c.kind == "mfma":
            if pd & set(c.ab):
                n = max(n, rd)
            if pd & set(c.srcc):
                n = max(n, 0 if (c.srcc == p.defs and c.op == p.op) else ov)
            elif pd & cd:
                n = max(n, ov)
        else:
            if pd & (cu | cd):
                n = max(n, rd)
            if c.kind == "valu" and set(p.srcc) & cd:
                n = max(n, war)
    elif p.kind == "salu":
        if ("s", "m0") in pd and c.lds_dma:
            n = max(n, 1)
    elif p.kind == "vmem":
        if p.wide_store and set(p.wide_store) & cd:
            n = max(n, 2)
    return n


class Asm:
    def __init__(self):
        self.lines = []
        self.hist = []
        self.vmq = []
        self.dsq = []
        self.nins = 0
        self.nnops = 0
        self._lab = 0
        self.whook = None
        self.t = 0

    def raw(self, s):
        self.lines.append(s)

    def comment(self, s):
        self.lines.append("    ; " + s)

    def newlabel(self, base="L"):
        self._lab += 1
        return "%s_%d" % (base, self._lab)

    def label(self, name):
        self.lines.append(name + ":")

    def fence_hazards(self, n=8):
        self.e("s_nop %d" % (n - 1))

    @staticmethod
    def after(t, ins):
        if ins.kind == "mfma":
            return 4
        if ins.kind == "salu":
            return t + 4 * ins.states
        c = 4
        if ins.op.startswith("ds_write_b128") or ins.op.startswith("ds_write_b96"):
            c = 24
        elif ins.op.startswith("ds_write"):
            c = 16
        elif ins.op.startswith(TRANS) or ins.kind == "vmem":
            c = 8
        return max(t, 8) + c

    def e(self, text):
        if text == "s_barrier" and self.whook:
            h, self.whook = self.whook, None
            h("b:bar")
            self.e(text)
            h("BARRIER")
            self.whook = h
            return
        ins = Ins(text)
        dist = 0
        need = 0
        for p in reversed(self.hist):
            r = need_states(p, ins)
            if r > dist:
                need = max(need, r - dist)
            dist += p.states
            if dist >= 16:
                break
        if need > 0:
            nop = Ins("s_nop %d" % (need - 1))
            self.lines.append("    " + nop.text)
            self.hist.append(nop)
            self.nnops += 1
            self.t += 4 * nop.states
        self.lines.append("    " + text)
        self.hist.append(ins)
        if len(self.hist) > 40:
            self.hist = self.hist[-24:]
        self.nins += 1
        self.t = self.after(self.t, ins)
        return ins

    def vm(self, tag, text):
        self.e(text)
        self.vmq.append(tag)

    def ds(self, tag, text):
        self.e(text)
        self.dsq.append(tag)

    @staticmethod
    def _pos(q, tags):
        if not isinstance(tags, (list, tuple, set)):
            tags = [tags]
        last = -1
        for i, t in enumerate(q):
            if t in tags:
                last = i
        return last

    def wait(self, vm=None, ds=None):
        parts = []
        if vm is not None:
            i = self._pos(self.vmq, vm)
            if i >= 0:
                n = len(self.vmq) - 1 - i
                parts.append("vmcnt(%d)" % min(n, 63))
                self.vmq = self.vmq[i + 1:]
        if ds is not None:
            i = self._pos(self.dsq, ds)
            if i >= 0:
                n = len(self.dsq) - 1 - i
                parts.append("lgkmcnt(%d)" % min(n, 15))
                self.dsq = self.dsq[i + 1:]
        if parts:
            isvm = parts[0].startswith("vmcnt")
            if isvm and self.whook:
                self.whook("b:%s" % (vm,))
            self.e("s_waitcnt " + " ".join(parts))
            if isvm and self.whook:
                self.whook("WAIT:%s" % (str(vm)[:40],))

    def wait_all(self, vm=False, ds=False, force=False):
        parts = []
        if vm and (self.vmq or force):
            parts.append("vmcnt(0)")
            self.vmq = []
        if ds and (self.dsq or force):
            parts.append("lgkmcnt(0)")
            self.dsq = []
        if parts:
            self.e("s_waitcnt " + " ".join(parts))

    def text(self):
        return "\n".join(self.lines) + "\n"
```

```python
import struct
from asmlib import Asm, Ins
from layout import *

LDS_BYTES_ = 163840
L_CT = 0
L_A = 4096
L_HALO = L_A + 81920
L_RED = L_A + 81920
L_EX = L_A + 102400
L_E3 = L_A + 102400
L_ST = 2048
STAGE = [L_HALO + 4096 * j for j in range(5)] + [L_E3 + 24576 + 4096 * j for j in range(8)]
LDS_BYTES = 163840
EXS = 264
EXT = 16 * EXS
SBH = 64 * 48 * KB

(vL0, vL1, vL2, vAh, vFl, vP3a, vP3b, vXw0, vX32, vXp, vXc, vXv, vM0, vM1, vM2, vM3, vSl, vE3w, vE3r,
 vRw1, vRw2, vRw3, vRr, vG, vHalf, vHh, vHf, vSt, vPoll, vT0, vT1, vT2, vAk, vHst) = range(1, 35)
vSg0, vSg1 = 35, vHst
vRes = 36
W0 = 48
vStamp = 255

sWS, sOUT, sXA, sXB, sCode = "s[4:7]", "s[8:11]", "s[12:15]", "s[16:19]", "s[20:23]"
sW, sC, sM, sCG, sMode, sSpin, sOnes, sFlBase, sFlOwn, sBcur = range(24, 34)
sMask16, sMaskA, sMaskB, sMask8, sMaskX, sOdd, sPA, sPB, sG0, sPAx, sPBx, sTmp2, sStamp = range(34, 60, 2)
sWOb, sW1b, sW2b, sScale, sInv640, sEps, sNeg, sRtA, sRtT, sK256 = range(60, 70)
SP3 = {0: 70, 1: 71, 2: 72, 3: 73}
sR2, sR4 = 74, 78
sX1, sX3, sWk, sHsrc, sHst, sHfl, sD0 = range(82, 89)
sA0, sA1, sA2, sA3 = range(89, 93)
sOd, sHd, sXd0, sXdh, sStd, sSta, sWQ, sXcc, sXT = range(93, 102)
sHo = [sWQ, sXcc, sXT, 3]
sFlip = 1
sW128 = 0


def fbits(x):
    return struct.unpack("<I", struct.pack("<f", x))[0]


def q(r):
    if isinstance(r, int):
        r = ("v", r)
    return "%s[%d:%d]" % (r[0], r[1], r[1] + 3)


def p2(n):
    return "v[%d:%d]" % (n, n + 1)


def sp(n):
    return "s[%d:%d]" % (n, n + 1)


class Op:
    def __init__(self, kind, fn, cost=4):
        self.kind, self.fn, self.cost = kind, fn, cost


def S_(fn):
    return Op("s", fn)


def V_(fn, cost=4):
    return Op("v", fn, cost)


def B_(fn):
    return Op("b", fn)


def Z_(fn):
    return Op("z", fn, 0)


class Load:
    def __init__(self, tag, pre, issue):
        self.tag, self.pre, self.issue = tag, list(pre), issue
        self.npre = len(self.pre)


class Core:
    def __init__(self, stamps=False, opts=None):
        self.a = Asm()
        self.stamps = stamps
        self.nstamp = 0
        self.stamp_names = []
        self.opts = opts or {}
        self.typ = 0
        self.reset_state()

    def reset_state(self):
        self.free = [("a", n) for n in range(160, 256, 4)] + [("v", n) for n in range(248 if self.stamps else 252, 172, -4)]
        self.retire = set()
        self.bq = []
        self.breg = {}
        self.bgroup = None
        self.b_stop = None
        self.b_on = False
        self.stream = []
        self.credit = 0
        self.fcredit = 0
        self.period = 64
        self.deadline = {}
        self.urgent = set()
        self.now = 0
        self.gap = 0
        self.cold = []
        self.bg = []
        self.hurry = 10 ** 9
        self.marks = set()
        self.timed = []
        self.minlead = None
        self.unit = 0
        self.gapdt = 16
        self.glen = 16
        self.bmin = 0
        self.stage_free = []
        self.sq = []
        self.unstage = False
        self.from_lds = set()
        self.bissue = {}
        self.log = []

    def opt(self, k, d):
        return self.opts.get(k, d)

    def e(self, t):
        return self.a.e(t)

    def ev(self, t, dt=5):
        self.a.e(t)
        self.advance(dt)
        self.try_load()

    def stamp(self, name, fine=False):
        if not fine:
            self.a.raw("    ; @@" + name)
        if not self.stamps:
            return
        ws = self.opts.get("wst")
        if ws is not None:
            if name == ws + "_begin":
                self.a.whook = self.wstamp
            elif name == ws + "_end":
                self.a.whook = None
            elif name != "start":
                return
            self.wstamp(name)
            return
        only = self.opts.get("only")
        if only is not None:
            if name != "start" and not name.startswith(only):
                return
        elif fine:
            return
        self.a.wait_all(ds=True)
        self.e("s_memtime %s" % sp(sStamp))
        self.e("s_waitcnt lgkmcnt(0)")
        self.e("v_writelane_b32 v%d, s%d, %d" % (vStamp, sStamp, self.nstamp))
        if self.typ == 0:
            self.stamp_names.append(name)
        self.nstamp += 1

    def wstamp(self, name):
        if self.nstamp >= 61:
            return
        self.a.dsq = []
        self.e("s_memtime %s" % sp(sStamp))
        self.e("s_waitcnt lgkmcnt(0)")
        self.e("v_writelane_b32 v%d, s%d, %d" % (vStamp, sStamp, self.nstamp))
        if self.typ == self.opt("wtyp", 0) or name == "start":
            self.stamp_names.append("%02d u%d %s" % (self.nstamp, self.unit, name))
        self.nstamp += 1

    def rstamp(self, lane):
        if not self.stamps:
            return
        self.a.wait_all(ds=True)
        self.e("s_memrealtime %s" % sp(sStamp))
        self.e("s_waitcnt lgkmcnt(0)")
        self.e("v_writelane_b32 v%d, s%d, %d" % (vStamp, sStamp, lane))

    def mfma(self, d, wa, xb, first=False):
        self.e("v_mfma_f32_16x16x32_bf16 %s, %s, %s, %s" % (q(d), q(wa), q(xb), "0" if first else q(d)))

    def mfma32(self, d, wa, xb, first=False):
        dd = "v[%d:%d]" % (d, d + 15)
        self.e("v_mfma_f32_32x32x16_bf16 %s, %s, %s, %s" % (dd, q(wa), q(xb), "0" if first else dd))

    @staticmethod
    def voff(i):
        return (vL0, vL1, vL2)[i >> 2], (i & 3) * 1024

    def cur_period(self):
        if self.stream and self.stream[0].tag in self.urgent:
            return self.opt("uper", 32)
        if self.minlead is not None:
            ds = []
            if self.stream and self.stream[0].tag in self.deadline:
                ds.append(self.deadline[self.stream[0].tag])
            if self.b_ready() and self.bq[0][0] in self.deadline:
                ds.append(self.deadline[self.bq[0][0]])
            if ds and min(ds) - self.unit < self.minlead:
                return 16
        return self.period

    def advance(self, dt):
        self.now += dt
        self.credit = min(self.credit + dt, self.cur_period() + 24)
        self.fcredit = min(self.fcredit + dt, self.bmin + 40 if self.bmin else self.opt("fcap", 900))

    def b_ready(self):
        return bool(self.bq and (self.free or self.stage_free) and (self.b_stop is None or self.bq[0][0][0] == self.b_stop))

    def bcost(self):
        c = self.opt("w1cost", 140) if self.bq[0][0][0][0] == "W1" else self.opt("wcost", 72)
        return max(c, self.bmin)

    def pick_load(self):
        if self.credit < self.cur_period():
            return None
        if self.b_ready():
            db = self.deadline.get(self.bq[0][0])
            if db is not None:
                if (not self.stream) or db < self.deadline.get(self.stream[0].tag, -1):
                    return "b"
            elif self.b_on and self.fcredit >= self.bcost() and (
                    not self.stream or (self.opt("bmix", 0) and self.stream[0].tag not in self.urgent)):
                return "b"
        return "s" if self.stream else None

    def issue_head(self):
        ld = self.stream.pop(0)
        for t in ld.pre:
            self.e(t)
        ld.issue()

    def try_load(self):
        k = self.pick_load()
        if k is None:
            return False
        per = self.cur_period()
        if k == "b":
            self.bpref(1)
        else:
            self.issue_head()
        self.credit -= per
        return True

    def flush(self, upto=None, n=None):
        if n is None:
            if upto is None:
                n = len(self.stream)
            else:
                n = max([i + 1 for i, ld in enumerate(self.stream) if ld.tag in upto] or [0])
        n = min(n, len(self.stream))
        for _ in range(n):
            self.issue_head()

    def push_front(self, items):
        self.stream[1:1] = items

    def vwait(self, tags):
        self.flush(upto=tags)
        self.a.wait(vm=tags)

    def queue_b(self, name, base, n):
        self.bq += [((name, i), base, i) for i in range(n)]

    def b_pre(self):
        key, base, i = self.bq[0]
        if self.bgroup != (base, i // 12):
            return "s_add_u32 s%d, s%d, %d" % (sBcur, base, (i // 12) * 12288)
        return None

    def b_do_pre(self):
        t = self.b_pre()
        if t:
            self.e(t)
            self.bgroup = (self.bq[0][1], self.bq[0][2] // 12)

    def bpref(self, n=1):
        done = 0
        while done < n and self.b_ready():
            self.fcredit = max(self.fcredit - self.bcost(), -400)
            self.b_do_pre()
            if not self.free:
                if self.stream and len(self.stream[0].pre) < self.stream[0].npre:
                    self.issue_head()
                key, base, i = self.bq.pop(0)
                assert key[0][0] == "W2"
                slot = self.stage_free.pop(0)
                vo, imm = self.voff(i % 12)
                self.e("s_add_u32 m0, s%d, %d" % (sWk, STAGE[slot] - imm))
                if not self.opt("x_nob", 0):
                    self.a.vm(key, "buffer_load_dwordx4 v%d, %s, s%d offen offset:%d lds" % (vo, sWS, sBcur, imm))
                self.sq.append((key, slot))
                done += 1
                continue
            key, base, i = self.bq.pop(0)
            r = self.free.pop(0)
            self.breg[key] = r
            self.bissue[key] = self.now
            vo, imm = self.voff(i % 12)
            nt = " nt" if key[0][0] in str(self.opt("nt", "")).split("+") else ""
            if not self.opt("x_nob", 0):
                self.a.vm(key, "buffer_load_dwordx4 %s, v%d, %s, s%d offen offset:%d%s" % (q(r), vo, sWS, sBcur, imm, nt))
            done += 1
        return done

    def bget(self, keys):
        for key in keys:
            if key in self.from_lds:
                self.need(("un", key))
            while key not in self.breg:
                assert all(k != key for k, _ in self.sq), "staged fragment %s has no register" % (key,)
                assert self.bpref(1), "no free register for %s" % (key,)
            if key in self.bissue:
                self.log.append((key, self.now - self.bissue.pop(key)))
        self.a.wait(vm=list(keys), ds=[k for k in keys if k in self.from_lds])
        return [self.breg[k] for k in keys]

    def bfree(self, key):
        r = self.breg.pop(key)
        if self.unstage and self.sq:
            k2, slot = self.sq.pop(0)
            self.breg[k2] = r
            self.from_lds.add(k2)
            base, off = (vSg0, STAGE[slot] - STAGE[0]) if slot < 5 else (vSg1, STAGE[slot] - STAGE[5])
            self.bg += [S_(lambda: self.a.wait(vm=[k2])),
                        V_(lambda: self.a.ds(k2, "ds_read_b128 %s, v%d offset:%d" % (q(r), base, off))),
                        self.mark(("un", k2))]
            return
        if r not in self.retire:
            self.free.append(r)

    LEND = [("v", W0 + 116 + 4 * i) for i in range(3)]

    def lend(self):
        self.retire = set()
        self.free = self.LEND + self.free

    def unlend(self):
        self.retire = set(self.LEND)
        self.free = [r for r in self.free if r not in self.retire]

    def poll_issue(self, soff=sFlBase):
        self.a.vm("poll", "buffer_load_dword v%d, v%d, %s, s%d offen sc1" % (vPoll, vFl, sWS, soff))

    def poll_check(self, target, mask, soff=sFlBase, acquire=True):
        a = self.a
        again, top, acq, dn = a.newlabel("pollr"), a.newlabel("poll"), a.newlabel("acq"), a.newlabel("polld")
        a.wait(vm=["poll"])
        a.label(top)
        self.e("v_cmp_le_u32 vcc, %s, v%d" % (target, vPoll))
        self.e("s_andn2_b64 %s, %s, vcc" % (sp(sTmp2), sp(mask)))
        self.e("s_cbranch_scc1 %s" % again)
        self.cold += [again + ":",
                      "    buffer_load_dword v%d, v%d, %s, s%d offen sc1" % (vPoll, vFl, sWS, soff),
                      "    s_sub_u32 s%d, s%d, 1" % (sSpin, sSpin),
                      "    s_waitcnt vmcnt(0)",
                      "    s_cbranch_scc0 %s" % top,
                      "    s_endpgm"]
        if acquire:
            self.e("s_cmp_lg_u32 s%d, 0" % sMode)
            self.e("s_cbranch_scc1 %s" % acq)
            a.label(dn)
            self.cold += [acq + ":", "    buffer_inv sc1", "    s_waitcnt vmcnt(0)", "    s_branch %s" % dn]

    def poll(self, target, mask, soff=sFlBase, acquire=True):
        self.poll_issue(soff)
        self.poll_check(target, mask, soff, acquire)

    def publish(self, value, tags=("st",)):
        a = self.a
        slow, dn = a.newlabel("pubs"), a.newlabel("pubd")
        self.e("v_mov_b32 v%d, %d" % (vT0, value))
        self.e("s_mov_b64 exec, 1")
        self.e("s_cmp_lg_u32 s%d, 0" % sMode)
        a.wait(vm=list(tags))
        self.e("s_cbranch_scc1 %s" % slow)
        self.e("buffer_store_dword v%d, off, %s, s%d" % (vT0, sWS, sFlOwn))
        a.label(dn)
        self.cold += [slow + ":", "    buffer_wbl2 sc1", "    s_waitcnt vmcnt(0)",
                      "    buffer_store_dword v%d, off, %s, s%d sc1" % (vT0, sWS, sFlOwn), "    s_branch %s" % dn]
        a.vmq.append("flag")
        self.e("s_mov_b64 exec, -1")

    def mark(self, name):
        self.marks.discard(name)
        return Z_(lambda: self.marks.add(name))

    def run_op(self, x, paced=False):
        if isinstance(x, int):
            return
        if isinstance(x, Op):
            x.fn()
            if paced:
                self.advance(max(x.cost, 4))
                self.try_load()
        elif paced:
            self.ev(x)
        elif not self.opt("x_nobg", 0):
            self.e(x)

    def later(self, gaps, fn):
        self.timed.append([gaps, fn])

    def need(self, name):
        while name not in self.marks:
            self.run_op(self.bg.pop(0))

    def drain_bg(self):
        self.gap = 0
        while self.bg:
            self.run_op(self.bg.pop(0), paced=True)
        while self.timed:
            self.timed.pop(0)[1]()

    def fits(self, x, limit):
        t = self.a.t
        if isinstance(x, Op):
            if x.kind == "z":
                return True
            if x.kind == "b":
                return t <= limit - 12
            if x.kind == "s":
                return t + 4 <= limit
            return max(t, 8) + min(x.cost, 8) <= limit
        return Asm.after(t, Ins(x)) <= limit

    @staticmethod
    def is_scalar(x):
        if isinstance(x, Op):
            return x.kind in ("s", "z")
        return isinstance(x, str) and x.startswith("s_")

    def fill_gap(self, must_s=None, must_v=None):
        a = self.a
        self.advance(self.gapdt)
        limit = (self.opt("lim32", 28) if self.glen == 32 else 16) + (4 if len(self.bg) > self.hurry else 0) + (4 if len(self.bg) > 2 * self.hurry else 0)
        blocked = self.gap > 0
        if blocked:
            self.gap -= 1
        for x in self.timed:
            x[0] -= 1
        if self.timed and self.timed[0][0] <= 0:
            self.timed.pop(0)[1]()
        if must_s:
            must_s()
        while a.t <= 4:
            if self.stream and self.stream[0].pre:
                self.e(self.stream[0].pre.pop(0))
            elif self.bq and self.b_pre() and (self.b_on or self.deadline):
                self.b_do_pre()
            elif self.bg and not blocked and not isinstance(self.bg[0], int) and \
                    (self.is_scalar(self.bg[0]) or (isinstance(self.bg[0], Op) and self.bg[0].kind == "b")):
                self.run_op(self.bg.pop(0))
            else:
                break
        if must_v:
            must_v()
        k = self.pick_load()
        if k and max(a.t, 8) + 8 <= limit:
            npre = len(self.stream[0].pre) if k == "s" else (1 if self.b_pre() else 0)
            if npre == 0 or self.credit >= self.cur_period() + 16 or (self.glen > 16 and max(a.t, 8) + 8 + 4 * npre <= limit):
                self.try_load()
        while self.bg and not blocked:
            x = self.bg[0]
            if isinstance(x, int):
                self.bg.pop(0)
                self.gap = (x * 16 + self.glen - 1) // self.glen
                if x == 0 and self.glen > 16:
                    continue
                break
            if not self.fits(x, limit):
                break
            self.run_op(self.bg.pop(0))

    def unit_loop(self, n, read, compute, look, pre_read=None, pre_unit=None, wait_every=1, name="", every=4):
        a = self.a
        pre_read = pre_read or {}
        pre_unit = pre_unit or {}

        def rd(u):
            if u in pre_read:
                pre_read[u]()
            a.ds(("U", u), read(u))

        def wt(u):
            if u < n and u % wait_every == 0:
                a.wait(ds=[("U", min(u + wait_every - 1, n - 1))])

        for u in range(min(look, n)):
            rd(u)
        for u in range(n):
            self.unit = u
            if u % every == 0:
                self.stamp("%s_u%d" % (name, u), fine=True)
            if u in pre_unit:
                pre_unit[u]()
            ms = compute(u)
            wt(u)
            for j, m in enumerate(ms):
                m()
                self.fill_gap(must_s=(lambda: wt(u + 1)) if j == len(ms) - 1 else None,
                              must_v=(lambda: rd(u + look)) if (j == 0 and u + look < n) else None)
```

```python
KB = 1024
S, D, F = 2048, 640, 1536

_off = 0


def _alloc(n, align=4096):
    global _off
    _off = (_off + align - 1) // align * align
    r = _off
    _off += n
    return r


WQ = _alloc(16 * 4 * 20 * 2 * KB)
WO = _alloc(8 * 4 * 5 * 5 * KB)
W1 = _alloc(16 * 4 * 10 * 3 * KB)
W2 = _alloc(8 * 4 * 12 * 5 * KB)
X0 = _alloc(128 * 20 * KB)
X1 = X2 = X0
HB = _alloc(128 * 48 * KB)
OB = HB
ST0 = _alloc(128 * KB)
ST1 = ST2 = ST0
HX = _alloc(32 * 20 * KB)
HS = _alloc(32 * KB)
HX0 = _alloc(32 * 20 * KB)
HS0 = _alloc(32 * KB)
CG = _alloc(5 * 16 * 2 * KB)
CB2 = _alloc(8 * 512)
FL = _alloc(16 * KB)
FLAG = FL
XT = FL + 4096
HFL = FL + 8192
DBG = _alloc(1024 * 256)
WS_USED = _alloc(0)


def wq_col(n):
    region, nn = divmod(n, 640)
    m, f = divmod(nn, 40)
    e = {0: 40 + f, 1: f, 2: 80 + f}[region]
    w, slot = e >> 5, e & 31
    return WQ + (m * 4 + w) * 40 * KB + slot * 16, CG + m * 2048 + e * 4


W1_TILE = {0: (0, 0), 1: (0, 1), 2: (0, 2), 3: (1, 2), 4: (1, 0), 5: (1, 1)}


def w1_col(n):
    m, f = divmod(n, 96)
    p, u = f >> 5, f & 31
    g, h, r = u >> 3, (u >> 2) & 1, u & 3
    ch, ct = W1_TILE[2 * p + h]
    slot = 4 * g + r
    idx = (ch * 3 + ct) * 16 + slot
    return W1 + (m * 4 + ch * 2) * 30 * KB + ct * KB + slot * 16, CG + m * 2048 + (120 + idx) * 4


def x_col(n):
    kx, u = n >> 5, n & 31
    g, h, r = u >> 3, (u >> 2) & 1, u & 3
    uu, v = divmod(kx, 5)
    if v < 2:
        cg, ct = 2 * uu, 2 * v + h
    elif v == 2:
        cg, ct = 2 * uu + h, 4
    else:
        cg, ct = 2 * uu + 1, 2 * (v - 3) + h
    return cg, ct, 4 * g + r


def wo_col(n):
    cg, ct, slot = x_col(n)
    return WO + cg * 100 * KB + ct * KB + slot * 16, 0


def w2_col(n):
    cg, ct, slot = x_col(n)
    return W2 + cg * 240 * KB + ct * KB + slot * 16, CB2 + cg * 512 + (ct * 16 + slot) * 4


def o_feature(q, j):
    m, i = divmod(q, 5)
    return 40 * m + 4 * i + (j & 3) + 20 * (j >> 2)


def tile_of_storage(rt):
    c, i, sb = (rt & 63) >> 2, rt & 3, rt >> 6
    return 8 * c + (i + 1 if sb == 0 else (0 if i == 0 else 4 + i))
```

```python
import math
from core import *


class Gen(Core):
    def dma(self, tag, srd, soff, vo=vL0, imm=0):
        def f():
            if not self.opt("x_nodma", 0):
                self.a.vm(tag, "buffer_load_dwordx4 v%d, %s, %s offen offset:%d%s lds" % (vo, srd, soff, imm, self.opt("dmaf", " sc1").replace("_", " ")))
        return f

    def items_p1(self, sb, half, tag, shift=0):
        out = []
        for j in range(5):
            for z in range(2):
                off = half * 40960 + j * 4096 + z * 1024
                pre = ["s_add_u32 m0, s%d, %d" % (sX1, L_A + off + shift)]
                if shift:
                    pre.append("s_add_u32 s%d, s%d, %d" % (sD0, sX1, L_A + off))
                out.append(Load((tag, half, j), pre, self.dma((tag, half, j), (sXA, sXB)[sb], "s%d" % sD0 if shift else "m0")))
        return out

    def items_p3(self, sb, i, tag):
        return [Load((tag, i, j), ["s_add_u32 m0, s%d, %d" % (SP3[i], L_A + j * 4096)],
                     self.dma((tag, i, j), (sXA, sXB)[sb], "m0")) for j in range(5)]

    def items_halo(self):
        out = [Load("SH", [], lambda: self.a.vm("SH", "buffer_load_dwordx4 %s, v%d, %s, s%d offen sc1" %
                                                (q(self.RAW + 4), vL0, sWS, sHst)))]
        for j in range(5):
            pre = ["s_add_u32 m0, s%d, %d" % (sWk, L_HALO + 4096 * j)]
            if j == 3:
                pre.append("s_add_u32 s%d, s%d, 12288" % (sHsrc, sHsrc))
            out.append(Load(("H", j), pre, self.dma(("H", j), sWS, "s%d" % sHsrc, (vL0, vL1, vL2)[j % 3])))
        return out

    def items_stats(self, sb, raw=None):
        return [Load(("S", sb), ["s_add_u32 s%d, s%d, %d" % (sD0, sSta, sb * 65536)],
                     lambda: self.a.vm(("S", sb), "buffer_load_dwordx4 %s, v%d, %s, s%d offen sc1" % (q(raw or self.RAW), vL0, sWS, sD0)))]

    def pk_order(self, is4):
        NK = 12 if is4 else 5
        head = NK - self.opt("p4tail", 4) if is4 else self.opt("p2head", 2)
        order = [(i, k) for k in range(head) for i in (1, 2, 3, 0)]
        if head >= 2:
            order.remove((0, 0))
            order.insert(order.index((0, 1)), (0, 0))
        order += [(i, k) for i in (1, 2, 3, 0) for k in range(head, NK)]
        return order

    def item_pk(self, is4, n):
        i, k = self.pk_order(is4)[n]
        vo, imm = self.voff(k)
        return Load(("Ak", n), ["s_add_u32 m0, s%d, %d" % (sX3, L_A + (n % 20) * 1024 - imm)],
                    self.dma(("Ak", n), sWS, "s%d" % ((sR4 if is4 else sR2) + i), vo, imm))

    def item_touch(self, nlines, mstride):
        pre = ["v_lshrrev_b32 v%d, 2, v%d" % (vT2, vFl),
               "v_and_b32 v%d, 31, v%d" % (vT1, vT2),
               "v_min_u32 v%d, %d, v%d" % (vT1, nlines - 1, vT1),
               "v_lshlrev_b32 v%d, 7, v%d" % (vT1, vT1),
               "v_lshrrev_b32 v%d, 5, v%d" % (vT2, vT2),
               "s_mov_b32 s%d, %d" % (sD0, SBH),
               "v_mad_u32_u24 v%d, v%d, s%d, v%d" % (vT1, vT2, sD0, vT1),
               "s_mul_i32 s%d, s%d, %d" % (sD0, sM, mstride - 1280),
               "s_add_u32 s%d, s%d, s%d" % (sD0, sD0, sOd)]
        return Load("touch", pre, lambda: self.a.vm("touch", "buffer_load_dword v0, v%d, %s, s%d offen" % (vT1, sWS, sD0)))

    def item_code(self):
        pre = ["s_lshl_b32 s%d, s%d, 2" % (sD0, sCG),
               "s_add_u32 s%d, s%d, s%d" % (sD0, sD0, sW),
               "s_lshl_b32 s%d, s%d, 11" % (sD0, sD0),
               "v_lshlrev_b32 v%d, 5, v%d" % (vT1, vFl),
               "v_and_b32 v%d, 0x780, v%d" % (vT1, vT1)]
        return Load("touch", pre, lambda: self.a.vm("touch", "buffer_load_dword v0, v%d, %s, s%d offen" % (vT1, sCode, sD0)))

    def halo_src(self, layer):
        o = ["s_sub_u32 s%d, s%d, %d" % (sHst, sC, layer),
             "s_max_i32 s%d, s%d, 0" % (sHst, sHst)]
        if layer == 1:
            o += ["s_lshl_b32 s%d, s%d, 7" % (sHfl, sHst), "s_add_u32 s%d, s%d, %d" % (sHfl, sHfl, HFL)]
        o += ["s_mul_i32 s%d, s%d, %d" % (sHsrc, sHst, 20 * KB),
              "s_add_u32 s%d, s%d, %d" % (sHsrc, sHsrc, HX if layer else HX0),
              "s_add_u32 s%d, s%d, s%d" % (sHsrc, sHsrc, sWk),
              "s_lshl_b32 s%d, s%d, 10" % (sHst, sHst),
              "s_add_u32 s%d, s%d, %d" % (sHst, sHst, HS if layer else HS0)]
        return o

    def stats_ops(self, raw, dst):
        r = raw
        return [
            "v_add_f32 v%d, v%d, v%d" % (r, r, r + 2),
            "v_add_f32 v%d, v%d, v%d" % (r + 1, r + 1, r + 3), 0,
            "v_permlane16_swap_b32 v%d, v%d" % (r, r + 1),
            "v_add_f32 v%d, v%d, v%d" % (r, r, r + 1),
            "v_mov_b32 v%d, v%d" % (r + 1, r), 0,
            "v_permlane32_swap_b32 v%d, v%d" % (r, r + 1),
            "v_add_f32 v%d, v%d, v%d" % (r, r, r + 1),
            "v_mov_b32 v%d, v%d" % (r + 1, r), 0,
            "v_permlane16_swap_b32 v%d, v%d" % (r, r + 1),
            "v_mul_f32 v%d, s%d, v%d" % (dst, sInv640, r),
            "v_mul_f32 v%d, s%d, v%d" % (r + 1, sInv640, r + 1),
            "v_fma_f32 v%d, -v%d, v%d, v%d" % (r + 1, dst, dst, r + 1),
            "v_max_f32 v%d, 0, v%d" % (r + 1, r + 1),
            "v_add_f32 v%d, s%d, v%d" % (r + 1, sEps, r + 1),
            "v_rsq_f32 v%d, v%d" % (dst + 1, r + 1),
        ]

    def stats_share(self, sb, raw=None):
        r = raw or (self.RAW + (4 if sb == 2 else 0))
        if sb == 2:
            ad = ["s_lshr_b32 s%d, s%d, 1" % (sA2, sK256), "v_add_u32 v%d, s%d, v%d" % (r, sA2, vSl)]
        else:
            ad = ["v_add_u32 v%d, s%d, v%d" % (r, sW128, vSl)]
        return ([S_(lambda: self.vwait(["SH" if sb == 2 else ("S", sb)]))] + self.stats_ops(r, r + 2) + ad +
                [V_(lambda: self.a.ds("sw", "ds_write_b64 v%d, %s offset:%d" % (r, p2(r + 2), sb * 512)), 16)])

    def DS(self, tag, txt, cost=4):
        return V_(lambda: self.a.ds(tag, txt), cost)

    def WD(self, tags):
        return S_(lambda: self.a.wait(ds=tags))

    def prologue(self):
        a, e, ev = self.a, self.e, self.ev
        e("s_cmp_ge_u32 s2, 256")
        e("s_cbranch_scc0 main_go")
        e("s_endpgm")
        a.label("main_go")
        e("s_load_dwordx2 s[4:5], s[0:1], 0x50")
        e("s_load_dwordx2 s[8:9], s[0:1], 0x40")
        lane, tok, g, t0, t1 = W0 + 112, W0 + 113, W0 + 114, W0 + 115, W0 + 116
        vq1 = W0 + 117
        e("v_lshrrev_b32 v%d, 6, v0" % vT0)
        e("v_and_b32 v%d, 63, v0" % lane)
        e("v_readfirstlane_b32 s%d, v%d" % (sW, vT0))
        e("v_lshlrev_b32 v%d, 4, v%d" % (vL0, lane))
        e("s_mov_b32 s6, %d" % WS_USED)
        e("s_mov_b32 s7, 0x20000")
        e("s_mov_b32 s10, %d" % (S * D * 2))
        e("s_mov_b32 s11, 0x20000")
        e("s_mov_b32 s14, %d" % (L_A + 80 * KB))
        e("s_mov_b32 s15, 0x20000")
        e("s_mov_b32 s18, %d" % (L_A + 80 * KB))
        e("s_mov_b32 s19, 0x20000")
        e("s_and_b32 s%d, s2, 7" % sC)
        e("s_lshl_b32 s%d, s%d, 1" % (sC, sC))
        e("s_lshr_b32 s%d, s2, 7" % sA0)
        e("s_add_u32 s%d, s%d, s%d" % (sC, sC, sA0))
        e("s_bfe_u32 s%d, s2, 0x40003" % sM)
        e("s_lshl_b32 s%d, s%d, 2" % (sRtA, sC))
        e("s_mul_i32 s%d, s%d, %d" % (sD0, sC, 80 * KB))
        e("s_add_u32 s%d, s%d, %d" % (sD0, sD0, X0 - L_A))
        e("s_lshl_b32 s%d, s%d, 10" % (sWk, sW))
        e("s_and_b32 s%d, s%d, 1" % (sA0, sW))
        e("s_mul_i32 s%d, s%d, 20480" % (sX1, sA0))
        e("s_and_b32 s%d, s%d, 2048" % (sA0, sWk))
        e("s_add_u32 s%d, s%d, s%d" % (sX1, sX1, sA0))
        e("s_lshl_b32 s%d, s%d, 2" % (sA3, sM))
        e("s_add_u32 s%d, s%d, s%d" % (sA3, sA3, sW))
        e("s_mul_i32 s%d, s%d, %d" % (sWQ, sA3, 40 * KB))
        e("s_cmp_eq_u32 s%d, 3" % sW)
        e("s_cselect_b32 s%d, 128, 0" % sA1)
        e("v_lshrrev_b32 v%d, 1, v%d" % (vq1, vL0))
        e("v_and_b32 v%d, v%d, v%d" % (vq1, vq1, vL0))
        e("v_and_b32 v%d, s%d, v%d" % (vq1, sA1, vq1))
        e("v_sub_u32 v%d, v%d, v%d" % (vq1, vL0, vq1))
        e("v_add_u32 v%d, 4096, v%d" % (vL1, vL0))
        e("v_add_u32 v%d, 4096, v%d" % (vL2, vL1))
        e("s_waitcnt lgkmcnt(0)")
        e("s_add_u32 s12, s4, s%d" % sD0)
        e("s_addc_u32 s13, s5, 0")
        e("s_add_u32 s16, s12, %d" % (64 * 20 * KB))
        e("s_addc_u32 s17, s13, 0")
        self.rstamp(62)
        self.stamp("start")
        assert WQ == 0
        h0, h1, hb = self.items_p1(0, 0, "A0"), self.items_p1(0, 1, "A0"), self.items_p1(1, 0, "A1", shift=81920)

        def wq(ks, t):
            pre = ["s_add_u32 s%d, s%d, 4096" % (sWQ, sWQ)] if (t == 0 and ks % 2 == 0 and ks > 0) else []
            nt = " nt" if "WQ" in str(self.opt("nt", "")).split("+") else ""
            return Load(("WQ", ks), pre, lambda: a.vm(("WQ", ks), "buffer_load_dwordx4 %s, v%d, %s, s%d offen offset:%d%s" % (
                q(("a", (ks * 2 + t) * 4)), vq1, sWS, sWQ, (ks % 2) * 2048 + t * 1024, nt)))

        def chunk(j):
            return ([wq(4 * j, 0), wq(4 * j, 1)] + h0[2 * j:2 * j + 2] + h1[2 * j:2 * j + 2] + hb[2 * j:2 * j + 2] +
                    [wq(ks, t) for ks in range(4 * j + 1, 4 * j + 4) for t in range(2)])

        self.stream = chunk(0)
        self.flush()
        self.stream = chunk(1)
        self.period = 24
        ev("s_and_b32 s%d, s%d, 7" % (sCG, sM))
        ev("s_lshl_b32 s%d, s%d, 7" % (sW128, sW))
        ev("s_mul_i32 s%d, s%d, 20480" % (sX3, sW))
        ev("s_mul_i32 s%d, s%d, %d" % (sW1b, sA3, 30 * KB))
        ev("s_add_u32 s%d, s%d, %d" % (sW1b, sW1b, W1))
        ev("s_lshl_b32 s%d, s%d, 2" % (sFlOwn, sA3))
        ev("v_lshlrev_b32 v%d, 2, v%d" % (vFl, lane))
        ev("s_lshr_b32 s%d, s%d, 3" % (sRtT, sM))
        ev("s_lshl_b32 s%d, s%d, 6" % (sRtT, sRtT))
        ev("s_add_u32 s%d, s%d, s%d" % (sRtT, sRtT, sRtA))
        ev("s_lshl_b32 s%d, s%d, 10" % (sSta, sRtA))
        ev("s_add_u32 s%d, s%d, s%d" % (sSta, sSta, sWk))
        ev("s_add_u32 s%d, s%d, %d" % (sSta, sSta, ST0))
        ev("s_getreg_b32 s%d, hwreg(HW_REG_XCC_ID)" % sXcc)
        ev("s_and_b32 s%d, s%d, 15" % (sXcc, sXcc))
        ev("s_add_u32 s%d, s%d, 1" % (sXcc, sXcc))
        ev("s_lshl_b32 s%d, s%d, 7" % (sA2, sC))
        ev("s_add_u32 s%d, s%d, %d" % (sXT, sA2, XT))
        ev("s_lshl_b32 s%d, s%d, 2" % (sA2, sM))
        ev("s_add_u32 s%d, s%d, s%d" % (sA2, sA2, sXT))
        ev("v_mov_b32 v%d, s%d" % (vT0, sXcc))
        e("s_cmp_lg_u32 s%d, 0" % sW)
        e("s_cbranch_scc1 main_noxt")
        e("s_mov_b64 exec, 1")
        e("buffer_store_dword v%d, off, %s, s%d sc1" % (vT0, sWS, sA2))
        e("s_mov_b64 exec, -1")
        a.label("main_noxt")
        ev("v_and_b32 v%d, 15, v%d" % (tok, lane))
        ev("v_lshrrev_b32 v%d, 4, v%d" % (g, lane))
        ev("v_lshrrev_b32 v%d, 5, v%d" % (t0, lane))
        ev("v_lshlrev_b32 v%d, 8, v%d" % (t0, t0))
        ev("v_lshl_add_u32 v%d, v%d, 4, v%d" % (t0, tok, t0))
        ev("v_and_b32 v%d, 1, v%d" % (t1, g))
        ev("s_mov_b32 s%d, 20480" % sA0)
        ev("v_mad_u32_u24 v%d, v%d, s%d, v%d" % (vX32, t1, sA0, t0))
        ev("v_add_u32 v%d, %d, v%d" % (vX32, L_A, vX32))
        ev("v_add_u32 v%d, %d, v%d" % (vAh, L_HALO, t0))
        ev("v_add_u32 v%d, 81920, v%d" % (self.P1_XB, vX32))
        c0 = 176
        ev("s_lshl_b32 s%d, s%d, 11" % (sA0, sM))
        ev("s_add_u32 s%d, s%d, %d" % (sA0, sA0, CG))
        ev("s_lshl_b32 s%d, s%d, 9" % (sA1, sCG))
        ev("s_add_u32 s%d, s%d, %d" % (sA1, sA1, CB2 - 96 * 16))
        c0x = c0
        c0 = c0 + 4
        ev("v_lshlrev_b32 v%d, 4, v0" % (c0 + 16))
        ev("v_add_u32 v%d, s%d, v%d" % (c0 + 17, sA0, c0 + 16))
        ev("v_add_u32 v%d, s%d, v%d" % (c0 + 18, sA1, c0 + 16))
        ev("v_mov_b32 v%d, 0x7ffffff0" % (c0 + 19))
        ev("v_cmp_gt_u32 vcc, 54, v0")
        ev("v_cndmask_b32 v%d, v%d, v%d, vcc" % (c0 + 20, c0 + 19, c0 + 17))
        ev("v_cmp_gt_u32 vcc, 78, v0")
        ev("v_cndmask_b32 v%d, v%d, v%d, vcc" % (c0 + 17, c0 + 19, c0 + 17))
        ev("v_subrev_u32 v%d, 96, v0" % (c0 + 21))
        ev("v_cmp_gt_u32 vcc, 20, v%d" % (c0 + 21))
        ev("v_cndmask_b32 v%d, v%d, v%d, vcc" % (c0 + 17, c0 + 17, c0 + 18))
        self.flush()
        a.vm("ct", "buffer_load_dwordx4 %s, v%d, %s, 0 offen" % (q(c0x), c0 + 17, sWS))
        for k in range(1, 5):
            e("s_mov_b32 s%d, %d" % (sA0, k * 32768))
            a.vm("ct", "buffer_load_dwordx4 %s, v%d, %s, s%d offen" % (q(c0x + 4 * k), c0 + 20, sWS, sA0))
        self.ct_regs = c0x
        self.stream = self.items_stats(0) + self.items_stats(1, self.RAW + 4)
        self.period = 120
        ev("s_mov_b32 s%d, 0x3f803f80" % sOnes)
        ev("s_mov_b32 s%d, 0x%x" % (sScale, fbits(20 ** -0.5 * math.log2(math.e))))
        ev("s_mov_b32 s%d, 0x%x" % (sInv640, fbits(1.0 / 640)))
        ev("s_mov_b32 s%d, 0x%x" % (sEps, fbits(1e-5)))
        ev("s_mov_b32 s%d, 0x%x" % (sNeg, fbits(-1e30)))
        ev("s_mov_b32 s%d, %d" % (sSpin, 400000))
        ev("s_mov_b32 s%d, 0" % sMode)
        ev("s_mov_b64 %s, 0xff" % sp(sMask8))
        ev("s_mov_b64 %s, 0xffff" % sp(sMaskX))
        ev("s_lshl_b32 s%d, s%d, 4" % (sA0, sW))
        ev("s_lshl_b64 %s, %s, s%d" % (sp(sMask16), sp(sMaskX), sA0))
        ev("s_mov_b32 s%d, -1" % sMaskA)
        ev("s_mov_b32 s%d, 0" % (sMaskA + 1))
        ev("s_mov_b32 s%d, 0" % sMaskB)
        ev("s_mov_b32 s%d, -1" % (sMaskB + 1))
        ev("s_lshl_b32 s%d, s%d, 8" % (sFlBase, sC))
        ev("s_add_u32 s%d, s%d, %d" % (sFlBase, sFlBase, FLAG))
        ev("s_add_u32 s%d, s%d, s%d" % (sFlOwn, sFlOwn, sFlBase))
        ev("s_lshl_b32 s%d, s%d, 2" % (sA0, sCG))
        ev("s_add_u32 s%d, s%d, s%d" % (sA0, sA0, sW))
        ev("s_mul_i32 s%d, s%d, %d" % (sWOb, sA0, 25 * KB))
        ev("s_add_u32 s%d, s%d, %d" % (sWOb, sWOb, WO))
        ev("s_mul_i32 s%d, s%d, %d" % (sW2b, sA0, 60 * KB))
        ev("s_add_u32 s%d, s%d, %d" % (sW2b, sW2b, W2))
        ev("s_and_b32 s%d, s%d, 1" % (sA1, sW))
        ev("s_lshl_b32 s%d, s%d, 8" % (sK256, sA1))
        ev("s_lshl_b32 s%d, s%d, 1" % (sA1, sA1))
        for i in range(4):
            ev("s_add_u32 s%d, s%d, %d" % (sA0, sA1, i))
            ev("s_and_b32 s%d, s%d, 3" % (sA0, sA0))
            ev("s_mul_i32 s%d, s%d, 20480" % (sA0, sA0))
            ev("s_add_u32 s%d, s%d, s%d" % (SP3[i], sA0, sWk))
        ev("s_add_u32 s%d, s%d, s%d" % (sHd, sA1, sRtA))
        ev("s_mul_i32 s%d, s%d, %d" % (sHd, sHd, 48 * KB))
        ev("s_mul_i32 s%d, s%d, 3072" % (sA0, sM))
        ev("s_add_u32 s%d, s%d, s%d" % (sHd, sHd, sA0))
        ev("s_add_u32 s%d, s%d, %d" % (sHd, sHd, HB))
        ev("s_add_u32 s%d, s%d, s%d" % (sOd, sW, sRtA))
        ev("s_mul_i32 s%d, s%d, %d" % (sOd, sOd, 48 * KB))
        ev("s_mul_i32 s%d, s%d, 1280" % (sA0, sM))
        ev("s_add_u32 s%d, s%d, s%d" % (sOd, sOd, sA0))
        ev("s_add_u32 s%d, s%d, %d" % (sOd, sOd, OB))
        ev("s_mul_i32 s%d, s%d, 5" % (sA1, sWk))
        ev("s_mul_i32 s%d, s%d, 12" % (sA2, sWk))
        for i in range(4):
            ev("s_add_u32 s%d, s%d, %d" % (sA0, sW, i))
            ev("s_and_b32 s%d, s%d, 3" % (sA0, sA0))
            ev("s_add_u32 s%d, s%d, s%d" % (sA0, sA0, sRtT))
            ev("s_mul_i32 s%d, s%d, %d" % (sA0, sA0, 48 * KB))
            ev("s_add_u32 s%d, s%d, %d" % (sA0, sA0, HB))
            ev("s_add_u32 s%d, s%d, s%d" % (sR2 + i, sA0, sA1))
            ev("s_add_u32 s%d, s%d, s%d" % (sR4 + i, sA0, sA2))
        ev("s_lshr_b32 s%d, s%d, 1" % (sA0, sCG))
        ev("s_mul_i32 s%d, s%d, 5" % (sA0, sA0))
        ev("s_and_b32 s%d, s%d, 1" % (sA1, sCG))
        ev("s_add_u32 s%d, s%d, s%d" % (sA2, sRtT, sW))
        ev("s_lshl_b32 s%d, s%d, 10" % (sStd, sA2))
        ev("s_add_u32 s%d, s%d, %d" % (sStd, sStd, ST0))
        ev("s_mul_i32 s%d, s%d, 20" % (sA2, sA2))
        ev("s_add_u32 s%d, s%d, s%d" % (sA2, sA2, sA0))
        ev("s_lshl_b32 s%d, s%d, 10" % (sA2, sA2))
        ev("s_add_u32 s%d, s%d, %d" % (sXdh, sA2, X0 + 2048))
        ev("s_mul_i32 s%d, s%d, 3072" % (sA0, sA1))
        ev("s_add_u32 s%d, s%d, s%d" % (sXd0, sA2, sA0))
        ev("s_add_u32 s%d, s%d, %d" % (sXd0, sXd0, X0))
        ev("s_lshl_b32 s%d, s%d, 3" % (sA1, sA1))
        ev("v_add_u32 v%d, s%d, v%d" % (vHalf, sA1, vL0))
        ev("s_lshr_b32 s%d, s%d, 1" % (sA0, sCG))
        ev("s_lshl_b32 s%d, s%d, 8" % (sA0, sA0))
        ev("s_add_u32 s%d, s%d, s%d" % (sA0, sA0, sA1))
        ev("v_and_b32 v%d, 1, v%d" % (t0, g))
        ev("v_lshlrev_b32 v%d, 2, v%d" % (t0, t0))
        ev("v_lshl_add_u32 v%d, v%d, 4, v%d" % (vSt, tok, t0))
        ev("v_add_u32 v%d, s%d, v%d" % (vSt, sA0, vSt))
        ev("s_mov_b32 s%d, %d" % (sA0, L_ST))
        ev("v_lshl_add_u32 v%d, v%d, 3, s%d" % (vSl, tok, sA0))
        ev("v_lshlrev_b32 v%d, 4, v%d" % (vG, g))
        ev("v_add_u32 v%d, s%d, v%d" % (vAk, sX3, vL1))
        ev("s_and_b32 s%d, s%d, 1" % (sA0, sW))
        ev("s_lshr_b32 s%d, s%d, 1" % (sA1, sW))
        ev("s_mul_i32 s%d, s%d, %d" % (sA2, sA0, 40960 + 1024))
        ev("v_add_u32 v%d, s%d, v%d" % (vP3a, sA2, vL1))
        ev("s_mul_i32 s%d, s%d, %d" % (sA2, sA0, -40960 + 1024))
        ev("s_add_u32 s%d, s%d, 40960" % (sA2, sA2))
        ev("v_add_u32 v%d, s%d, v%d" % (vP3b, sA2, vL1))
        ev("s_lshl_b32 s%d, s%d, 3" % (sA2, sA1))
        ev("v_add_u32 v%d, s%d, v%d" % (vHh, sA2, vL0))
        ev("s_lshl_b32 s%d, s%d, 11" % (sA2, sA1))
        ev("v_add_u32 v%d, s%d, v%d" % (vHf, sA2, vL0))
        ev("s_mul_i32 s%d, s%d, 6144" % (sA2, sW))
        ev("s_add_u32 s%d, s%d, %d" % (sA2, sA2, L_E3))
        ev("v_add_u32 v%d, s%d, v%d" % (vE3w, sA2, vL0))
        ev("s_xor_b32 s%d, s%d, 1" % (sA2, sW))
        ev("s_mul_i32 s%d, s%d, 6144" % (sA2, sA2))
        ev("s_add_u32 s%d, s%d, %d" % (sA2, sA2, L_E3))
        ev("v_add_u32 v%d, s%d, v%d" % (vE3r, sA2, vL0))
        for i, vr in ((1, vRw1), (2, vRw2), (3, vRw3)):
            ev("s_add_u32 s%d, s%d, %d" % (sA2, sW, i))
            ev("s_and_b32 s%d, s%d, 3" % (sA2, sA2))
            ev("s_mul_i32 s%d, s%d, 15360" % (sA2, sA2))
            ev("s_add_u32 s%d, s%d, %d" % (sA2, sA2, L_RED + (i - 1) * 5120))
            ev("v_add_u32 v%d, s%d, v%d" % (vr, sA2, vL0))
        ev("s_mul_i32 s%d, s%d, 15360" % (sA2, sW))
        ev("s_add_u32 s%d, s%d, %d" % (sA2, sA2, L_RED))
        ev("v_add_u32 v%d, s%d, v%d" % (vRr, sA2, vL0))
        ev("s_mov_b32 s%d, %d" % (sA3, 3 * EXT))
        ev("v_and_b32 v%d, 31, v%d" % (t0, lane))
        ev("v_mul_u32_u24 v%d, %d, v%d" % (t0, EXS, t0))
        ev("v_lshrrev_b32 v%d, 5, v%d" % (t1, lane))
        ev("v_lshl_add_u32 v%d, v%d, 3, v%d" % (vXw0, t1, t0))
        ev("s_lshl_b32 s%d, s%d, 6" % (sA2, sW))
        ev("s_add_u32 s%d, s%d, %d" % (sA0, sA2, L_EX))
        ev("v_add_u32 v%d, s%d, v%d" % (vXw0, sA0, vXw0))
        ev("v_mul_u32_u24 v%d, %d, v%d" % (t0, EXS, tok))
        e("s_cmp_eq_u32 s%d, 0" % sW)
        ev("s_cselect_b32 s%d, %d, s%d" % (sFlip, -EXT, sA3))
        ev("s_mul_i32 s%d, s%d, %d" % (sA0, sW, EXT))
        ev("s_add_u32 s%d, s%d, %d" % (sA0, sA0, L_EX + EXT))
        ev("v_lshl_add_u32 v%d, v%d, 3, v%d" % (vXp, g, t0))
        ev("v_add_u32 v%d, s%d, v%d" % (vXp, sA0, vXp))
        ev("v_add_u32 v%d, %d, v%d" % (vXc, EXT, vXp))
        ev("v_lshrrev_b32 v%d, 2, v%d" % (t0, lane))
        ev("v_mul_u32_u24 v%d, %d, v%d" % (t0, EXS, t0))
        ev("v_and_b32 v%d, 3, v%d" % (t1, lane))
        ev("v_lshl_add_u32 v%d, v%d, 3, v%d" % (vXv, t1, t0))
        ev("s_add_u32 s%d, s%d, 160" % (sA0, sA0))
        ev("v_add_u32 v%d, s%d, v%d" % (vXv, sA0, vXv))
        ev("v_and_b32 v%d, 1, v%d" % (t0, tok))
        ev("v_cmp_eq_u32 %s, 1, v%d" % (sp(sOdd), t0))
        ev("v_lshl_add_u32 v%d, v%d, 2, v%d" % (t0, g, t0))
        ev("v_cmp_gt_u32 %s, v%d, v%d" % (sp(sPA), t0, tok))
        ev("v_add_u32 v%d, 2, v%d" % (t0, t0))
        ev("v_cmp_gt_u32 %s, v%d, v%d" % (sp(sPB), t0, tok))
        ev("v_cmp_eq_u32 %s, 0, v%d" % (sp(sG0), g))
        ev("v_mov_b32 v%d, 0xffff" % t0)
        ev("v_mov_b32 v%d, 0xffff0000" % t1)
        ev("v_cndmask_b32 v%d, v%d, v%d, %s" % (t0, t0, t1, sp(sOdd)))
        ev("v_cndmask_b32 v%d, 0, v%d, %s" % (vM0, t0, sp(sPA)))
        ev("v_cndmask_b32 v%d, v%d, 0, %s" % (vM2, t0, sp(sPA)))
        ev("v_cndmask_b32 v%d, 0, v%d, %s" % (vM1, t0, sp(sPB)))
        ev("v_cndmask_b32 v%d, v%d, 0, %s" % (vM3, t0, sp(sPB)))
        e("s_or_b32 s%d, s%d, s%d" % (sA0, sC, sW))
        e("s_cmp_eq_u32 s%d, 0" % sA0)
        e("s_cselect_b64 %s, %s, 0" % (sp(sPAx), sp(sPA)))
        ev("s_cselect_b64 %s, %s, 0" % (sp(sPBx), sp(sPB)))
        res = [Load("res", [], lambda: a.vm("res", "buffer_load_dwordx4 %s, v%d, %s, s%d offen" % (q(vRes), vL0, sWS, sXd0))),
               Load("res", [], lambda: a.vm("res", "buffer_load_dwordx4 %s, v%d, %s, s%d offen offset:1024" % (q(vRes + 4), vL0, sWS, sXd0))),
               Load("res", [], lambda: a.vm("res", "buffer_load_dwordx2 %s, v%d, %s, s%d offen" % (p2(vRes + 8), vHalf, sWS, sXdh)))]
        flagtouch = Load("touch", [], lambda: a.vm("touch", "buffer_load_dword v0, v%d, %s, s%d offen sc1" % (vFl, sWS, sFlBase)))
        self.stream += chunk(2) + chunk(3) + chunk(4) + [self.item_touch(10, 1280), flagtouch] + res
        self.period = 24

    def ct_write(self):
        c0 = self.ct_regs
        ops = [S_(lambda: self.a.wait(vm=["ct"]))]
        ops += ["v_add_f32 v%d, v%d, v%d" % (c0 + r, c0 + r, c0 + 4 + r) for r in range(4)]
        ops += ["v_add_f32 v%d, v%d, v%d" % (c0 + 8 + r, c0 + 8 + r, c0 + 12 + r) for r in range(4)]
        ops += ["v_add_f32 v%d, v%d, v%d" % (c0 + r, c0 + r, c0 + 16 + r) for r in range(4)]
        ops += ["v_add_f32 v%d, v%d, v%d" % (c0 + r, c0 + r, c0 + 8 + r) for r in range(4)]
        assert L_CT == 0
        ops.append("v_min_u32 v%d, 2032, v%d" % (c0 + 20, c0 + 20))
        ops.append(self.DS("ctw", "ds_write_b128 v%d, %s" % (c0 + 20, q(c0)), 24))
        return ops

    def mode_check(self):
        e = self.e
        self.poll_check(1, sMaskX, soff=sXT, acquire=False)
        e("v_cmp_ne_u32 vcc, s%d, v%d" % (sXcc, vPoll))
        e("s_and_b64 %s, %s, vcc" % (sp(sTmp2), sp(sMaskX)))
        e("s_cselect_b32 s%d, 1, 0" % sMode)
        if self.opts.get("force_slow"):
            e("s_mov_b32 s%d, 1" % sMode)

    P1_ACC = W0
    P1_AB = W0 + 48
    P1_CS = W0 + 80
    RAW = W0 + 96
    P1_MS = W0 + 104
    P1_S32 = W0 + 106
    P1_XH = W0 + 107
    P1_X0 = W0 + 108
    P1_XB = W0 + 109
    P1_ATT = [W0 + 112 + 4 * i for i in range(4)] + [W0 + 32 + 4 * i for i in range(4)]

    def attention_ops(self, layer, sb):
        a, e, DS = self.a, self.e, self.DS
        A = self.P1_ATT
        ops = []
        Q, Kp, Kc = [A[0], A[3]], [A[1], A[4]], [A[2], A[5]]
        Sp, Sc = [A[6], A[0]], [A[7], A[1]]
        sa, sbb, mx = [A[2], A[2] + 2], [A[2] + 1, A[2] + 3], [A[3], A[3] + 1]
        neg = A[3] + 2
        Va, Vb = [A[4], A[6]], [A[5], A[7]]
        P = [A[0], A[1]]
        Oa, Ob = [A[2], A[4]], [A[3], A[5]]
        G = [A[6], A[7]]
        for h in range(2):
            ops.append(DS(("q", h), "ds_read2_b64 %s, v%d offset0:%d offset1:%d" % (q(Q[h]), vXc, 10 + 5 * h, 14 + 5 * h)))
            ops.append(DS(("kp", h), "ds_read2_b64 %s, v%d offset0:%d offset1:%d" % (q(Kp[h]), vXp, 5 * h, 4 + 5 * h)))
            ops.append(DS(("kc", h), "ds_read2_b64 %s, v%d offset0:%d offset1:%d" % (q(Kc[h]), vXc, 5 * h, 4 + 5 * h)))
        ops += ["s_add_u32 s%d, s%d, %d" % (sA0, sOd, sb * SBH), 7]
        for h in range(2):
            ops.append(self.WD([("q", h)]))
            ops.append("v_cndmask_b32 v%d, 0, v%d, %s" % (Q[h] + 2, Q[h] + 2, sp(sG0)))
            ops.append("v_cndmask_b32 v%d, 0, v%d, %s" % (Q[h] + 3, Q[h] + 3, sp(sG0)))
        ops.append(self.WD([("kc", 1)]))
        for h in range(2):
            ops.append(B_(lambda h=h: self.mfma(Sp[h], Kp[h], Q[h], first=True)))
            ops.append(B_(lambda h=h: self.mfma(Sc[h], Kc[h], Q[h], first=True)))

        def vreads(h):
            o = []
            for vv, off in ((Va[h], 0), (Vb[h], 32)):
                o.append(DS(("v", h), "ds_read_b64_tr_b16 %s, v%d offset:%d" % (p2(vv), vXv, 40 * h + off)))
                o.append(DS(("v", h), "ds_read_b64_tr_b16 %s, v%d offset:%d" % (p2(vv + 2), vXv, 40 * h + off + EXT)))
            return o
        ops += vreads(0)
        if sb == 1:
            ops.append("v_mov_b32 v%d, s%d" % (neg, sNeg))
        for h in range(2):
            s_, c = Sp[h], Sc[h]
            ops += ["v_cndmask_b32 v%d, v%d, v%d, %s" % (s_, s_, s_ + 1, sp(sOdd)),
                    "v_cndmask_b32 v%d, v%d, v%d, %s" % (s_ + 2, s_ + 2, s_ + 3, sp(sOdd)),
                    "v_cndmask_b32 v%d, v%d, v%d, %s" % (c, c, c + 1, sp(sOdd)),
                    "v_cndmask_b32 v%d, v%d, v%d, %s" % (c + 2, c + 2, c + 3, sp(sOdd)),
                    "v_cndmask_b32 v%d, v%d, v%d, %s" % (sa[h], c, s_, sp(sPA)),
                    "v_cndmask_b32 v%d, v%d, v%d, %s" % (sbb[h], c + 2, s_ + 2, sp(sPB))]
            if sb == 1:
                ops += ["v_cndmask_b32 v%d, v%d, v%d, %s" % (sa[h], sa[h], neg, sp(sPAx)),
                        "v_cndmask_b32 v%d, v%d, v%d, %s" % (sbb[h], sbb[h], neg, sp(sPBx))]
            ops.append("v_max_f32 v%d, v%d, v%d" % (mx[h], sa[h], sbb[h]))

        def red2(op, x, y, pad):
            pad = list(pad) + [0] * 6
            return [pad[4], pad[5],
                    "v_permlane16_swap_b32 v%d, v%d" % (x, y), "%s v%d, v%d, v%d" % (op, x, x, y), "v_mov_b32 v%d, v%d" % (y, x),
                    pad[0], pad[1],
                    "v_permlane32_swap_b32 v%d, v%d" % (x, y), "%s v%d, v%d, v%d" % (op, x, x, y), "v_mov_b32 v%d, v%d" % (y, x),
                    pad[2], pad[3],
                    "v_permlane16_swap_b32 v%d, v%d" % (x, y)]
        ops += red2("v_max_f32", mx[0], mx[1], vreads(1))
        ops += ["v_mul_f32 v%d, s%d, v%d" % (mx[h], sScale, mx[h]) for h in range(2)]
        for h in range(2):
            ops += ["v_fma_f32 v%d, v%d, s%d, -v%d" % (sa[h], sa[h], sScale, mx[h]),
                    "v_fma_f32 v%d, v%d, s%d, -v%d" % (sbb[h], sbb[h], sScale, mx[h])]
        for h in range(2):
            ops += ["v_exp_f32 v%d, v%d" % (sa[h], sa[h]), "v_exp_f32 v%d, v%d" % (sbb[h], sbb[h])]
        ops += ["v_add_f32 v%d, v%d, v%d" % (mx[h], sa[h], sbb[h]) for h in range(2)]
        d = "v_add_u32" if sb == 0 else "v_subrev_u32"
        ops += red2("v_add_f32", mx[0], mx[1], ["%s v%d, s%d, v%d" % (d, r, sFlip, r) for r in (vXp, vXc, vXv)])
        ops += ["v_rcp_f32 v%d, v%d" % (mx[h], mx[h]) for h in range(2)]
        for h in range(2):
            ops += ["v_mul_f32 v%d, v%d, v%d" % (sa[h], sa[h], mx[h]), "v_mul_f32 v%d, v%d, v%d" % (sbb[h], sbb[h], mx[h])]
        for h in range(2):
            ops += ["v_cvt_pk_bf16_f32 v%d, v%d, v%d" % (sa[h], sa[h], sa[h]),
                    "v_cvt_pk_bf16_f32 v%d, v%d, v%d" % (sbb[h], sbb[h], sbb[h]),
                    "v_and_b32 v%d, v%d, v%d" % (P[h], vM0, sa[h]),
                    "v_and_b32 v%d, v%d, v%d" % (P[h] + 1, vM1, sbb[h]),
                    "v_and_b32 v%d, v%d, v%d" % (P[h] + 2, vM2, sa[h]),
                    "v_and_b32 v%d, v%d, v%d" % (P[h] + 3, vM3, sbb[h])]
        ops.append(self.WD([("v", 1)]))
        for h in range(2):
            ops.append(B_(lambda h=h: self.mfma(Oa[h], Va[h], P[h], first=True)))
            ops.append(B_(lambda h=h: self.mfma(Ob[h], Vb[h], P[h], first=True)))
        ops.append(3)
        for src, dst in ((Oa, G[0]), (Ob, G[1])):
            for h in range(2):
                ops += ["v_cvt_pk_bf16_f32 v%d, v%d, v%d" % (dst + 2 * h, src[h], src[h] + 1),
                        "v_cvt_pk_bf16_f32 v%d, v%d, v%d" % (dst + 2 * h + 1, src[h] + 2, src[h] + 3)]
            if src is Oa:
                ops.append(V_(lambda: a.vm("st", "buffer_store_dwordx4 %s, v%d, %s, s%d offen" % (q(G[0]), vL0, sWS, sA0))))

        def last():
            e("s_mov_b64 exec, %s" % sp(sMaskX))
            a.vm("st", "buffer_store_dwordx4 %s, v%d, %s, s%d offen offset:1024" % (q(G[1]), vL0, sWS, sA0))
            e("s_mov_b64 exec, -1")
        ops.append(B_(last))
        return ops

    def p1(self, layer):
        a, e, DS, WD = self.a, self.e, self.DS, self.WD
        typ = self.typ
        ACC, AB, NAB, MS = self.P1_ACC, self.P1_AB, 8, self.P1_MS
        self.stamp("p1_%d_begin" % layer)
        groups = [[0, 1, 2], [3], [4]] if layer == 0 else [[0], [1], [2], [3], [4]]
        units = [(p, ks, hk) for gr in groups for ks in range(20) for hk in range(2) for p in gr]
        idx = {u: i for i, u in enumerate(units)}
        accof = {0: ACC, 1: ACC + 16, 2: ACC + 32, 3: ACC, 4: ACC + 16}

        def read(u):
            p, ks, hk = units[u]
            if p == 4:
                base, off = vAh, 0
            elif p == 2 and layer == 0:
                base, off = self.P1_XB, 0
            else:
                base, off = vX32, (p & 1) * 40960
            return "ds_read_b128 %s, v%d offset:%d" % (q(AB + (u % NAB) * 4), base, off + ks * 1024 + hk * 512)

        def compute(u):
            p, ks, hk = units[u]
            return [lambda: self.mfma32(accof[p], ("a", (ks * 2 + hk) * 4), AB + (u % NAB) * 4, first=(ks == 0 and hk == 0))]

        def sync(tags, ds=None):
            def f():
                self.vwait(tags)
                if ds:
                    a.wait(ds=ds)
                e("s_barrier")
            return f

        def ms_read(p):
            return DS("ms", "ds_read_b64 %s, v%d offset:%d" % (p2(MS), self.P1_S32, p * 256))

        def fix(p, packed=False):
            ops = [WD(["ms", "cs"])]
            for j in range(4):
                acc = accof[p] + 4 * j
                cs = self.P1_CS + 4 * j
                if packed:
                    for hh in (0, 2):
                        ops.append("v_pk_fma_f32 %s, %s, %s, %s op_sel_hi:[1,0,1] neg_lo:[0,1,0] neg_hi:[0,1,0]" %
                                   (p2(acc + hh), p2(cs + hh), p2(MS), p2(acc + hh)))
                    for hh in (0, 2):
                        ops.append("v_pk_mul_f32 %s, %s, %s op_sel:[0,1] op_sel_hi:[1,1]" % (p2(acc + hh), p2(acc + hh), p2(MS)))
                else:
                    ops += ["v_fma_f32 v%d, -v%d, v%d, v%d" % (acc + r, cs + r, MS, acc + r) for r in range(4)]
                    ops += ["v_mul_f32 v%d, v%d, v%d" % (acc + r, acc + r, MS + 1) for r in range(4)]
                ops.append("v_cvt_pk_bf16_f32 v%d, v%d, v%d" % (acc, acc, acc + 1))
                ops.append("v_cvt_pk_bf16_f32 v%d, v%d, v%d" % (acc + 1, acc + 2, acc + 3))
                ad, row = {0: (vXw0, 2), 1: (vXw0, 4), 2: (self.P1_X0, 1), 3: (vXw0, 7), 4: (self.P1_XH, 0)}[p]
                ops.append(DS("xw", "ds_write_b64 v%d, %s offset:%d" % (ad, p2(acc), 16 * j + row * EXT), 16))
            return ops + [self.mark(("fix", p))]

        def fixr(p):
            return [ms_read(p), 8] + fix(p)

        def setup():
            c = self.P1_CS
            o = ["v_lshrrev_b32 v%d, 3, v%d" % (c + 12, vFl),
                 "v_and_b32 v%d, 16, v%d" % (c + 12, c + 12),
                 "v_add_u32 v%d, s%d, v%d" % (c + 12, sW128, c + 12)]
            o += [DS("cs", "ds_read_b128 %s, v%d offset:%d" % (q(c + 4 * j), c + 12, L_CT + 32 * j)) for j in range(4)]
            o += ["v_and_b32 v%d, 124, v%d" % (self.P1_S32, vFl),
                  "v_lshlrev_b32 v%d, 1, v%d" % (self.P1_S32, self.P1_S32),
                  "v_add_u32 v%d, %d, v%d" % (self.P1_S32, L_ST, self.P1_S32),
                  "v_bfe_u32 v%d, v%d, 6, 1" % (self.P1_XH, vFl),
                  "v_mul_u32_u24 v%d, %d, v%d" % (self.P1_XH, EXT, self.P1_XH),
                  "v_lshl_add_u32 v%d, v%d, 2, v%d" % (self.P1_X0, self.P1_XH, vXw0),
                  "v_sub_u32 v%d, v%d, v%d" % (self.P1_XH, vXw0, self.P1_XH)]
            return o

        self.bg = []
        pre_read, pre_unit = {}, {}

        def hook(d, u, f):
            u = idx[u if len(u) == 3 else (u[0], u[1], 0)]
            old = d.get(u)
            d[u] = f if old is None else (lambda: (old(), f()))

        def bgx(f):
            return lambda: self.bg.extend(f())

        def soon(f):
            return lambda: self.bg.insert(0, B_(f))

        nb0, nb1 = self.items_p1(1, 0, "A1"), self.items_p1(1, 1, "A1")
        allb0 = [("A1", 0, j) for j in range(5)]
        allb1 = [("A1", 1, j) for j in range(5)]
        allh = [("H", j) for j in range(5)]
        if layer == 0:
            hook(pre_read, (0, 16), lambda: self.need("st0"))
            for j in range(5):
                hook(pre_read, (0, 4 * j), sync([("A0", 0, j), ("A0", 1, j), ("A1", 0, j)], ds=["sw", "ctw"]))
            hook(pre_read, (0, 16), lambda: self.stream.extend(nb1[:6]))
            for ks in range(20):
                hook(pre_unit, (0, ks), lambda ks=ks: self.vwait([("WQ", ks)]))
            hook(pre_unit, (0, 6), bgx(lambda: self.ct_write() + self.stats_share(0) + self.stats_share(1, self.RAW + 4) +
                                       self.halo_src(0) + [self.mark("st0")]))
            hook(pre_unit, (0, 16), bgx(lambda: setup() + [ms_read(0), V_(lambda: self.poll_issue(sXT))]))

            def bon():
                self.period = self.opt("per1", 76)
                self.b_on = True
                self.fcredit = 0
            hook(pre_unit, (0, 16), bon)
            hook(pre_read, (3, 0), sync([("A1", 1, j) for j in range(3)]))

            def turn():
                self.stamp("p1_0_a")
                self.drain_bg()
                e("s_barrier")
                self.push_front(nb1[6:] + self.items_halo())
                self.urgent = set(allb1)
                self.bg = fix(0, True)
                self.drain_bg()
                self.mode_check()
                self.bg = fixr(1)
            hook(pre_unit, (3, 0), turn)
            hook(pre_read, (3, 12), sync(allb1))
        else:
            hook(pre_read, (0, 0), sync([("A0", 0, 0), ("A0", 0, 1)]))
            hook(pre_read, (0, 8), sync([("A0", 0, j) for j in range(2, 5)]))
            hook(pre_unit, (0, 1), bgx(lambda: setup() + self.halo_src(1)))
            hook(pre_unit, (0, 7), bgx(lambda: self.stats_share(0) + [self.mark("st0")]))
            hook(pre_unit, (0, 8), soon(self.poll_issue))
            for f, at in zip(self.pending, ((0, 10), (1, 14))):
                hook(pre_unit, at, soon(f))

            def refill(tags, items, pre=None):
                def f():
                    self.need("st0")
                    sync(tags, ds=["sw"])()
                    if pre:
                        pre()
                    self.urgent = set(ld.tag for ld in items) if self.opt("urgr", 1) else set()
                    self.stream.extend(items)
                return f
            hook(pre_read, (1, 0), refill([("A0", 1, j) for j in range(5)], self.items_stats(1) + nb0[:8],
                                          pre=lambda: self.poll_check(6, sMaskB)))
            hook(pre_unit, (1, 0), bgx(lambda: fixr(0)))
            hook(pre_unit, (1, 3), lambda: (e("s_barrier"), self.stream.extend(nb0[8:])))
            hook(pre_unit, (1, 12), bgx(lambda: self.stats_share(1) + [self.mark("st0")]))
            hook(pre_read, (2, 0), refill(allb0, nb1[:8]))
            hook(pre_unit, (2, 0), bgx(lambda: fixr(1)))
            hook(pre_unit, (2, 3), lambda: (e("s_barrier"), self.stream.extend(nb1[8:])))
            hook(pre_unit, (2, 8), soon(lambda: self.poll_issue(sHfl)))
            hook(pre_read, (3, 0), sync(allb1))
            hook(pre_unit, (3, 0), lambda: (self.stamp("p1_1_a"), self.need(("fix", 0)), self.poll_check(1, sMask8, sHfl),
                                            self.stream.extend(self.items_halo())))

        def att_a():
            def go():
                a.wait(ds=["xw"])
                e("s_barrier")
            return (fixr(2) + [6, B_(go)] + self.attention_ops(layer, 0) +
                    [Z_(lambda: self.later(self.opt("pubd1", 14), lambda: self.publish(6 * layer + 1)))])
        hook(pre_unit, (3, 0), bgx(att_a))
        hook(pre_unit, (3, 0), lambda: setattr(self, "hurry", self.opt("hurry1", 30)))
        hook(pre_unit, (3, 8), lambda: self.stream.extend([self.item_touch(24, 3072), self.item_code()]))
        hook(pre_unit, (3, 14), lambda: self.bg.__setitem__(slice(0, 0), self.stats_share(2) + [self.mark("sth")]))
        hook(pre_read, (4, 0), lambda: (self.need("sth"), sync(allh, ds=["sw"])()))
        hook(pre_unit, (4, 0), lambda: (self.need(("fix", 1)), self.bg.extend(fixr(3) + [ms_read(4)])))
        if typ == 0:
            hook(pre_unit, (4, 14), soon(self.poll_issue))
        if layer == 1:
            self.period = self.opt("per1", 76)
            self.b_on = True
            self.bmin = self.opt("bmin1", 240)
            hook(pre_unit, (2, 10), lambda: setattr(self, "bmin", 0))
        hook(pre_unit, (4, 14), lambda: setattr(self, "b_on", bool(self.opt("ball", 0))))
        self.gapdt = self.opt("dt1", 34)
        self.glen = 32
        self.unit_loop(len(units), read, compute, look=self.opt("look1", 6), pre_read=pre_read, pre_unit=pre_unit,
                       wait_every=self.opt("we1", 2), name="p1_%d" % layer, every=8)
        self.glen = 16
        self.hurry = 10 ** 9
        self.stamp("p1_%d_loop" % layer)
        self.drain_bg()
        self.bg = fix(4, packed=True)
        self.drain_bg()
        if layer == 1:
            for n in range(0, 160, 4):
                self.free.append(("a", n))
        a.wait_all(ds=True)
        e("s_barrier")
        self.stamp("p1_%d_gemm" % layer)
        ops = self.attention_ops(layer, 1)
        if typ == 0:
            def a2go():
                self.poll_check(6 * layer + 1, sMask16)
                self.stream.extend([self.item_pk(False, n) for n in range(20)])
                self.period = self.opt("pera2", 48)
            ops.insert(6, B_(a2go))
        self.bg = ops
        self.drain_bg()
        self.lend()
        self.flush(n=6)
        self.publish(6 * layer + 2)
        self.stamp("p1_%d_end" % layer)

    def pk(self, layer, which):
        a, e, ev, DS, WD = self.a, self.e, self.ev, self.DS, self.WD
        typ = self.typ
        is4 = which == 4
        name = ("W2" if is4 else "WO", layer)
        ACC, AB = W0, W0 + 80
        last = layer == 1 and is4
        order = self.pk_order(is4)
        n_units = len(order)
        self.stamp("p%d_%d_begin" % (which, layer))
        e("s_barrier")
        if typ == 1:
            if not is4:
                self.bpref(self.opt("bwait2_%d" % layer, (3, 0)[layer]))
            self.poll(6 * layer + (5 if is4 else 2), sMask16)
            self.stream.extend([self.item_pk(is4, n) for n in range(20)])
            self.flush(n=8)
        self.urgent = set(("Ak", n) for n in range(self.opt("urgk", 12)))
        self.stamp("p%d_%d_poll" % (which, layer))
        if is4:
            self.unlend()
        init = []
        if self.sq:
            init += ["s_add_u32 s%d, s%d, %d" % (sA0, sWk, STAGE[0]),
                     "v_add_u32 v%d, s%d, v%d" % (vSg0, sA0, vL0),
                     "v_add_u32 v%d, %d, v%d" % (vSg1, STAGE[5] - STAGE[0], vSg0)]
            self.unstage = True
        if layer == 0 and not is4:
            init.append(S_(lambda: self.vwait(["res"])))
        BT = W0 + 96
        if is4:
            init += [DS(("b2", ct), "ds_read_b128 %s, v%d offset:%d" % (q(BT + 4 * ct), vG, L_CT + 1536 + 64 * ct)) for ct in range(5)]
        for ct in range(5):
            for hh in range(2):
                src = vRes + 2 * ct + hh
                init.append("v_lshlrev_b32 v%d, 16, v%d" % (ACC + 4 * ct + 2 * hh, src))
                init.append("v_and_b32 v%d, 0xffff0000, v%d" % (ACC + 4 * ct + 2 * hh + 1, src))
        if is4:
            init.append(WD([("b2", 4)]))
            init += ["v_add_f32 v%d, v%d, v%d" % (ACC + r, ACC + r, BT + r) for r in range(20)]
        init.append(self.mark("init"))
        vOut, vOutH = BT, BT + 1
        if last:
            init += ["v_lshrrev_b32 v%d, 2, v%d" % (vOut, vFl),
                     "v_and_b32 v%d, 15, v%d" % (vOut, vOut),
                     "v_mul_u32_u24 v%d, 1280, v%d" % (vOut, vOut),
                     "v_add_u32 v%d, v%d, v%d" % (vOut, vOut, vG),
                     "v_sub_u32 v%d, v%d, v%d" % (vOutH, vHalf, vL0),
                     "v_add_u32 v%d, v%d, v%d" % (vOutH, vOutH, vOut),
                     "s_add_u32 s%d, s%d, s%d" % (sA0, sRtT, sW),
                     "s_mul_i32 s%d, s%d, %d" % (sA1, sA0, 20 * KB),
                     "s_add_u32 s%d, s%d, %d" % (sA1, sA1, X0),
                     "s_add_u32 s%d, s%d, %d" % (sA0, sW, 4 if typ else 1),
                     B_(lambda: (e("s_cmp_eq_u32 s%d, 4" % sA0), e("s_cselect_b32 s%d, %d, s%d" % (sA0, 0 if typ else 4, sA0)))),
                     "s_lshl_b32 s%d, s%d, 3" % (sA2, sC),
                     "s_add_u32 s%d, s%d, s%d" % (sA0, sA0, sA2),
                     "s_mul_i32 s%d, s%d, %d" % (sA0, sA0, 20 * KB),
                     "s_sub_u32 s%d, s%d, s%d" % (sA2, sXd0, sA1),
                     "s_lshr_b32 s%d, s%d, 4" % (sA2, sA2),
                     "s_add_u32 s%d, s%d, s%d" % (sA2, sA2, sA0),
                     "s_sub_u32 s%d, s%d, s%d" % (sA3, sXdh, sA1),
                     "s_lshr_b32 s%d, s%d, 4" % (sA3, sA3),
                     "s_add_u32 s%d, s%d, s%d" % (sA3, sA3, sA0)]
        elif is4 and typ == 1:
            init += ["s_mul_i32 s%d, s%d, %d" % (sA1, sC, -60 * KB),
                     "s_add_u32 s%d, s%d, %d" % (sA1, sA1, HX - X0 - 67 * 20 * KB),
                     "s_add_u32 s%d, s%d, s%d" % (sHo[0], sXd0, sA1),
                     "s_add_u32 s%d, s%d, s%d" % (sHo[1], sXdh, sA1),
                     "s_lshl_b32 s%d, s%d, 10" % (sHo[2], sC),
                     "s_add_u32 s%d, s%d, %d" % (sHo[2], sHo[2], HS),
                     "s_lshl_b32 s%d, s%d, 7" % (sHo[3], sC),
                     "s_lshl_b32 s%d, s%d, 2" % (sA0, sCG),
                     "s_add_u32 s%d, s%d, s%d" % (sHo[3], sHo[3], sA0),
                     "s_add_u32 s%d, s%d, %d" % (sHo[3], sHo[3], HFL)]
        self.bg = init
        started = set()
        lastuse = {k: n for n, (i, k) in enumerate(order)}
        fin = {i: max(n for n, (ii, k) in enumerate(order) if ii == i) for i in range(4)}

        def read(n):
            return "ds_read_b128 %s, v%d offset:%d" % (q(AB + (n % 4) * 4), vAk, (n % 20) * 1024)

        def compute(n):
            i, k = order[n]
            if i == 0:
                self.need("init")
            regs = self.bget([(name, k * 5 + ct) for ct in range(5)])
            fst = i != 0 and i not in started
            started.add(i)

            def mk(ct):
                def f():
                    self.mfma(ACC + (i * 5 + ct) * 4, regs[ct], AB + (n % 4) * 4, first=fst)
                    if ct == 0 and n + 20 < n_units:
                        self.stream.append(self.item_pk(is4, n + 20))
                    if ct == 4 and lastuse[k] == n:
                        for c in range(5):
                            self.bfree((name, k * 5 + c))
                return f
            return [mk(ct) for ct in range(5)]

        pre_read = {n: (lambda n=n: self.vwait([("Ak", n)])) for n in range(n_units)}
        pre_unit = {}

        def writes(i):
            return [DS("rw", "ds_write_b128 v%d, %s offset:%d" % ((vRw1, vRw2, vRw3)[i - 1], q(ACC + (i * 5 + ct) * 4), ct * 1024), 24)
                    for ct in range(5)]

        def spaced(ws, n):
            out = []
            for w in ws:
                out += [w, n]
            return out

        staged = bool(self.sq)
        if not last and self.opt("xtouch%d" % which, 0):
            def xt(soff, imm):
                return Load("touch", [], lambda: a.vm("touch", "buffer_load_dword v0, v%d, %s, s%d offen offset:%d" % (vL0, sWS, soff, imm)))
            pre_unit[28 if is4 else 4] = lambda: self.stream.extend([xt(sXd0, 0), xt(sXd0, 1024), xt(sXdh, 0), xt(sStd, 0)])

        def first_writes():
            if staged:
                assert not self.sq
                e("s_barrier")
            self.bg.extend([1] + spaced(writes(1), 2))
        pre_unit[fin[1] + 1] = first_writes
        pre_unit[fin[2] + 1] = lambda: self.bg.extend([1] + spaced(writes(2), 2))

        def stage1():
            self.b_on = bool(self.opt("ball", 0))
            self.drain_bg()
            a.wait(ds=["rw"])
            e("s_barrier")
            ops = []
            w3 = writes(3)
            for ct in range(5):
                for j in range(2):
                    ops.append(DS(("rr", j, ct), "ds_read_b128 %s, v%d offset:%d" %
                                  (q(ACC + 20 + (j * 5 + ct) * 4), vRr, (j * 5 + ct) * 1024)))
                ops.append(w3[ct])
            ops.append(self.mark("w3"))
            for ct in range(5):
                ops.append(WD([("rr", 1, ct)]))
                ops += ["v_add_f32 v%d, v%d, v%d" % (ACC + 20 + 4 * ct + r, ACC + 20 + 4 * ct + r, ACC + 40 + 4 * ct + r)
                        for r in range(4)]
            self.bg.extend(ops)
        pre_unit[fin[3] + 1] = stage1
        self.deadline = {("Ak", n): n for n in range(n_units)}
        for n, (i, k) in reversed(list(enumerate(order))):
            for ct in range(5):
                self.deadline[(name, k * 5 + ct)] = n - self.opt("blead", 4)
        self.period = self.opt("perk", 64)
        self.minlead = self.opt("leadk", 12)
        self.gapdt = self.opt("dtk", 18)
        self.b_on = True
        self.b_stop = name if (is4 and self.opt("bstop4", 0)) else None
        self.unit_loop(n_units, read, compute, look=3, pre_read=pre_read, pre_unit=pre_unit, name="p%d_%d" % (which, layer))
        self.b_on = bool(self.opt("ball", 0))
        self.b_stop = None
        self.unstage = False
        self.minlead = None
        self.deadline = {}
        self.stamp("p%d_%d_loop" % (which, layer))
        self.need("w3")
        a.wait(ds=["rw"])
        e("s_barrier")
        self.stamp("p%d_%d_gemm" % (which, layer))
        for ct in range(5):
            a.ds(("rr", 2, ct), "ds_read_b128 %s, v%d offset:%d" % (q(ACC + 60 + ct * 4), vRr, (10 + ct) * 1024))
        self.period = self.opt("pere", 64)
        if typ == 1 and not last:
            self.poll_issue()
        self.drain_bg()
        for ct in range(5):
            for hh in (0, 2):
                ev("v_pk_add_f32 %s, %s, %s" % (p2(ACC + 4 * ct + hh), p2(ACC + 4 * ct + hh), p2(ACC + 20 + 4 * ct + hh)))
        srd, v0_, vh, o2, d0, dh = (sOUT, vOut, vOutH, 64, sA2, sA3) if last else (sWS, vL0, vHalf, 1024, sXd0, sXdh)
        s0, s1 = vT1, vT2
        for ct in range(5):
            a.wait(ds=[("rr", 2, ct)])
            for hh in (0, 2):
                ev("v_pk_add_f32 %s, %s, %s" % (p2(ACC + 4 * ct + hh), p2(ACC + 4 * ct + hh), p2(ACC + 60 + 4 * ct + hh)))
            ev("v_cvt_pk_bf16_f32 v%d, v%d, v%d" % (vRes + 2 * ct, ACC + 4 * ct, ACC + 4 * ct + 1))
            ev("v_cvt_pk_bf16_f32 v%d, v%d, v%d" % (vRes + 2 * ct + 1, ACC + 4 * ct + 2, ACC + 4 * ct + 3))
            if ct == 1:
                a.vm("st", "buffer_store_dwordx4 %s, v%d, %s, s%d offen" % (q(vRes), v0_, srd, d0))
            if ct == 3:
                a.vm("st", "buffer_store_dwordx4 %s, v%d, %s, s%d offen offset:%d" % (q(vRes + 4), v0_, srd, d0, o2))
            if ct == 4:
                a.vm("st", "buffer_store_dwordx2 %s, v%d, %s, s%d offen" % (p2(vRes + 8), vh, srd, dh))
        if last:
            self.stamp("p4_1_end")
            return
        for r in range(10):
            ev("v_dot2_f32_bf16 v%d, v%d, s%d, %s" % (s0, vRes + r, sOnes, "0" if r == 0 else "v%d" % s0))
            ev("v_dot2_f32_bf16 v%d, v%d, v%d, %s" % (s1, vRes + r, vRes + r, "0" if r == 0 else "v%d" % s1))
        ev("v_permlane16_swap_b32 v%d, v%d" % (s0, s1))
        ev("v_add_f32 v%d, v%d, v%d" % (s0, s0, s1))
        ev("v_mov_b32 v%d, v%d" % (s1, s0))
        ev("v_permlane32_swap_b32 v%d, v%d" % (s0, s1))
        ev("v_add_f32 v%d, v%d, v%d" % (vHst, s0, s1))
        e("s_mov_b64 exec, %s" % sp(sMaskA))
        a.vm("st", "buffer_store_dword v%d, v%d, %s, s%d offen" % (vHst, vSt, sWS, sStd))
        e("s_mov_b64 exec, -1")
        val = 6 * layer + (6 if is4 else 3)

        def halo_out():
            sk = a.newlabel("nohalo")
            e("s_cmp_lg_u32 s%d, 3" % sW)
            e("s_cbranch_scc1 %s" % sk)
            e("buffer_store_dwordx4 %s, v%d, %s, s%d offen sc1" % (q(vRes), vL0, sWS, sHo[0]))
            e("buffer_store_dwordx4 %s, v%d, %s, s%d offen offset:1024 sc1" % (q(vRes + 4), vL0, sWS, sHo[0]))
            e("buffer_store_dwordx2 %s, v%d, %s, s%d offen sc1" % (p2(vRes + 8), vHalf, sWS, sHo[1]))
            e("s_mov_b64 exec, %s" % sp(sMaskA))
            e("buffer_store_dword v%d, v%d, %s, s%d offen sc1" % (vHst, vSt, sWS, sHo[2]))
            e("s_mov_b64 exec, -1")
            a.label(sk)
            a.vm("hmark", "buffer_load_dword v0, v%d, %s, s%d offen" % (vFl, sWS, sFlBase))

        def halo_flag():
            a.wait(vm=["hmark"])
            sk = a.newlabel("nohf")
            e("s_cmp_lg_u32 s%d, 3" % sW)
            e("s_cbranch_scc1 %s" % sk)
            e("v_mov_b32 v%d, 1" % vT0)
            e("s_mov_b64 exec, 1")
            e("buffer_store_dword v%d, off, %s, s%d sc1" % (vT0, sWS, sHo[3]))
            e("s_mov_b64 exec, -1")
            a.label(sk)

        if typ == 0:
            self.publish(val)
            self.bpref(self.opt("bwait%d_%d" % (which + 10, layer), 6 if (layer == 0 and not is4) else 0))
            self.poll(val, sMaskA)
            self.next_fetch(layer, is4)
            self.flush(n=10)
            self.pending = []
        else:
            self.poll_check(val, sMaskA)
            self.next_fetch(layer, is4)
            self.flush(n=6)
            self.publish(val)
            self.pending = [halo_out, halo_flag] if is4 else []
        self.stamp("p%d_%d_end" % (which, layer))

    def next_fetch(self, layer, is4):
        st = self.items_stats(0)
        if is4:
            i0, i1 = self.items_p1(0, 0, "A0"), self.items_p1(0, 1, "A0")
            it = i0[:4] + st + i0[4:] + i1
        else:
            it = self.items_p3(0, 2, "A0") + st + [x for i in (3, 0, 1) for x in self.items_p3(0, i, "A0")]
        self.urgent = set(ld.tag for ld in it)
        self.stream.extend(it)

    P3_ACC = W0
    P3_AB = W0 + 48
    P3_CT = [W0 + 80, W0 + 84, W0 + 88, W0 + 92, W0 + 100, W0 + 104]
    P3_OUT = W0 + 108
    P3_MS = [46, W0 + 114]

    def p3(self, layer):
        a, e, DS, WD = self.a, self.e, self.DS, self.WD
        typ = self.typ
        name = ("W1", layer)
        ACC, AB, CT, OUT = self.P3_ACC, self.P3_AB, self.P3_CT, self.P3_OUT
        self.stamp("p3_%d_begin" % layer)
        phases = [(sb, i) for sb in range(2) for i in (2, 3, 0, 1)]
        units = [(sb, i, k) for sb, i in phases for k in range(10)]

        def read(u):
            sb, i, k = units[u]
            return "ds_read_b128 %s, v%d offset:%d" % (q(AB + (u % 8) * 4), vP3a if i < 2 else vP3b, (i & 1) * 20480 + k * 2048)

        def compute(u):
            sb, i, k = units[u]
            regs = self.bget([(name, k * 3 + ct) for ct in range(3)])

            def mk(ct):
                def f():
                    self.mfma(ACC + (i * 3 + ct) * 4, regs[ct], AB + (u % 8) * 4, first=(k == 0))
                    if ct == 2 and u >= 70:
                        for c in range(3):
                            self.bfree((name, k * 3 + c))
                return f
            return [mk(ct) for ct in range(3)]

        pre_read, pre_unit = {}, {}

        def hook(d, u, f):
            old = d.get(u)
            d[u] = f if old is None else (lambda: (old(), f()))

        def tags(p):
            sb, i = phases[p]
            return [("A%d" % sb, i, j) for j in range(5)]

        def sync(tg):
            def f():
                self.vwait(tg)
                e("s_barrier")
            return f

        def soon(f):
            return lambda: self.bg.insert(0, B_(f))

        def writes(i):
            ops = [2]
            for ct in range(3):
                ops += [DS("ew", "ds_write_b128 v%d, %s offset:%d" % (vE3w, q(ACC + (i * 3 + ct) * 4), ((i - 2) * 3 + ct) * 1024), 24), 1]
            return ops + [self.mark("ew")]

        def consts():
            o = ["s_lshr_b32 s%d, s%d, 1" % (sA3, sW),
                 "s_mul_i32 s%d, s%d, 192" % (sA3, sA3),
                 "v_add_u32 v%d, s%d, v%d" % (OUT, sA3, vG)]
            for ct in range(3):
                for z in range(2):
                    o.append(DS("c3", "ds_read_b128 %s, v%d offset:%d" % (q(CT[2 * ct + z]), OUT, L_CT + 480 + z * 384 + ct * 64)))
            return o

        def fetch(sb):
            ops = []
            for i in range(2):
                ms = self.P3_MS[i]
                ops += ["v_add_u32 v%d, s%d, v%d" % (ms, sK256, vSl),
                        DS(("ms", i), "ds_read_b64 %s, v%d offset:%d" % (p2(ms), ms, sb * 512 + i * 128))]
                for ct in range(3):
                    ops.append(DS(("er", i, ct), "ds_read_b128 %s, v%d offset:%d" %
                                  (q(ACC + 24 + (i * 3 + ct) * 4), vE3r, (i * 3 + ct) * 1024)))
            return ops + [4]

        def zz(i):
            ms = self.P3_MS[i]
            ops = [WD([("er", i, 2), "c3"])]
            for ct in range(3):
                z = ACC + 24 + (i * 3 + ct) * 4
                ops += ["v_fma_f32 v%d, -v%d, v%d, v%d" % (z + r, CT[2 * ct] + r, ms, z + r) for r in range(4)]
                ops += ["v_fma_f32 v%d, v%d, v%d, v%d" % (z + r, z + r, ms + 1, CT[2 * ct + 1] + r) for r in range(4)]
            return ops

        def epi(sb, i, packed=False):
            ms = self.P3_MS[i]
            ops = ["s_add_u32 s%d, s%d, %d" % (sA1, sHd, sb * SBH + i * 48 * KB)]
            for ct in range(3):
                acc = ACC + (i * 3 + ct) * 4
                z = acc + 24
                if packed:
                    ops += ["v_pk_fma_f32 %s, %s, %s, %s op_sel:[0,1,0] op_sel_hi:[1,1,1]" %
                            (p2(acc + hh), p2(acc + hh), p2(ms), p2(z + hh)) for hh in (0, 2)]
                else:
                    ops += ["v_fma_f32 v%d, v%d, v%d, v%d" % (acc + r, acc + r, ms + 1, z + r) for r in range(4)]
            ops.append(self.mark(("zfree", i)))
            for ct in range(3):
                acc = ACC + (i * 3 + ct) * 4
                ops += ["v_mul_f32 v%d, v%d, abs(v%d)" % (acc + r, acc + r, acc + r) for r in range(4)]
                o = OUT + 2 * ct
                ops += ["v_cvt_pk_bf16_f32 v%d, v%d, v%d" % (o, acc, acc + 1),
                        "v_cvt_pk_bf16_f32 v%d, v%d, v%d" % (o + 1, acc + 2, acc + 3),
                        "v_pk_max_i16 v%d, v%d, 0" % (o, o),
                        "v_pk_max_i16 v%d, v%d, 0" % (o + 1, o + 1)]
                if ct == 1:
                    ops.append(V_(lambda: a.vm("st", "buffer_store_dwordx4 %s, v%d, %s, s%d offen" % (q(OUT), vHf, sWS, sA1))))
                if ct == 2:
                    ops.append(V_(lambda o=o: a.vm("st", "buffer_store_dwordx2 %s, v%d, %s, s%d offen offset:1024" %
                                                   (p2(o), vHh, sWS, sA1))))
            return ops + [self.mark(("epi", i))]

        self.bg = []
        MID = self.opt("mid3", 5)
        hook(pre_read, 0, sync(tags(0)))
        hook(pre_read, 10, sync(tags(1)))
        hook(pre_read, 20, sync(tags(2)))
        hook(pre_read, 30, sync(tags(3)))
        hook(pre_read, 40, sync(tags(4)))
        hook(pre_read, 50, sync(tags(5)))
        hook(pre_read, 60, sync(tags(6)))
        hook(pre_read, 70, sync(tags(7)))
        for sb in range(2):
            b = 40 * sb
            hook(pre_unit, b + 10, lambda: self.bg.__setitem__(slice(0, 0), writes(2)))
            hook(pre_unit, b + 20, lambda: (self.need("ew"), self.bg.__setitem__(slice(0, 0), writes(3))))
            hook(pre_unit, b + 31, lambda sb=sb: self.bg.extend(epi(sb, 0)))
        look = self.opt("look3", 5)

        def pre_mid(sb):
            def f():
                self.need("ew")
                self.need(("st", sb))
                a.wait(ds=["ew", "sw"])
            return f
        for sb in range(2):
            old = pre_read[40 * sb + 30]
            pre_read[40 * sb + 30] = (lambda sb=sb, old=old: (pre_mid(sb)(), old(), self.bg.extend(fetch(sb) + zz(0) + zz(1))))
        hook(pre_unit, 40, lambda: self.need(("zfree", 0)))
        hook(pre_unit, 41, lambda: self.bg.extend(epi(0, 1)))
        hook(pre_unit, 50, lambda: self.need(("zfree", 1)))
        hook(pre_unit, 60, lambda: self.need(("epi", 0)))
        hook(pre_unit, 1, lambda: self.bg.extend(consts()))
        if layer == 0:
            hook(pre_unit, 10, lambda: setattr(self, "stage_free", list(range(self.opt("nstage", 13)))))
            hook(pre_unit, 70, lambda: setattr(self, "stage_free", []))
        hook(pre_unit, 8, lambda: self.bg.extend(self.stats_share(0) + [self.mark(("st", 0))]))
        hook(pre_unit, self.opt("iss3", 8), soon(self.poll_issue))
        self.marks.discard("chk3")
        hook(pre_unit, self.opt("chk3", 20), lambda: (self.need(("st", 0)), self.bg.insert(0, B_(lambda: (
            self.poll_check(6 * layer + 3, sMaskB),
            self.stream.extend(self.items_p3(1, 2, "A1") + self.items_stats(1)), self.marks.add("chk3"))))))
        hook(pre_read, 30, lambda: (self.need("chk3"), self.stream.extend(self.items_p3(1, 3, "A1"))))
        hook(pre_read, 40, lambda: self.stream.extend(self.items_p3(1, 0, "A1")))
        hook(pre_read, 50, lambda: self.stream.extend(self.items_p3(1, 1, "A1") + [self.item_code()]))
        hook(pre_unit, 52, lambda: self.bg.extend(self.stats_share(1) + [self.mark(("st", 1))]))
        hook(pre_unit, 40, lambda: self.stamp("p3_%d_a" % layer))
        hook(pre_unit, 62, lambda: (self.need(("epi", 1)), self.bg.insert(0, B_(lambda: self.publish(6 * layer + 4)))))
        self.deadline = {}
        for n, (sb, i, k) in reversed(list(enumerate(units))):
            self.deadline[("A%d" % sb, i, k // 2)] = n
            for ct in range(3):
                self.deadline[(name, k * 3 + ct)] = n - self.opt("blead3", 12)
        self.period = self.opt("per3", 64)
        self.gapdt = self.opt("dt3", 18)
        self.b_on = True
        self.hurry = self.opt("hurry3", 45)
        hook(pre_unit, 80 - self.opt("bstop3", 2), lambda: setattr(self, "b_on", bool(self.opt("ball", 0))))
        self.unit_loop(len(units), read, compute, look=look, pre_read=pre_read, pre_unit=pre_unit, wait_every=2,
                       name="p3_%d" % layer, every=5)
        self.hurry = 10 ** 9
        self.b_on = bool(self.opt("ball", 0))
        self.deadline = {}
        self.stamp("p3_%d_loop" % layer)
        self.period = self.opt("pere", 64)
        if typ == 0:
            self.poll_issue()
        self.drain_bg()
        self.bg = epi(1, 1, packed=True)
        self.drain_bg()
        if typ == 0:
            e("s_barrier")
            self.poll_check(6 * layer + 4, sMask16)
            self.stream.extend([self.item_pk(True, n) for n in range(20)])
            self.flush(n=6)
            self.bpref(self.opt("bwait3a_%d" % layer, 0))
        else:
            self.bpref(self.opt("bwait3_%d" % layer, (6, 0)[layer]))
        self.publish(6 * layer + 5)
        self.stamp("p3_%d_end" % layer)

    def program(self):
        e = self.e
        lab = "prog_%d" % self.typ
        self.a.label(lab)
        e("s_getpc_b64 s[20:21]")
        e("s_mov_b32 s22, %s-%s-4" % ("main_typeb" if self.typ == 0 else "main_end", lab))
        e("s_mov_b32 s23, 0x20000")
        for layer in range(2):
            self.queue_b(("WO", layer), sWOb, 25)
            self.queue_b(("W1", layer), sW1b, 30)
            self.queue_b(("W2", layer), sW2b, 60)
        self.pending = []
        for layer in range(2):
            self.p1(layer)
            self.pk(layer, 2)
            self.p3(layer)
            self.pk(layer, 4)
        if self.stamps:
            self.rstamp(63)
            e("s_lshl_b32 s%d, s2, 2" % sA0)
            e("s_add_u32 s%d, s%d, s%d" % (sA0, sA0, sW))
            e("s_lshl_b32 s%d, s%d, 8" % (sA0, sA0))
            e("s_add_u32 s%d, s%d, %d" % (sA0, sA0, DBG))
            e("buffer_store_dword v%d, v%d, %s, s%d offen" % (vStamp, vFl, sWS, sA0))
        e("s_endpgm")
        for l in self.cold:
            self.a.raw(l)

    def build(self):
        import copy
        a, e = self.a, self.e
        a.label("main_kernel")
        self.prologue()
        e("s_cmp_lt_u32 s%d, 8" % sM)
        e("s_cbranch_scc0 main_typeb")
        st = [Load(ld.tag, ld.pre, ld.issue) for ld in self.stream]
        saved = (list(a.vmq), list(a.dsq), st, self.credit, self.period, self.nstamp, list(a.hist))
        self.program()
        a.label("main_typeb")
        self.log_a = self.log
        self.reset_state()
        self.typ = 1
        a.vmq, a.dsq, self.stream, self.credit, self.period, self.nstamp, a.hist = saved
        self.program()
        a.label("main_end")
        return a.text()
```

```python
from layout import *

MATS = {0: (3840, 30, 5), 1: (3072, 24, 5), 2: (1280, 10, 5), 3: (1280, 10, 12)}
TAB_BASE = {0: 0, 1: 480, 2: 864, 3: 1024}
NKQ = 5


def jobs():
    lst = []
    for mat in (0, 2, 1, 3):
        pitch, ncb, nkq = MATS[mat]
        lst += [(mat, cb, kq) for kq in range(nkq) for cb in range(ncb)]
    assert len(lst) == 440
    return lst + [(4, 0, 0)] * (512 - len(lst))


def col_table():
    t = []
    for c in range(480):
        t += list(wq_col(4 * c))
    for c in range(384):
        t += list(w1_col(4 * c))
    for c in range(160):
        t += list(wo_col(4 * c))
    for c in range(160):
        t += list(w2_col(4 * c))
    return t


def job_table():
    return [m | cb << 8 | kq << 16 for m, cb, kq in jobs()]


class P0:
    def __init__(self, a, sreg, v0, lds, ws, stf):
        self.a, self.s, self.v, self.lds, self.ws, self.stf = a, sreg, v0, lds, ws, stf

    def decode(self, r, wg):
        e, s = self.a.e, self.s
        P = s["par"] + 12 * r
        mat, cb, ks, pitch, tab, gst, ksoff, kq, A, B, Dd, tmp = range(P, P + 12)
        srd = s["src"] + 4 * r
        lab = self.a.newlabel
        done = lab("p0d")
        e("s_add_u32 s%d, s%d, %d" % (tmp, wg, 256 * r))
        bounds = [(0, 0, 150), (2, 150, 200), (1, 200, 320), (3, 320, 440)]
        magic = {30: 2185, 24: 2731, 10: 6554}
        e("s_mov_b32 s%d, 4" % mat)
        for x in (cb, ks, pitch, tab, gst, ksoff, A, B, Dd):
            e("s_mov_b32 s%d, 0" % x)
        e("s_mov_b32 s%d, -1" % kq)
        e("s_mov_b32 s%d, s%d" % (srd, s["ptr"][0]))
        e("s_mov_b32 s%d, s%d" % (srd + 1, s["ptr"][0] + 1))
        e("s_mov_b32 s%d, 0" % (srd + 2))
        e("s_mov_b32 s%d, 0x20000" % (srd + 3))
        for m, lo, hi in bounds:
            if hi <= 256 * r or lo >= 256 * (r + 1):
                continue
            nxt = lab("p0n")
            pit, ncb, nkq = MATS[m]
            e("s_cmp_ge_u32 s%d, %d" % (tmp, hi))
            e("s_cbranch_scc1 %s" % nxt)
            e("s_mov_b32 s%d, %d" % (mat, m))
            e("s_sub_u32 s%d, s%d, %d" % (tmp, tmp, lo))
            e("s_mul_i32 s%d, s%d, %d" % (ks, tmp, magic[ncb]))
            e("s_lshr_b32 s%d, s%d, 16" % (ks, ks))
            e("s_mul_i32 s%d, s%d, %d" % (cb, ks, ncb))
            e("s_sub_u32 s%d, s%d, s%d" % (cb, tmp, cb))
            if m in (0, 1):
                e("s_mov_b32 s%d, s%d" % (kq, ks))
            e("s_lshl_b32 s%d, s%d, 2" % (ks, ks))
            e("s_add_u32 s%d, s%d, s%d" % (ks, ks, s["w"]))
            e("s_mov_b32 s%d, %d" % (pitch, pit))
            e("s_mov_b32 s%d, %d" % (tab, TAB_BASE[m] * 8))
            e("s_mov_b32 s%d, %d" % (gst, 512 if m == 0 else 256))
            e("s_mov_b32 s%d, s%d" % (srd, s["ptr"][m]))
            e("s_mov_b32 s%d, s%d" % (srd + 1, s["ptr"][m] + 1))
            e("s_mov_b32 s%d, %d" % (srd + 2, {0: D * 3 * D * 2, 1: D * F * 2, 2: D * D * 2, 3: F * D * 2}[m]))
            for x, val in ((A, 4 if m == 2 else 8), (B, 20 if m == 2 else 0), (Dd, 20 if m == 2 else 4)):
                e("s_mov_b32 s%d, %d" % (x, val))
            if m == 1:
                e("s_lshr_b32 s%d, s%d, 1" % (ksoff, ks))
                e("s_mul_i32 s%d, s%d, %d" % (ksoff, ksoff, 3 * KB))
                e("s_and_b32 s%d, s%d, 1" % (tmp, ks))
                e("s_mul_i32 s%d, s%d, %d" % (tmp, tmp, 30 * KB))
                e("s_add_u32 s%d, s%d, s%d" % (ksoff, ksoff, tmp))
            else:
                e("s_mul_i32 s%d, s%d, %d" % (ksoff, ks, (2 if m == 0 else 5) * KB))
            e("s_branch %s" % done)
            self.a.label(nxt)
        self.a.label(done)

    def lanes(self, lane):
        e, v = self.a.e, self.v
        e("v_lshrrev_b32 v%d, 3, v%d" % (v, lane))
        e("v_and_b32 v%d, 7, v%d" % (v + 1, lane))
        e("v_lshlrev_b32 v%d, 4, v%d" % (v + 1, v + 1))
        e("v_lshrrev_b32 v%d, 4, v%d" % (v + 2, lane))
        e("v_and_b32 v%d, 15, v%d" % (v + 3, lane))

    def issue(self, r):
        a, e, s, v = self.a, self.a.e, self.s, self.v
        P = s["par"] + 12 * r
        mat, cb, ks, pitch, tab, gst, ksoff, kq, A, B, Dd, tmp = range(P, P + 12)
        srd = "s[%d:%d]" % (s["src"] + 4 * r, s["src"] + 4 * r + 3)
        t0, t1 = v + 4, v + 5
        e("v_and_b32 v%d, 3, v%d" % (t0, v))
        e("v_lshrrev_b32 v%d, 2, v%d" % (t1, v))
        e("v_mad_u32_u24 v%d, v%d, s%d, v%d" % (t0, t1, Dd, t0))
        e("v_mad_u32_u24 v%d, v%d, s%d, v%d" % (t0, t0, pitch, v + 1))
        x, y = s["t"], s["t"] + 1
        for g in range(4):
            e("s_lshl_b32 s%d, s%d, 2" % (x, ks))
            e("s_add_u32 s%d, s%d, %d" % (x, x, g))
            e("s_mul_i32 s%d, s%d, 205" % (y, x))
            e("s_lshr_b32 s%d, s%d, 10" % (y, y))
            e("s_mul_i32 s%d, s%d, s%d" % (y, y, B))
            e("s_mul_i32 s%d, s%d, s%d" % (x, x, A))
            e("s_add_u32 s%d, s%d, s%d" % (x, x, y))
            e("s_mul_i32 s%d, s%d, s%d" % (x, x, pitch))
            e("s_lshl_b32 s%d, s%d, 7" % (y, cb))
            e("s_add_u32 s%d, s%d, s%d" % (x, x, y))
            e("s_add_u32 m0, s%d, %d" % (s["w8k"], self.lds + r * 4096 + g * 1024))
            a.vm(("p0", r), "buffer_load_dwordx4 v%d, %s, s%d offen lds" % (t0, srd, x))
        c4r, c4d = v + 6 + 4 * r, v + 7 + 4 * r
        e("s_cmp_eq_u32 s%d, 0" % mat)
        e("s_cselect_b64 s[%d:%d], -1, 0" % (s["m2"], s["m2"] + 1))
        for dst, sh in ((c4r, None), (c4d, 2)):
            if sh is None:
                e("v_and_b32 v%d, 3, v%d" % (t0, v + 3))
            else:
                e("v_lshrrev_b32 v%d, 2, v%d" % (t0, v + 3))
            e("v_lshl_add_u32 v%d, v%d, 2, v%d" % (dst, v + 2, t0))
            e("v_lshrrev_b32 v%d, 1, v%d" % (t1, v + 2))
            e("v_lshlrev_b32 v%d, 2, v%d" % (t1, t1))
            e("v_add_u32 v%d, v%d, v%d" % (t0, t0, t1))
            e("v_and_b32 v%d, 1, v%d" % (t1, v + 2))
            e("v_lshl_add_u32 v%d, v%d, 1, v%d" % (t0, t0, t1))
            e("v_cndmask_b32 v%d, v%d, v%d, s[%d:%d]" % (dst, t0, dst, s["m2"], s["m2"] + 1))
        e("s_lshl_b32 s%d, s%d, 7" % (x, cb))
        e("s_add_u32 s%d, s%d, s%d" % (x, x, tab))
        e("v_lshlrev_b32 v%d, 3, v%d" % (t0, c4d))
        a.vm(("p0", r), "buffer_load_dwordx2 v[%d:%d], v%d, %s, s%d offen" % (v + 8 + 4 * r, v + 9 + 4 * r, t0, s["tab"], x))
        e("v_lshrrev_b32 v%d, 2, v%d" % (t0, v + 3))
        e("v_lshlrev_b32 v%d, 7, v%d" % (t0, t0))
        e("v_lshl_add_u32 v%d, v%d, 3, v%d" % (c4r, c4r, t0))
        e("v_add_u32 v%d, s%d, v%d" % (c4r, s["w8k"], c4r))

    def finish(self, r, red):
        a, e, s, v = self.a, self.a.e, self.s, self.v
        P = s["par"] + 12 * r
        mat, cb, ks, pitch, tab, gst, ksoff, kq, A, B, Dd, tmp = range(P, P + 12)
        c4r, c4d, dst, cso = v + 6 + 4 * r, v + 7 + 4 * r, v + 8 + 4 * r, v + 9 + 4 * r
        G = v + 16
        t0, t1 = v + 4, v + 5
        skip = a.newlabel("p0s")
        a.wait(vm=[("p0", r)])
        for g in range(4):
            for z in range(2):
                a.ds(("p0t", g), "ds_read_b64_tr_b16 v[%d:%d], v%d offset:%d" %
                     (G + 4 * g + 2 * z, G + 4 * g + 2 * z + 1, c4r, self.lds + r * 4096 + g * 1024 + z * 512))
        e("v_and_b32 v%d, 3, v%d" % (t0, v + 3))
        e("v_lshl_add_u32 v%d, v%d, 4, v%d" % (dst, t0, dst))
        e("v_lshl_add_u32 v%d, v%d, 2, v%d" % (cso, t0, cso))
        e("v_lshl_add_u32 v%d, v%d, 2, v%d" % (c4d, c4d, t0))
        a.wait_all(ds=True)
        e("s_cmp_eq_u32 s%d, 4" % mat)
        e("s_cbranch_scc1 %s" % skip)
        for g in range(4):
            e("buffer_store_dwordx4 v[%d:%d], v%d, %s, s%d offen%s" % (G + 4 * g, G + 4 * g + 3, dst, self.ws, ksoff, self.stf))
            if g < 3:
                e("s_add_u32 s%d, s%d, s%d" % (ksoff, ksoff, gst))
        nob = a.newlabel("p0b")
        e("s_and_b32 s%d, s%d, 1" % (tmp, mat))
        e("s_cmp_eq_u32 s%d, 0" % ks)
        e("s_cselect_b32 s%d, s%d, 0" % (tmp, tmp))
        e("s_cmp_eq_u32 s%d, 0" % tmp)
        e("s_cbranch_scc1 %s" % nob)
        srd = s["src"] + 4 * r
        e("s_cmp_eq_u32 s%d, 1" % mat)
        e("s_cselect_b32 s%d, s%d, s%d" % (srd, s["b1"], s["b2"]))
        e("s_cselect_b32 s%d, s%d, s%d" % (srd + 1, s["b1"] + 1, s["b2"] + 1))
        e("s_cselect_b32 s%d, 384, 0" % tmp)
        e("s_mov_b32 s%d, %d" % (srd + 2, D * 2))
        e("s_cselect_b32 s%d, %d, s%d" % (srd + 2, F * 2, srd + 2))
        e("s_lshl_b32 s%d, s%d, 7" % (cb, cb))
        e("v_lshlrev_b32 v%d, 1, v%d" % (t0, c4d))
        e("buffer_load_ushort v%d, v%d, s[%d:%d], s%d offen" % (t0, t0, srd, srd + 3, cb))
        e("s_waitcnt vmcnt(0)")
        e("v_lshlrev_b32 v%d, 16, v%d" % (t0, t0))
        e("buffer_store_dword v%d, v%d, %s, s%d offen%s" % (t0, cso, self.ws, tmp, self.stf))
        a.label(nob)
        a.label(skip)
        for k in range(16):
            e("v_dot2_f32_bf16 v%d, v%d, s%d, %s" % (t0, G + k, s["ones"], "0" if k == 0 else "v%d" % t0))
        e("v_lshlrev_b32 v%d, 2, v0" % t1)
        e("ds_write_b32 v%d, v%d offset:%d" % (t1, t0, red))
        e("s_waitcnt lgkmcnt(0)")
        e("s_barrier")
        noc = a.newlabel("p0c")
        e("s_cmp_lt_i32 s%d, 0" % kq)
        e("s_cbranch_scc1 %s" % noc)
        e("s_cmp_lg_u32 s%d, 0" % s["w"])
        e("s_cbranch_scc1 %s" % noc)
        for k in range(1, 4):
            e("ds_read_b32 v%d, v%d offset:%d" % (G + k, t1, red + 256 * k))
        e("s_waitcnt lgkmcnt(0)")
        e("v_add_f32 v%d, v%d, v%d" % (t0, t0, G + 1))
        e("v_add_f32 v%d, v%d, v%d" % (G + 2, G + 2, G + 3))
        e("v_add_f32 v%d, v%d, v%d" % (t0, t0, G + 2))
        e("s_lshl_b32 s%d, s%d, 15" % (kq, kq))
        e("buffer_store_dword v%d, v%d, %s, s%d offen%s" % (t0, cso, self.ws, kq, self.stf))
        a.label(noc)

    def x_issue(self, lane):
        a, e, s, v = self.a, self.a.e, self.s, self.v
        X = s["xp"]
        tile, w5, xd, sd, t = range(X, X + 5)
        srd = s["xsrd"]
        e("s_lshl_b32 s%d, s%d, 2" % (t, s["m"]))
        e("s_add_u32 s%d, s%d, s%d" % (t, t, s["w"]))
        e("s_mul_i32 s%d, s%d, 205" % (tile, t))
        e("s_lshr_b32 s%d, s%d, 10" % (tile, tile))
        e("s_mul_i32 s%d, s%d, 5" % (w5, tile))
        e("s_sub_u32 s%d, s%d, s%d" % (w5, t, w5))
        e("s_add_u32 s%d, s%d, 1" % (t, tile))
        e("s_cmp_gt_u32 s%d, 3" % tile)
        e("s_cselect_b32 s%d, s%d, s%d" % (t, tile, t))
        e("s_cmp_eq_u32 s%d, 4" % tile)
        e("s_cselect_b32 s%d, 0, s%d" % (t, t))
        e("s_cmp_eq_u32 s%d, 8" % tile)
        e("s_cselect_b32 s%d, -1, s%d" % (t, t))
        e("s_lshl_b32 s%d, s%d, 3" % (xd, s["c"]))
        e("s_add_i32 s%d, s%d, s%d" % (t, t, xd))
        e("s_max_i32 s%d, s%d, 0" % (t, t))
        e("s_mul_i32 s%d, s%d, %d" % (t, t, 16 * 1280))
        e("s_lshl_b32 s%d, s%d, 8" % (xd, w5))
        e("s_add_u32 s%d, s%d, s%d" % (t, t, xd))
        e("s_mov_b32 s%d, s%d" % (srd, s["x"]))
        e("s_mov_b32 s%d, s%d" % (srd + 1, s["x"] + 1))
        e("s_cmp_gt_u32 s%d, 8" % tile)
        e("s_cselect_b32 s%d, 0, %d" % (srd + 2, S * D * 2))
        e("s_mov_b32 s%d, 0x20000" % (srd + 3))
        e("v_mul_u32_u24 v%d, 1280, v%d" % (v + 4, v + 3))
        e("v_lshl_add_u32 v%d, v%d, 4, v%d" % (v + 4, v + 2, v + 4))
        for k in range(4):
            a.vm("p0x", "buffer_load_dwordx4 v[%d:%d], v%d, s[%d:%d], s%d offen offset:%d" %
                 (v + 32 + 4 * k, v + 35 + 4 * k, v + 4, srd, srd + 3, t, 64 * k))
        e("s_and_b32 s%d, s%d, 3" % (t, tile))
        e("s_lshl_b32 s%d, s%d, 2" % (xd, s["c"]))
        e("s_add_u32 s%d, s%d, s%d" % (t, t, xd))
        e("s_lshr_b32 s%d, s%d, 2" % (xd, tile))
        e("s_lshl_b32 s%d, s%d, 6" % (xd, xd))
        e("s_add_u32 s%d, s%d, s%d" % (t, t, xd))
        e("s_cmp_eq_u32 s%d, 8" % tile)
        e("s_cselect_b32 s%d, s%d, s%d" % (t, s["c"], t))
        e("s_mul_i32 s%d, s%d, %d" % (xd, t, 20 * KB))
        e("s_lshl_b32 s%d, s%d, 10" % (sd, t))
        e("s_cmp_eq_u32 s%d, 8" % tile)
        e("s_mov_b32 s%d, %d" % (t, X0))
        e("s_cselect_b32 s%d, %d, s%d" % (t, HX0, t))
        e("s_add_u32 s%d, s%d, s%d" % (xd, xd, t))
        e("s_cmp_eq_u32 s%d, 8" % tile)
        e("s_mov_b32 s%d, %d" % (t, ST0))
        e("s_cselect_b32 s%d, %d, s%d" % (t, HS0, t))
        e("s_add_u32 s%d, s%d, s%d" % (sd, sd, t))
        e("s_lshl_b32 s%d, s%d, 12" % (t, w5))
        e("s_add_u32 s%d, s%d, s%d" % (xd, xd, t))

    def x_finish(self, lane, vl16):
        a, e, s, v = self.a, self.a.e, self.s, self.v
        X = s["xp"]
        tile, w5, xd, sd, t = range(X, X + 5)
        skip = a.newlabel("p0x")
        a.wait(vm=["p0x"])
        e("s_cmp_gt_u32 s%d, 8" % tile)
        e("s_cbranch_scc1 %s" % skip)
        for k in range(4):
            e("buffer_store_dwordx4 v[%d:%d], v%d, %s, s%d offen offset:%d%s" %
              (v + 32 + 4 * k, v + 35 + 4 * k, vl16, self.ws, xd, 1024 * k, self.stf))
        s0, s1, z0, z1 = v + 48, v + 49, v + 50, v + 51
        for r in range(16):
            e("v_dot2_f32_bf16 v%d, v%d, s%d, %s" % (s0, v + 32 + r, s["ones"], "0" if r == 0 else "v%d" % s0))
            e("v_dot2_f32_bf16 v%d, v%d, v%d, %s" % (s1, v + 32 + r, v + 32 + r, "0" if r == 0 else "v%d" % s1))
        e("v_permlane16_swap_b32 v%d, v%d" % (s0, s1))
        e("v_add_f32 v%d, v%d, v%d" % (s0, s0, s1))
        e("v_mov_b32 v%d, v%d" % (s1, s0))
        e("v_permlane32_swap_b32 v%d, v%d" % (s0, s1))
        e("v_add_f32 v%d, v%d, v%d" % (s0, s0, s1))
        e("s_min_u32 s%d, s%d, 2" % (t, w5))
        e("s_add_u32 s%d, s%d, 5" % (t, t))
        e("v_mov_b32 v%d, s%d" % (z0, w5))
        e("v_mov_b32 v%d, s%d" % (z1, t))
        e("v_cmp_gt_u32 vcc, 32, v%d" % lane)
        e("v_cndmask_b32 v%d, v%d, v%d, vcc" % (z0, z1, z0))
        e("v_cndmask_b32 v%d, 0, v%d, vcc" % (s0, s0))
        e("v_lshrrev_b32 v%d, 1, v%d" % (z1, z0))
        e("v_lshlrev_b32 v%d, 8, v%d" % (z1, z1))
        e("v_and_b32 v%d, 1, v%d" % (z0, z0))
        e("v_lshl_add_u32 v%d, v%d, 3, v%d" % (z1, z0, z1))
        e("v_lshl_add_u32 v%d, v%d, 4, v%d" % (z1, v + 3, z1))
        e("v_and_b32 v%d, 1, v%d" % (z0, v + 2))
        e("v_lshl_add_u32 v%d, v%d, 2, v%d" % (z1, z0, z1))
        e("buffer_store_dword v%d, v%d, %s, s%d offen%s" % (s0, z1, self.ws, sd, self.stf))
        a.label(skip)
```

```python
from asmlib import Asm
from layout import *
from phase0 import P0, col_table

PREP_WGS = 256
PREP_BLOCK = 256
PREP_LDS = 36 * 1024


def table_asm(a):
    a.raw(".p2align 3")
    a.raw(".type prep_table,@object")
    a.label("prep_table")
    t = col_table()
    for i in range(0, len(t), 8):
        a.raw("    .long " + ", ".join("0x%x" % v for v in t[i:i + 8]))
    a.raw(".size prep_table, %d" % (len(t) * 4))


def gen_prep(main_label, main_end_label, opts=None):
    opts = opts or {}
    a = Asm()
    a._lab = 100000
    e = a.e
    stf = opts.get("pst", "").replace("_", " ")
    diag = opts.get("pdiag", 0)

    def rs(k):
        if diag:
            e("s_memrealtime s[%d:%d]" % (90 + 2 * k, 91 + 2 * k))

    a.label("prep_kernel")
    e("s_cmp_ge_u32 s2, %d" % PREP_WGS)
    e("s_cbranch_scc0 prep_go")
    e("s_endpgm")
    a.label("prep_go")
    rs(0)
    e("s_load_dwordx16 s[16:31], s[0:1], 0x0")
    e("s_load_dwordx2 s[4:5], s[0:1], 0x50")
    e("v_lshrrev_b32 v1, 6, v0")
    e("v_and_b32 v2, 63, v0")
    e("v_readfirstlane_b32 s3, v1")
    e("v_lshlrev_b32 v3, 4, v2")
    e("s_getpc_b64 s[34:35]")
    a.label("prep_pc")
    e("s_mov_b32 s6, %d" % WS_USED)
    e("s_mov_b32 s7, 0x20000")
    e("s_add_u32 s12, s34, prep_table-prep_pc")
    e("s_addc_u32 s13, s35, 0")
    e("s_mov_b32 s14, %d" % (1184 * 8))
    e("s_mov_b32 s15, 0x20000")
    e("s_add_u32 s36, s34, %s-prep_pc" % main_label)
    e("s_addc_u32 s37, s35, 0")
    e("s_mov_b32 s38, %s-%s" % (main_end_label, main_label))
    e("s_mov_b32 s39, 0x20000")
    e("s_mov_b32 s32, 0x3f803f80")
    e("s_lshl_b32 s33, s3, 13")
    e("s_and_b32 s8, s2, 7")
    e("s_lshl_b32 s8, s8, 1")
    e("s_lshr_b32 s9, s2, 7")
    e("s_add_u32 s8, s8, s9")
    e("s_bfe_u32 s9, s2, 0x40003")
    sreg = dict(par=56, src=40, ptr={0: 18, 1: 24, 2: 20, 3: 28}, w=3, w8k=33, t=10, m2=52, tab="s[12:15]", ones=32,
                b1=26, b2=30, xp=80, xsrd=48, x=16, m=9, c=8)
    p = P0(a, sreg, 8, 0, "s[4:7]", stf)
    p.lanes(2)
    e("s_waitcnt lgkmcnt(0)")
    p.x_issue(2)
    p.decode(0, 2)
    p.issue(0)
    e("s_lshr_b32 s10, s2, 3")
    e("s_lshl_b32 s10, s10, 2")
    e("s_add_u32 s10, s10, s3")
    e("s_lshl_b32 s10, s10, 10")
    a.vm("pf", "buffer_load_dword v63, v3, s[36:39], s10 offen")
    e("v_mov_b32 v62, 0")
    e("v_lshlrev_b32 v61, 2, v0")
    e("s_lshl_b32 s10, s2, 6")
    e("s_add_u32 s10, s10, %d" % FL)
    e("v_cmp_gt_u32 vcc, 16, v0")
    e("s_and_saveexec_b64 s[54:55], vcc")
    e("s_cbranch_execz prep_nz")
    e("buffer_store_dword v62, v61, s[4:7], s10 offen%s" % stf)
    a.label("prep_nz")
    e("s_mov_b64 exec, s[54:55]")
    p.decode(1, 2)
    if opts.get("pearly", 1):
        p.issue(1)
    p.x_finish(2, 3)
    p.finish(0, 32768)
    rs(1)
    if not opts.get("pearly", 1):
        p.issue(1)
        if diag:
            e("s_waitcnt vmcnt(5)")
    rs(2)
    p.finish(1, 33792)
    if diag:
        e("s_waitcnt vmcnt(0)")
        rs(3)
        e("s_waitcnt lgkmcnt(0)")
        for k in range(4):
            e("v_mov_b32 v%d, s%d" % (56 + k, 90 + 2 * k))
        e("s_lshl_b32 s45, s2, 2")
        e("s_add_u32 s45, s45, s3")
        e("s_lshl_b32 s45, s45, 4")
        e("s_add_u32 s45, s45, %d" % DBG)
        e("buffer_store_dwordx4 v[56:59], off, s[4:7], s45")
    e("s_endpgm")
    table_asm(a)
    return a.text()
```

```python
import re

_REG_RE = re.compile(r"\b([vas])(?:(\d+)|\[(\d+):(\d+)\])")


def regs_of(tok):
    out = []
    for m in _REG_RE.finditer(tok):
        k = m.group(1)
        if m.group(2) is not None:
            out.append((k, int(m.group(2))))
        else:
            out += [(k, i) for i in range(int(m.group(3)), int(m.group(4)) + 1)]
    if re.search(r"\bvcc\b", tok):
        out += [("s", "vcc")]
    if re.search(r"\bm0\b", tok):
        out += [("s", "m0")]
    if re.search(r"\bexec\b", tok):
        out += [("s", "exec")]
    return out


TRANS = ("v_exp_f32", "v_log_f32", "v_rcp_f32", "v_rsq_f32", "v_sqrt_f32", "v_sin_f32", "v_cos_f32")


def split_ops(s):
    ops, depth, cur = [], 0, ""
    for ch in s:
        if ch in "[(":
            depth += 1
        if ch in "])":
            depth -= 1
        if ch == "," and depth == 0:
            ops.append(cur.strip())
            cur = ""
        else:
            cur += ch
    if cur.strip():
        ops.append(cur.strip())
    return ops


class Ins:
    __slots__ = ("text", "op", "kind", "defs", "uses", "srcc", "ab", "wide_store", "states", "dpp", "lds_dma")

    def __init__(self, text):
        self.text = text
        t = text.split(";")[0].strip()
        parts = t.split(None, 1)
        op = parts[0]
        rest = parts[1] if len(parts) > 1 else ""
        ops = split_ops(rest)
        self.op = op
        self.defs, self.uses = [], []
        self.srcc, self.ab = [], []
        self.wide_store = []
        self.states = 1
        self.dpp = False
        self.lds_dma = False
        if op == "s_nop":
            self.kind = "salu"
            self.states = int(rest, 0) + 1
        elif op.startswith("v_mfma"):
            self.kind = "mfma"
            self.defs = regs_of(ops[0])
            self.ab = regs_of(ops[1]) + regs_of(ops[2])
            self.srcc = regs_of(ops[3])
            self.uses = self.ab + self.srcc
        elif op.startswith("v_"):
            self.kind = "valu"
            self.dpp = "_dpp" in op or "quad_perm" in rest or "row_" in rest
            clean = [o.split(" ")[0] if not o.startswith("abs(") else o for o in ops]
            if op.startswith("v_cmp"):
                self.defs = regs_of(clean[0])
                self.uses = sum((regs_of(o) for o in clean[1:]), [])
            elif op.startswith("v_permlane") and "swap" in op:
                self.defs = regs_of(clean[0]) + regs_of(clean[1])
                self.uses = list(self.defs)
            elif op.startswith(("v_add_co", "v_sub_co", "v_addc_co", "v_subb_co")):
                self.defs = regs_of(clean[0]) + regs_of(clean[1])
                self.uses = sum((regs_of(o) for o in clean[2:]), [])
            else:
                self.defs = regs_of(clean[0])
                self.uses = sum((regs_of(o) for o in clean[1:]), [])
                if op.startswith(("v_fmac", "v_dot2c", "v_writelane")) or self.dpp:
                    self.uses += self.defs
        elif op.startswith("buffer_") or op.startswith("global_"):
            self.kind = "vmem"
            if op in ("buffer_wbl2", "buffer_inv"):
                pass
            elif " lds" in (" " + rest):
                self.lds_dma = True
                self.uses = sum((regs_of(o.split(" ")[0]) for o in ops), []) + [("s", "m0")]
            elif "load" in op:
                self.defs = regs_of(ops[0])
                self.uses = sum((regs_of(o.split(" ")[0]) for o in ops[1:]), [])
            else:
                self.uses = sum((regs_of(o.split(" ")[0]) for o in ops), [])
                if op.endswith("x4") or op.endswith("x3"):
                    self.wide_store = regs_of(ops[0] if op.startswith("buffer_") else ops[1])
        elif op.startswith("ds_"):
            self.kind = "ds"
            if op.startswith("ds_read") or op.startswith("ds_bpermute") or op.startswith("ds_swizzle"):
                self.defs = regs_of(ops[0])
                self.uses = sum((regs_of(o.split(" ")[0]) for o in ops[1:]), [])
            else:
                self.uses = sum((regs_of(o.split(" ")[0]) for o in ops), [])
        elif op.startswith("s_"):
            self.kind = "salu"
            if op.startswith(("s_cmp", "s_cbranch", "s_branch", "s_waitcnt", "s_barrier", "s_endpgm", "s_sleep",
                              "s_setprio", "s_bitcmp")):
                self.uses = sum((regs_of(o) for o in ops), [])
            else:
                self.defs = regs_of(ops[0]) if ops else []
                self.uses = sum((regs_of(o) for o in ops[1:]), [])
                if "saveexec" in op:
                    self.defs += [("s", "exec")]
        else:
            raise ValueError("unknown instruction " + text)


def _is_vreg(r):
    return r[0] in ("v", "a")


def need_states(p, c):
    n = 0
    pd, cu, cd = set(p.defs), set(c.uses), set(c.defs)
    if p.kind == "valu":
        vd = {r for r in pd if _is_vreg(r)}
        sd = pd - vd
        isdot = p.op.startswith("v_dot")
        if c.kind == "mfma" and vd & cu:
            n = max(n, 3 if isdot else 2)
        if c.kind == "valu":
            if vd & cu:
                if c.op.startswith("v_permlane"):
                    n = max(n, 2)
                if c.dpp:
                    n = max(n, 2)
                if c.op.startswith(("v_readlane", "v_readfirstlane")):
                    n = max(n, 1)
                if p.op.startswith(TRANS) and not c.op.startswith(TRANS):
                    n = max(n, 1)
                if p.op.startswith(TRANS) and c.op.startswith(TRANS):
                    n = max(n, 1)
            if sd & cu:
                n = max(n, 4 if c.op.startswith(("v_readlane", "v_writelane")) else 2)
        if isdot and (vd & (cu | cd)):
            if c.op == p.op:
                t = split_ops(c.text.split(None, 1)[1])
                ab = set(regs_of(t[1]) + regs_of(t[2]))
                if vd & ab:
                    n = max(n, 3)
            else:
                n = max(n, 3)
        if c.kind == "vmem" and sd & cu:
            n = max(n, 5)
        if c.kind == "salu" and sd & cu:
            n = max(n, 1)
    elif p.kind == "mfma":
        if c.kind == "mfma":
            if pd & set(c.ab):
                n = max(n, 8)
            if pd & set(c.srcc):
                n = max(n, 0 if c.srcc == p.defs else 6)
            elif pd & cd:
                n = max(n, 6)
        else:
            if pd & (cu | cd):
                n = max(n, 8)
            if c.kind == "valu" and set(p.srcc) & cd:
                n = max(n, 3)
    elif p.kind == "salu":
        if ("s", "m0") in pd and c.lds_dma:
            n = max(n, 1)
    elif p.kind == "vmem":
        if p.wide_store and set(p.wide_store) & cd:
            n = max(n, 2)
    return n


class Asm:
    def __init__(self):
        self.lines = []
        self.hist = []
        self.vmq = []
        self.dsq = []
        self.nins = 0
        self.nnops = 0
        self._lab = 0
        self.whook = None
        self.t = 0

    def raw(self, s):
        self.lines.append(s)

    def comment(self, s):
        self.lines.append("    ; " + s)

    def newlabel(self, base="L"):
        self._lab += 1
        return "%s_%d" % (base, self._lab)

    def label(self, name):
        self.lines.append(name + ":")

    def fence_hazards(self, n=8):
        self.e("s_nop %d" % (n - 1))

    @staticmethod
    def after(t, ins):
        if ins.kind == "mfma":
            return 4
        if ins.kind == "salu":
            return t + 4 * ins.states
        c = 4
        if ins.op.startswith("ds_write_b128") or ins.op.startswith("ds_write_b96"):
            c = 24
        elif ins.op.startswith("ds_write"):
            c = 16
        elif ins.op.startswith(TRANS) or ins.kind == "vmem":
            c = 8
        return max(t, 8) + c

    def e(self, text):
        ins = Ins(text)
        dist = 0
        need = 0
        for p in reversed(self.hist):
            r = need_states(p, ins)
            if r > dist:
                need = max(need, r - dist)
            dist += p.states
            if dist >= 12:
                break
        if need > 0:
            nop = Ins("s_nop %d" % (need - 1))
            self.lines.append("    " + nop.text)
            self.hist.append(nop)
            self.nnops += 1
            self.t += 4 * nop.states
        self.lines.append("    " + text)
        self.hist.append(ins)
        if len(self.hist) > 40:
            self.hist = self.hist[-24:]
        self.nins += 1
        self.t = self.after(self.t, ins)
        return ins

    def vm(self, tag, text):
        self.e(text)
        self.vmq.append(tag)

    def ds(self, tag, text):
        self.e(text)
        self.dsq.append(tag)

    @staticmethod
    def _pos(q, tags):
        if not isinstance(tags, (list, tuple, set)):
            tags = [tags]
        last = -1
        for i, t in enumerate(q):
            if t in tags:
                last = i
        return last

    def wait(self, vm=None, ds=None):
        parts = []
        if vm is not None:
            i = self._pos(self.vmq, vm)
            if i >= 0:
                n = len(self.vmq) - 1 - i
                parts.append("vmcnt(%d)" % min(n, 63))
                self.vmq = self.vmq[i + 1:]
        if ds is not None:
            i = self._pos(self.dsq, ds)
            if i >= 0:
                n = len(self.dsq) - 1 - i
                parts.append("lgkmcnt(%d)" % min(n, 15))
                self.dsq = self.dsq[i + 1:]
        if parts:
            isvm = parts[0].startswith("vmcnt")
            if isvm and self.whook:
                self.whook("b:%s" % (vm,))
            self.e("s_waitcnt " + " ".join(parts))
            if isvm and self.whook:
                self.whook("WAIT:%s" % (str(vm)[:40],))

    def wait_all(self, vm=False, ds=False, force=False):
        parts = []
        if vm and (self.vmq or force):
            parts.append("vmcnt(0)")
            self.vmq = []
        if ds and (self.dsq or force):
            parts.append("lgkmcnt(0)")
            self.dsq = []
        if parts:
            self.e("s_waitcnt " + " ".join(parts))

    def text(self):
        return "\n".join(self.lines) + "\n"
```

```python
import sys, os, json
sys.path.insert(0, os.path.dirname(os.path.abspath(__file__)))
from prep import gen_prep, PREP_WGS, PREP_BLOCK, PREP_LDS
from main import Gen, LDS_BYTES

NAME = "interleave_layers__sliding_local_dilated__dense_activation_squared_relu__prompt"

def kd(name, vgpr, accum, sgpr):
    return f""".p2align 6
.amdhsa_kernel {name}
  .amdhsa_next_free_vgpr {vgpr}
  .amdhsa_next_free_sgpr {sgpr}
  .amdhsa_accum_offset {accum}
  .amdhsa_group_segment_fixed_size 0
  .amdhsa_kernarg_size 88
  .amdhsa_user_sgpr_count 2
  .amdhsa_user_sgpr_kernarg_segment_ptr 1
  .amdhsa_system_sgpr_workgroup_id_x 1
  .amdhsa_float_denorm_mode_32 3
  .amdhsa_float_denorm_mode_16_64 3
.end_amdhsa_kernel
"""

def build(stamps=False, opts=None):
    g = Gen(stamps=stamps, opts=opts)
    main = g.build()
    prep = gen_prep("main_kernel", "main_end", opts)
    hdr = open(os.path.join(os.path.dirname(os.path.abspath(__file__)), "..", "cdna_kernels", NAME + ".s.ref")).read().splitlines()
    hdr = [l for l in hdr[:12] if l.startswith(";") and "@launch" not in l]
    out = "\n".join(hdr) + "\n"
    out += "; Generated by a hand-written generator (gen/*.py): prep kernel + persistent main kernel.\n"
    out += f"; @launch kernel=prep_kernel grid=({PREP_WGS},1,1) block=({PREP_BLOCK},1,1) lds={PREP_LDS}\n"
    out += f"; @launch kernel=main_kernel grid=(256,1,1) block=(256,1,1) lds={LDS_BYTES}\n"
    out += '.amdgcn_target "amdgcn-amd-amdhsa--gfx950"\n.text\n'
    out += ".globl prep_kernel\n.p2align 8\n.type prep_kernel,@function\n" + prep
    out += ".globl main_kernel\n.p2align 8\n.type main_kernel,@function\n" + main
    out += '.section .rodata,"a"\n' + kd("prep_kernel", 72, 72, 102) + kd("main_kernel", 512, 256, 102)
    return out, g

if __name__ == "__main__":
    stamps = "--stamps" in sys.argv
    opts = {}
    for x in sys.argv[1:]:
        if x.startswith("--opt="):
            k, _, v = x[6:].partition(":")
            opts[k] = (int(v) if v.lstrip('-').isdigit() else v) if v else 1
    outp = [x for x in sys.argv[1:] if not x.startswith("--")]
    path = outp[0] if outp else os.path.join(os.path.dirname(os.path.abspath(__file__)), "..", "cdna_kernels", NAME + ".s")
    txt, g = build(stamps, opts)
    open(path, "w").write(txt)
    if stamps:
        json.dump(g.stamp_names, open(path + ".stamps.json", "w"))
    if "--log" in sys.argv:
        for nm, lg in (("A", g.log_a), ("B", g.log)):
            cur = None
            for key, d in lg:
                if key[0] != cur:
                    cur = key[0]; print("\n", nm, cur, end=": ")
                print(d, end=" ")
        print()
    print("wrote", path, "main instrs", g.a.nins, "nops", g.a.nnops, "left B queue", len(g.bq))
```

```python
import struct
from asmlib import Asm, Ins
from layout import *

LDS_BYTES_ = 163840
L_CT = 0
L_A = 4096
L_HALO = L_A + 81920
L_RED = L_A + 81920
L_EX = L_A + 102400
L_E3 = L_A + 102400
L_ST = 2048
STAGE = [L_HALO + 4096 * j for j in range(5)] + [L_E3 + 24576 + 4096 * j for j in range(8)]
LDS_BYTES = 163840
EXS = 264
EXT = 16 * EXS
SBH = 64 * 48 * KB

(vL0, vL1, vL2, vKv, vFl, vP3a, vP3b, vXw0, vX32, vXp, vXc, vXv, vM0, vM1, vM2, vM3, vSl, vE3w, vE3r,
 vRw1, vRw2, vRw3, vRr, vG, vHalf, vHh, vHf, vSt, vPoll, vT0, vT1, vT2, vAk, vHst) = range(1, 35)
vSg0, vSg1 = 35, vHst
vRes = 36
W0 = 48
vStamp = 255

sWS, sOUT, sXA, sXB, sCode = "s[4:7]", "s[8:11]", "s[12:15]", "s[16:19]", "s[20:23]"
sW, sC, sM, sCG, sMode, sSpin, sOnes, sFlBase, sFlOwn, sBcur = range(24, 34)
sMask16, sMaskA, sMaskB, sMaskW, sMaskX, sOdd, sPA, sPB, sG0, sPAx, sPBx, sTmp2, sStamp = range(34, 60, 2)
sWOb, sW1b, sW2b, sScale, sInv640, sEps, sNeg, sRtA, sRtT, sK256 = range(60, 70)
SP3 = {0: 70, 1: 71, 2: 72, 3: 73}
sR2, sR4 = 74, 78
sX1, sX3, sWk, sKvo, sKvi, sKfi, sD0 = range(82, 89)
sA0, sA1, sA2, sA3 = range(89, 93)
sOd, sHd, sXd0, sXdh, sStd, sSta, sWQ, sXcc, sXT = range(93, 102)
sKfo = 3
sFlip = 1
sW128 = 0


def fbits(x):
    return struct.unpack("<I", struct.pack("<f", x))[0]


def q(r):
    if isinstance(r, int):
        r = ("v", r)
    return "%s[%d:%d]" % (r[0], r[1], r[1] + 3)


def p2(n):
    return "v[%d:%d]" % (n, n + 1)


def sp(n):
    return "s[%d:%d]" % (n, n + 1)


class Op:
    def __init__(self, kind, fn, cost=4):
        self.kind, self.fn, self.cost = kind, fn, cost


def S_(fn):
    return Op("s", fn)


def V_(fn, cost=4):
    return Op("v", fn, cost)


def B_(fn):
    return Op("b", fn)


def Z_(fn):
    return Op("z", fn, 0)


class Load:
    def __init__(self, tag, pre, issue):
        self.tag, self.pre, self.issue = tag, list(pre), issue
        self.npre = len(self.pre)


class Core:
    def __init__(self, stamps=False, opts=None):
        self.a = Asm()
        self.stamps = stamps
        self.nstamp = 0
        self.stamp_names = []
        self.opts = opts or {}
        self.typ = 0
        self.reset_state()

    def reset_state(self):
        self.free = [("a", n) for n in range(160, 256, 4)] + [("v", n) for n in range(248 if self.stamps else 252, 172, -4)]
        self.retire = set()
        self.bq = []
        self.breg = {}
        self.bgroup = None
        self.b_stop = None
        self.b_on = False
        self.stream = []
        self.credit = 0
        self.fcredit = 0
        self.period = 64
        self.deadline = {}
        self.urgent = set()
        self.now = 0
        self.gap = 0
        self.cold = []
        self.bg = []
        self.hurry = 10 ** 9
        self.marks = set()
        self.timed = []
        self.minlead = None
        self.unit = 0
        self.gapdt = 16
        self.glen = 16
        self.bmin = 0
        self.stage_free = []
        self.sq = []
        self.unstage = False
        self.from_lds = set()
        self.bissue = {}
        self.log = []

    def opt(self, k, d):
        return self.opts.get(k, d)

    def e(self, t):
        return self.a.e(t)

    def ev(self, t, dt=5):
        self.a.e(t)
        self.advance(dt)
        self.try_load()

    def stamp(self, name, fine=False):
        if not fine:
            self.a.raw("    ; @@" + name)
        if not self.stamps:
            return
        ws = self.opts.get("wst")
        if ws is not None:
            if name == ws + "_begin":
                self.a.whook = self.wstamp
            elif name == ws + "_end":
                self.a.whook = None
            elif name != "start":
                return
            self.wstamp(name)
            return
        only = self.opts.get("only")
        if only is not None:
            if name != "start" and not name.startswith(only):
                return
        elif fine:
            return
        if self.opt("clk", 0) and not (name == "start" or name.endswith("_end") or name.endswith("_a") or name.endswith("loop")):
            return
        self.a.wait_all(ds=True)
        self.e("s_memtime %s" % sp(sStamp))
        self.e("s_waitcnt lgkmcnt(0)")
        self.e("v_writelane_b32 v%d, s%d, %d" % (vStamp, sStamp, self.nstamp))
        if self.opt("clk", 0):
            self.rstamp(30 + self.nstamp)
        if self.typ == 0:
            self.stamp_names.append(name)
        self.nstamp += 1

    def wstamp(self, name):
        if self.nstamp >= 61 or (name != "start" and self.unit < self.opt("wfrom", 0)):
            return
        self.a.dsq = []
        self.e("s_memtime %s" % sp(sStamp))
        self.e("s_waitcnt lgkmcnt(0)")
        self.e("v_writelane_b32 v%d, s%d, %d" % (vStamp, sStamp, self.nstamp))
        if self.typ == self.opt("wtyp", 0) or name == "start":
            self.stamp_names.append("%02d u%d %s" % (self.nstamp, self.unit, name))
        self.nstamp += 1

    def rstamp(self, lane):
        if not self.stamps:
            return
        self.a.wait_all(ds=True)
        self.e("s_memrealtime %s" % sp(sStamp))
        self.e("s_waitcnt lgkmcnt(0)")
        self.e("v_writelane_b32 v%d, s%d, %d" % (vStamp, sStamp, lane))

    def mfma(self, d, wa, xb, first=False):
        self.e("v_mfma_f32_16x16x32_bf16 %s, %s, %s, %s" % (q(d), q(wa), q(xb), "0" if first else q(d)))

    def mfma32(self, d, wa, xb, first=False):
        dd = "v[%d:%d]" % (d, d + 15)
        self.e("v_mfma_f32_32x32x16_bf16 %s, %s, %s, %s" % (dd, q(wa), q(xb), "0" if first else dd))

    @staticmethod
    def voff(i):
        return (vL0, vL1, vL2)[i >> 2], (i & 3) * 1024

    def cur_period(self):
        if self.stream and self.stream[0].tag in self.urgent:
            return self.opt("uper", 32)
        if self.minlead is not None:
            ds = []
            if self.stream and self.stream[0].tag in self.deadline:
                ds.append(self.deadline[self.stream[0].tag])
            if self.b_ready() and self.bq[0][0] in self.deadline:
                ds.append(self.deadline[self.bq[0][0]])
            if ds and min(ds) - self.unit < self.minlead:
                return 16
        return self.period

    def advance(self, dt):
        self.now += dt
        self.credit = min(self.credit + dt, self.cur_period() + 24)
        self.fcredit = min(self.fcredit + dt, self.bmin + 40 if self.bmin else self.opt("fcap", 900))

    def b_ready(self):
        return bool(self.bq and (self.free or self.stage_free) and (self.b_stop is None or self.bq[0][0][0] == self.b_stop))

    def bcost(self):
        c = self.opt("w1cost", 110) if self.bq[0][0][0][0] == "W1" else self.opt("wcost", 72)
        return max(c, self.bmin)

    def pick_load(self):
        if self.credit < self.cur_period():
            return None
        if self.b_ready():
            db = self.deadline.get(self.bq[0][0])
            if db is not None:
                if (not self.stream) or db < self.deadline.get(self.stream[0].tag, -1):
                    return "b"
            elif self.b_on and self.fcredit >= self.bcost() and (
                    not self.stream or (self.opt("bmix", 0) and self.stream[0].tag not in self.urgent)):
                return "b"
        return "s" if self.stream else None

    def issue_head(self):
        ld = self.stream.pop(0)
        for t in ld.pre:
            self.e(t)
        ld.issue()

    def try_load(self):
        k = self.pick_load()
        if k is None:
            return False
        per = self.cur_period()
        if k == "b":
            self.bpref(1)
        else:
            self.issue_head()
        self.credit -= per
        return True

    def flush(self, upto=None, n=None):
        if n is None:
            if upto is None:
                n = len(self.stream)
            else:
                n = max([i + 1 for i, ld in enumerate(self.stream) if ld.tag in upto] or [0])
        n = min(n, len(self.stream))
        for _ in range(n):
            self.issue_head()

    def push_front(self, items):
        self.stream[1:1] = items

    def vwait(self, tags):
        self.flush(upto=tags)
        self.a.wait(vm=tags)

    def queue_b(self, name, base, n):
        self.bq += [((name, i), base, i) for i in range(n)]

    def b_pre(self):
        key, base, i = self.bq[0]
        if self.bgroup != (base, i // 12):
            return "s_add_u32 s%d, s%d, %d" % (sBcur, base, (i // 12) * 12288)
        return None

    def b_do_pre(self):
        t = self.b_pre()
        if t:
            self.e(t)
            self.bgroup = (self.bq[0][1], self.bq[0][2] // 12)

    def bpref(self, n=1):
        done = 0
        while done < n and self.b_ready():
            self.fcredit = max(self.fcredit - self.bcost(), -400)
            self.b_do_pre()
            if not self.free:
                if self.stream and len(self.stream[0].pre) < self.stream[0].npre:
                    self.issue_head()
                key, base, i = self.bq.pop(0)
                assert key[0][0] == "W2"
                slot = self.stage_free.pop(0)
                vo, imm = self.voff(i % 12)
                self.e("s_add_u32 m0, s%d, %d" % (sWk, STAGE[slot] - imm))
                if not self.opt("x_nob", 0):
                    self.a.vm(key, "buffer_load_dwordx4 v%d, %s, s%d offen offset:%d lds" % (vo, sWS, sBcur, imm))
                self.sq.append((key, slot))
                done += 1
                continue
            key, base, i = self.bq.pop(0)
            r = self.free.pop(0)
            self.breg[key] = r
            self.bissue[key] = self.now
            vo, imm = self.voff(i % 12)
            nt = " nt" if key[0][0] in str(self.opt("nt", "")).split("+") else ""
            if not self.opt("x_nob", 0):
                self.a.vm(key, "buffer_load_dwordx4 %s, v%d, %s, s%d offen offset:%d%s" % (q(r), vo, sWS, sBcur, imm, nt))
            done += 1
        return done

    def bget(self, keys):
        for key in keys:
            if key in self.from_lds:
                self.need(("un", key))
            while key not in self.breg:
                assert all(k != key for k, _ in self.sq), "staged fragment %s has no register" % (key,)
                assert self.bpref(1), "no free register for %s" % (key,)
            if key in self.bissue:
                self.log.append((key, self.now - self.bissue.pop(key)))
        self.a.wait(vm=list(keys), ds=[k for k in keys if k in self.from_lds])
        return [self.breg[k] for k in keys]

    def bfree(self, key):
        r = self.breg.pop(key)
        if self.unstage and self.sq:
            k2, slot = self.sq.pop(0)
            self.breg[k2] = r
            self.from_lds.add(k2)
            base, off = (vSg0, STAGE[slot] - STAGE[0]) if slot < 5 else (vSg1, STAGE[slot] - STAGE[5])
            self.bg += [S_(lambda: self.a.wait(vm=[k2])),
                        V_(lambda: self.a.ds(k2, "ds_read_b128 %s, v%d offset:%d" % (q(r), base, off))),
                        self.mark(("un", k2))]
            return
        if r not in self.retire:
            self.free.append(r)

    LEND = [("v", W0 + 116 + 4 * i) for i in range(3)]

    def lend(self):
        self.retire = set()
        self.free = self.LEND + self.free

    def unlend(self):
        self.retire = set(self.LEND)
        self.free = [r for r in self.free if r not in self.retire]

    def poll_issue(self, soff=sFlBase):
        self.a.vm("poll", "buffer_load_dword v%d, v%d, %s, s%d offen sc1" % (vPoll, vFl, sWS, soff))

    def poll_check(self, target, mask, soff=sFlBase, acquire=True):
        a = self.a
        again, top, acq, dn = a.newlabel("pollr"), a.newlabel("poll"), a.newlabel("acq"), a.newlabel("polld")
        a.wait(vm=["poll"])
        a.label(top)
        self.e("v_cmp_le_u32 vcc, %s, v%d" % (target, vPoll))
        self.e("s_andn2_b64 %s, %s, vcc" % (sp(sTmp2), sp(mask)))
        self.e("s_cbranch_scc1 %s" % again)
        self.cold += [again + ":",
                      "    buffer_load_dword v%d, v%d, %s, s%d offen sc1" % (vPoll, vFl, sWS, soff),
                      "    s_sub_u32 s%d, s%d, 1" % (sSpin, sSpin),
                      "    s_waitcnt vmcnt(0)",
                      "    s_cbranch_scc0 %s" % top,
                      "    s_endpgm"]
        if acquire:
            self.e("s_cmp_lg_u32 s%d, 0" % sMode)
            self.e("s_cbranch_scc1 %s" % acq)
            a.label(dn)
            self.cold += [acq + ":", "    buffer_inv sc1", "    s_waitcnt vmcnt(0)", "    s_branch %s" % dn]

    def poll(self, target, mask, soff=sFlBase, acquire=True):
        self.poll_issue(soff)
        self.poll_check(target, mask, soff, acquire)

    def publish(self, value, tags=("st",)):
        a = self.a
        slow, dn = a.newlabel("pubs"), a.newlabel("pubd")
        self.e("v_mov_b32 v%d, %d" % (vT0, value))
        self.e("s_mov_b64 exec, 1")
        self.e("s_cmp_lg_u32 s%d, 0" % sMode)
        a.wait(vm=list(tags))
        self.e("s_cbranch_scc1 %s" % slow)
        self.e("buffer_store_dword v%d, off, %s, s%d" % (vT0, sWS, sFlOwn))
        a.label(dn)
        self.cold += [slow + ":", "    buffer_wbl2 sc1", "    s_waitcnt vmcnt(0)",
                      "    buffer_store_dword v%d, off, %s, s%d sc1" % (vT0, sWS, sFlOwn), "    s_branch %s" % dn]
        a.vmq.append("flag")
        self.e("s_mov_b64 exec, -1")

    def mark(self, name):
        self.marks.discard(name)
        return Z_(lambda: self.marks.add(name))

    def run_op(self, x, paced=False):
        if isinstance(x, int):
            return
        if isinstance(x, Op):
            x.fn()
            if paced:
                self.advance(max(x.cost, 4))
                self.try_load()
        elif paced:
            self.ev(x)
        elif not self.opt("x_nobg", 0):
            self.e(x)

    def later(self, gaps, fn):
        self.timed.append([gaps, fn])

    def run_timed(self):
        while self.timed:
            self.timed.pop(0)[1]()

    def need(self, name):
        while name not in self.marks:
            self.run_op(self.bg.pop(0))

    def drain_bg(self, timed=True):
        self.gap = 0
        while self.bg:
            self.run_op(self.bg.pop(0), paced=True)
        while self.timed and timed:
            self.timed.pop(0)[1]()

    def fits(self, x, limit):
        t = self.a.t
        if isinstance(x, Op):
            if x.kind == "z":
                return True
            if x.kind == "b":
                return t <= limit - 12
            if x.kind == "s":
                return t + 4 <= limit
            return max(t, 8) + min(x.cost, 8) <= limit
        return Asm.after(t, Ins(x)) <= limit

    @staticmethod
    def is_scalar(x):
        if isinstance(x, Op):
            return x.kind in ("s", "z")
        return isinstance(x, str) and x.startswith("s_")

    def fill_gap(self, must_s=None, must_v=None):
        a = self.a
        self.advance(self.gapdt)
        limit = (self.opt("lim32", 32) if self.glen == 32 else 16) + (4 if len(self.bg) > self.hurry else 0) + (4 if len(self.bg) > 2 * self.hurry else 0)
        blocked = self.gap > 0
        if blocked:
            self.gap -= 1
        for x in self.timed:
            x[0] -= 1
        if self.timed and self.timed[0][0] <= 0:
            self.timed.pop(0)[1]()
        if must_s:
            must_s()
        while a.t <= 4:
            if self.stream and self.stream[0].pre:
                self.e(self.stream[0].pre.pop(0))
            elif self.bq and self.b_pre() and (self.b_on or self.deadline):
                self.b_do_pre()
            elif self.bg and not blocked and not isinstance(self.bg[0], int) and \
                    (self.is_scalar(self.bg[0]) or (isinstance(self.bg[0], Op) and self.bg[0].kind == "b")):
                self.run_op(self.bg.pop(0))
            else:
                break
        if must_v:
            must_v()
        k = self.pick_load()
        if k and max(a.t, 8) + 8 <= limit:
            npre = len(self.stream[0].pre) if k == "s" else (1 if self.b_pre() else 0)
            if npre == 0 or self.credit >= self.cur_period() + 16 or (self.glen > 16 and max(a.t, 8) + 8 + 4 * npre <= limit):
                self.try_load()
        while self.bg and not blocked:
            x = self.bg[0]
            if isinstance(x, int):
                self.bg.pop(0)
                self.gap = (x * 16 + self.glen - 1) // self.glen
                if x == 0 and self.glen > 16:
                    continue
                break
            if not self.fits(x, limit):
                break
            self.run_op(self.bg.pop(0))

    def unit_loop(self, n, read, compute, look, pre_read=None, pre_unit=None, wait_every=1, name="", every=4):
        a = self.a
        pre_read = pre_read or {}
        pre_unit = pre_unit or {}

        def rd(u):
            if u in pre_read:
                pre_read[u]()
            a.ds(("U", u), read(u))

        def wt(u):
            if u < n and u % wait_every == 0:
                a.wait(ds=[("U", min(u + wait_every - 1, n - 1))])

        for u in range(min(look, n)):
            rd(u)
        for u in range(n):
            self.unit = u
            if u % every == 0:
                self.stamp("%s_u%d" % (name, u), fine=True)
            if u in pre_unit:
                pre_unit[u]()
            ms = compute(u)
            wt(u)
            for j, m in enumerate(ms):
                m()
                self.fill_gap(must_s=(lambda: wt(u + 1)) if j == len(ms) - 1 else None,
                              must_v=(lambda: rd(u + look)) if (j == 0 and u + look < n) else None)
```

```python
KB = 1024
S, D, F = 2048, 640, 1536

_off = 0


def _alloc(n, align=4096):
    global _off
    _off = (_off + align - 1) // align * align
    r = _off
    _off += n
    return r


WQ = _alloc(16 * 4 * 20 * 2 * KB)
WO = _alloc(8 * 4 * 5 * 5 * KB)
W1 = _alloc(16 * 4 * 10 * 3 * KB)
W2 = _alloc(8 * 4 * 12 * 5 * KB)
X0 = _alloc(128 * 20 * KB)
X1 = X2 = X0
HB = _alloc(128 * 48 * KB)
OB = HB
ST0 = _alloc(128 * KB)
ST1 = ST2 = ST0
KVH = _alloc(2 * 256 * 4 * KB)
CG = _alloc(5 * 16 * 2 * KB)
CB2 = _alloc(8 * 512)
FL = _alloc(64 * KB)
FLAG = FL
XT = FL + 4096
KVF = FL + 32768
DBG = _alloc(1024 * 256)
WS_USED = _alloc(0)


def wq_col(n):
    region, nn = divmod(n, 640)
    m, f = divmod(nn, 40)
    e = {0: 40 + f, 1: f, 2: 80 + f}[region]
    w, slot = e >> 5, e & 31
    return WQ + (m * 4 + w) * 40 * KB + slot * 16, CG + m * 2048 + e * 4


W1_TILE = {0: (0, 0), 1: (0, 1), 2: (0, 2), 3: (1, 2), 4: (1, 0), 5: (1, 1)}


def w1_col(n):
    m, f = divmod(n, 96)
    p, u = f >> 5, f & 31
    g, h, r = u >> 3, (u >> 2) & 1, u & 3
    ch, ct = W1_TILE[2 * p + h]
    slot = 4 * g + r
    idx = (ch * 3 + ct) * 16 + slot
    return W1 + (m * 4 + ch * 2) * 30 * KB + ct * KB + slot * 16, CG + m * 2048 + (120 + idx) * 4


def x_col(n):
    kx, u = n >> 5, n & 31
    g, h, r = u >> 3, (u >> 2) & 1, u & 3
    uu, v = divmod(kx, 5)
    if v < 2:
        cg, ct = 2 * uu, 2 * v + h
    elif v == 2:
        cg, ct = 2 * uu + h, 4
    else:
        cg, ct = 2 * uu + 1, 2 * (v - 3) + h
    return cg, ct, 4 * g + r


def wo_col(n):
    cg, ct, slot = x_col(n)
    return WO + cg * 100 * KB + ct * KB + slot * 16, 0


def w2_col(n):
    cg, ct, slot = x_col(n)
    return W2 + cg * 240 * KB + ct * KB + slot * 16, CB2 + cg * 512 + (ct * 16 + slot) * 4


def o_feature(q, j):
    m, i = divmod(q, 5)
    return 40 * m + 4 * i + (j & 3) + 20 * (j >> 2)


def tile_of_storage(rt):
    c, i, sb = (rt & 63) >> 2, rt & 3, rt >> 6
    return 8 * c + (4 + i if sb == 0 else (i + 2) & 3)
```

```python
import math
from core import *


class Gen(Core):
    def dma(self, tag, srd, soff, vo=vL0, imm=0):
        def f():
            if not self.opt("x_nodma", 0):
                self.a.vm(tag, "buffer_load_dwordx4 v%d, %s, %s offen offset:%d%s lds" % (vo, srd, soff, imm, self.opt("dmaf", " sc1").replace("_", " ")))
        return f

    def items_p1(self, sb, half, tag, shift=0):
        out = []
        for j in range(5):
            for z in range(2):
                off = half * 40960 + j * 4096 + z * 1024
                pre = ["s_add_u32 m0, s%d, %d" % (sX1, L_A + off + shift)]
                if shift:
                    pre.append("s_add_u32 s%d, s%d, %d" % (sD0, sX1, L_A + off))
                out.append(Load((tag, half, j), pre, self.dma((tag, half, j), (sXA, sXB)[sb], "s%d" % sD0 if shift else "m0")))
        return out

    def items_p3(self, sb, i, tag):
        return [Load((tag, i, j), ["s_add_u32 m0, s%d, %d" % (SP3[i], L_A + j * 4096)],
                     self.dma((tag, i, j), (sXA, sXB)[sb], "m0")) for j in range(5)]

    def items_stats(self, sb, raw=None):
        return [Load(("S", sb), ["s_add_u32 s%d, s%d, %d" % (sD0, sSta, sb * 65536)],
                     lambda: self.a.vm(("S", sb), "buffer_load_dwordx4 %s, v%d, %s, s%d offen sc1" % (q(raw or self.RAW), vL0, sWS, sD0)))]

    def pk_order(self, is4):
        NK = 12 if is4 else 5
        head = NK - self.opt("p4tail", 4) if is4 else self.opt("p2head", 2)
        order = [(i, k) for k in range(head) for i in (1, 2, 3, 0)]
        if head >= 2:
            order.remove((0, 0))
            order.insert(order.index((0, 1)), (0, 0))
        order += [(i, k) for i in (1, 2, 3, 0) for k in range(head, NK)]
        return order

    def item_pk(self, is4, n):
        i, k = self.pk_order(is4)[n]
        vo, imm = self.voff(k)
        return Load(("Ak", n), ["s_add_u32 m0, s%d, %d" % (sX3, L_A + (n % 20) * 1024 - imm)],
                    self.dma(("Ak", n), sWS, "s%d" % ((sR4 if is4 else sR2) + i), vo, imm))

    def item_touch(self, nlines, mstride, first=0):
        pre = ["v_lshrrev_b32 v%d, 2, v%d" % (vT2, vFl),
               "v_and_b32 v%d, 31, v%d" % (vT1, vT2),
               "v_min_u32 v%d, %d, v%d" % (vT1, nlines - 1, vT1),
               "v_lshlrev_b32 v%d, 7, v%d" % (vT1, vT1),
               "v_lshrrev_b32 v%d, 5, v%d" % (vT2, vT2),
               "s_mov_b32 s%d, %d" % (sD0, SBH),
               "v_mad_u32_u24 v%d, v%d, s%d, v%d" % (vT1, vT2, sD0, vT1),
               "s_mul_i32 s%d, s%d, %d" % (sD0, sM, mstride - 1280),
               "s_add_u32 s%d, s%d, s%d" % (sD0, sD0, sOd)]
        return Load("touch", pre, lambda: self.a.vm("touch", "buffer_load_dword v0, v%d, %s, s%d offen offset:%d" % (vT1, sWS, sD0, first * 128)))

    def item_code(self):
        pre = ["s_lshl_b32 s%d, s%d, 2" % (sD0, sCG),
               "s_add_u32 s%d, s%d, s%d" % (sD0, sD0, sW),
               "s_lshl_b32 s%d, s%d, 11" % (sD0, sD0),
               "v_lshlrev_b32 v%d, 5, v%d" % (vT1, vFl),
               "v_and_b32 v%d, 0x780, v%d" % (vT1, vT1)]
        return Load("touch", pre, lambda: self.a.vm("touch", "buffer_load_dword v0, v%d, %s, s%d offen" % (vT1, sCode, sD0)))

    def stats_ops(self, raw, dst):
        r = raw
        return [
            "v_add_f32 v%d, v%d, v%d" % (r, r, r + 2),
            "v_add_f32 v%d, v%d, v%d" % (r + 1, r + 1, r + 3), 0,
            "v_permlane16_swap_b32 v%d, v%d" % (r, r + 1),
            "v_add_f32 v%d, v%d, v%d" % (r, r, r + 1),
            "v_mov_b32 v%d, v%d" % (r + 1, r), 0,
            "v_permlane32_swap_b32 v%d, v%d" % (r, r + 1),
            "v_add_f32 v%d, v%d, v%d" % (r, r, r + 1),
            "v_mov_b32 v%d, v%d" % (r + 1, r), 0,
            "v_permlane16_swap_b32 v%d, v%d" % (r, r + 1),
            "v_mul_f32 v%d, s%d, v%d" % (dst, sInv640, r),
            "v_mul_f32 v%d, s%d, v%d" % (r + 1, sInv640, r + 1),
            "v_fma_f32 v%d, -v%d, v%d, v%d" % (r + 1, dst, dst, r + 1),
            "v_max_f32 v%d, 0, v%d" % (r + 1, r + 1),
            "v_add_f32 v%d, s%d, v%d" % (r + 1, sEps, r + 1),
            "v_rsq_f32 v%d, v%d" % (dst + 1, r + 1),
        ]

    def stats_share(self, sb, raw=None):
        r = raw or self.RAW
        return ([S_(lambda: self.vwait([("S", sb)]))] + self.stats_ops(r, r + 2) + ["v_add_u32 v%d, s%d, v%d" % (r, sW128, vSl)] +
                [V_(lambda: self.a.ds("sw", "ds_write_b64 v%d, %s offset:%d" % (r, p2(r + 2), sb * 512)), 16)])

    def DS(self, tag, txt, cost=4):
        return V_(lambda: self.a.ds(tag, txt), cost)

    def WD(self, tags):
        return S_(lambda: self.a.wait(ds=tags))

    def prologue(self):
        a, e, ev = self.a, self.e, self.ev
        e("s_cmp_ge_u32 s2, 256")
        e("s_cbranch_scc0 main_go")
        e("s_endpgm")
        a.label("main_go")
        e("s_load_dwordx2 s[4:5], s[0:1], 0x50")
        e("s_load_dwordx2 s[8:9], s[0:1], 0x40")
        lane, tok, g, t0, t1 = W0 + 112, W0 + 113, W0 + 114, W0 + 115, W0 + 116
        tid = W0 + 118
        vq1 = W0 + 117
        e("v_lshrrev_b32 v%d, 6, v0" % vT0)
        e("v_and_b32 v%d, 63, v0" % lane)
        e("v_readfirstlane_b32 s%d, v%d" % (sW, vT0))
        e("v_lshlrev_b32 v%d, 4, v%d" % (vL0, lane))
        e("s_mov_b32 s6, %d" % WS_USED)
        e("s_mov_b32 s7, 0x20000")
        e("s_mov_b32 s10, %d" % (S * D * 2))
        e("s_mov_b32 s11, 0x20000")
        e("s_mov_b32 s14, %d" % (L_A + 80 * KB))
        e("s_mov_b32 s15, 0x20000")
        e("s_mov_b32 s18, %d" % (L_A + 80 * KB))
        e("s_mov_b32 s19, 0x20000")
        e("s_and_b32 s%d, s2, 7" % sC)
        e("s_lshl_b32 s%d, s%d, 1" % (sC, sC))
        e("s_lshr_b32 s%d, s2, 7" % sA0)
        e("s_add_u32 s%d, s%d, s%d" % (sC, sC, sA0))
        e("s_bfe_u32 s%d, s2, 0x40003" % sM)
        e("s_lshl_b32 s%d, s%d, 2" % (sRtA, sC))
        e("s_mul_i32 s%d, s%d, %d" % (sD0, sC, 80 * KB))
        e("s_add_u32 s%d, s%d, %d" % (sD0, sD0, X0 - L_A))
        e("s_lshl_b32 s%d, s%d, 10" % (sWk, sW))
        e("s_and_b32 s%d, s%d, 1" % (sA0, sW))
        e("s_mul_i32 s%d, s%d, 20480" % (sX1, sA0))
        e("s_and_b32 s%d, s%d, 2048" % (sA0, sWk))
        e("s_add_u32 s%d, s%d, s%d" % (sX1, sX1, sA0))
        e("s_lshl_b32 s%d, s%d, 2" % (sA3, sM))
        e("s_add_u32 s%d, s%d, s%d" % (sA3, sA3, sW))
        e("s_mul_i32 s%d, s%d, %d" % (sWQ, sA3, 40 * KB))
        e("s_cmp_eq_u32 s%d, 3" % sW)
        e("s_cselect_b32 s%d, 128, 0" % sA1)
        e("v_lshrrev_b32 v%d, 1, v%d" % (vq1, vL0))
        e("v_and_b32 v%d, v%d, v%d" % (vq1, vq1, vL0))
        e("v_and_b32 v%d, s%d, v%d" % (vq1, sA1, vq1))
        e("v_sub_u32 v%d, v%d, v%d" % (vq1, vL0, vq1))
        e("v_add_u32 v%d, 4096, v%d" % (vL1, vL0))
        e("v_add_u32 v%d, 4096, v%d" % (vL2, vL1))
        e("s_add_u32 s%d, s%d, s%d" % (sOd, sW, sRtA))
        e("s_mul_i32 s%d, s%d, %d" % (sOd, sOd, 48 * KB))
        e("s_mul_i32 s%d, s%d, 1280" % (sA0, sM))
        e("s_add_u32 s%d, s%d, s%d" % (sOd, sOd, sA0))
        e("s_add_u32 s%d, s%d, %d" % (sOd, sOd, OB))
        e("v_lshlrev_b32 v%d, 2, v%d" % (vFl, lane))
        e("v_mov_b32 v%d, v0" % tid)
        e("s_waitcnt lgkmcnt(0)")
        e("s_add_u32 s12, s4, s%d" % sD0)
        e("s_addc_u32 s13, s5, 0")
        e("s_add_u32 s16, s12, %d" % (64 * 20 * KB))
        e("s_addc_u32 s17, s13, 0")
        self.rstamp(62)
        self.stamp("start")
        assert WQ == 0
        h0, h1 = self.items_p1(0, 0, "A0"), self.items_p1(0, 1, "A0")

        def wq(ks, t):
            pre = ["s_add_u32 s%d, s%d, 4096" % (sWQ, sWQ)] if (t == 0 and ks % 2 == 0 and ks > 0) else []
            nt = " nt" if "WQ" in str(self.opt("nt", "")).split("+") else ""
            return Load(("WQ", ks), pre, lambda: a.vm(("WQ", ks), "buffer_load_dwordx4 %s, v%d, %s, s%d offen offset:%d%s" % (
                q(("a", (ks * 2 + t) * 4)), vq1, sWS, sWQ, (ks % 2) * 2048 + t * 1024, nt)))

        def chunk(j):
            return ([wq(4 * j, 0), wq(4 * j, 1)] + h0[2 * j:2 * j + 2] + h1[2 * j:2 * j + 2] +
                    [wq(ks, t) for ks in range(4 * j + 1, 4 * j + 4) for t in range(2)])

        te = self.opt("tearly", 0)
        self.stream = chunk(0)
        if te == 1:
            self.stream = [self.item_touch(24, 3072)] + self.stream
        if te == 2:
            self.stream.append(self.item_touch(24, 3072))
        self.flush()
        self.stream = chunk(1)
        self.period = self.opt("pper", 60)
        ev("s_and_b32 s%d, s%d, 7" % (sCG, sM))
        ev("s_lshl_b32 s%d, s%d, 7" % (sW128, sW))
        ev("s_mul_i32 s%d, s%d, 20480" % (sX3, sW))
        ev("s_mul_i32 s%d, s%d, %d" % (sW1b, sA3, 30 * KB))
        ev("s_add_u32 s%d, s%d, %d" % (sW1b, sW1b, W1))
        ev("s_lshl_b32 s%d, s%d, 2" % (sFlOwn, sA3))
        ev("s_lshr_b32 s%d, s%d, 3" % (sRtT, sM))
        ev("s_lshl_b32 s%d, s%d, 6" % (sRtT, sRtT))
        ev("s_add_u32 s%d, s%d, s%d" % (sRtT, sRtT, sRtA))
        ev("s_lshl_b32 s%d, s%d, 10" % (sSta, sRtA))
        ev("s_add_u32 s%d, s%d, s%d" % (sSta, sSta, sWk))
        ev("s_add_u32 s%d, s%d, %d" % (sSta, sSta, ST0))
        ev("s_getreg_b32 s%d, hwreg(HW_REG_XCC_ID)" % sXcc)
        ev("s_and_b32 s%d, s%d, 15" % (sXcc, sXcc))
        ev("s_add_u32 s%d, s%d, 1" % (sXcc, sXcc))
        ev("s_lshl_b32 s%d, s%d, 7" % (sA2, sC))
        ev("s_add_u32 s%d, s%d, %d" % (sXT, sA2, XT))
        ev("s_lshl_b32 s%d, s%d, 2" % (sA2, sM))
        ev("s_add_u32 s%d, s%d, s%d" % (sA2, sA2, sXT))
        ev("v_mov_b32 v%d, s%d" % (vT0, sXcc))
        e("s_cmp_lg_u32 s%d, 0" % sW)
        e("s_cbranch_scc1 main_noxt")
        e("s_mov_b64 exec, 1")
        e("buffer_store_dword v%d, off, %s, s%d sc1" % (vT0, sWS, sA2))
        e("s_mov_b64 exec, -1")
        a.label("main_noxt")
        ev("v_and_b32 v%d, 15, v%d" % (tok, lane))
        ev("v_lshrrev_b32 v%d, 4, v%d" % (g, lane))
        ev("v_lshrrev_b32 v%d, 5, v%d" % (t0, lane))
        ev("v_lshlrev_b32 v%d, 8, v%d" % (t0, t0))
        ev("v_lshl_add_u32 v%d, v%d, 4, v%d" % (t0, tok, t0))
        ev("v_and_b32 v%d, 1, v%d" % (t1, g))
        ev("s_mov_b32 s%d, 20480" % sA0)
        ev("v_mad_u32_u24 v%d, v%d, s%d, v%d" % (vX32, t1, sA0, t0))
        ev("v_add_u32 v%d, %d, v%d" % (vX32, L_A, vX32))
        c0 = 176
        ev("s_lshl_b32 s%d, s%d, 11" % (sA0, sM))
        ev("s_add_u32 s%d, s%d, %d" % (sA0, sA0, CG))
        ev("s_lshl_b32 s%d, s%d, 9" % (sA1, sCG))
        ev("s_add_u32 s%d, s%d, %d" % (sA1, sA1, CB2 - 96 * 16))
        c0x = c0
        c0 = c0 + 4
        ev("v_lshlrev_b32 v%d, 4, v%d" % (c0 + 16, tid))
        ev("v_add_u32 v%d, s%d, v%d" % (c0 + 17, sA0, c0 + 16))
        ev("v_add_u32 v%d, s%d, v%d" % (c0 + 18, sA1, c0 + 16))
        ev("v_mov_b32 v%d, 0x7ffffff0" % (c0 + 19))
        ev("v_cmp_gt_u32 vcc, 54, v%d" % tid)
        ev("v_cndmask_b32 v%d, v%d, v%d, vcc" % (c0 + 20, c0 + 19, c0 + 17))
        ev("v_cmp_gt_u32 vcc, 78, v%d" % tid)
        ev("v_cndmask_b32 v%d, v%d, v%d, vcc" % (c0 + 17, c0 + 19, c0 + 17))
        ev("v_subrev_u32 v%d, 96, v%d" % (c0 + 21, tid))
        ev("v_cmp_gt_u32 vcc, 20, v%d" % (c0 + 21))
        ev("v_cndmask_b32 v%d, v%d, v%d, vcc" % (c0 + 17, c0 + 17, c0 + 18))
        ct = [Load("ct", [], lambda: a.vm("ct", "buffer_load_dwordx4 %s, v%d, %s, 0 offen" % (q(c0x), c0 + 17, sWS)))]
        for k in range(1, 5):
            ct.append(Load("ct", ["s_mov_b32 s%d, %d" % (sD0, k * 32768)], lambda k=k: a.vm(
                "ct", "buffer_load_dwordx4 %s, v%d, %s, s%d offen" % (q(c0x + 4 * k), c0 + 20, sWS, sD0))))
        self.ct_regs = c0x
        ev("s_mov_b32 s%d, 0x3f803f80" % sOnes)
        ev("s_mov_b32 s%d, 0x%x" % (sScale, fbits(20 ** -0.5 * math.log2(math.e))))
        ev("s_mov_b32 s%d, 0x%x" % (sInv640, fbits(1.0 / 640)))
        ev("s_mov_b32 s%d, 0x%x" % (sEps, fbits(1e-5)))
        ev("s_mov_b32 s%d, 0x%x" % (sNeg, fbits(-1e30)))
        ev("s_mov_b32 s%d, %d" % (sSpin, 400000))
        ev("s_mov_b32 s%d, 0" % sMode)
        ev("s_lshl_b64 %s, 1, s%d" % (sp(sMaskW), sW))
        ev("s_mov_b64 %s, 0xffff" % sp(sMaskX))
        ev("s_lshl_b32 s%d, s%d, 4" % (sA0, sW))
        ev("s_lshl_b64 %s, %s, s%d" % (sp(sMask16), sp(sMaskX), sA0))
        ev("s_mov_b32 s%d, -1" % sMaskA)
        ev("s_mov_b32 s%d, 0" % (sMaskA + 1))
        ev("s_mov_b32 s%d, 0" % sMaskB)
        ev("s_mov_b32 s%d, -1" % (sMaskB + 1))
        ev("s_lshl_b32 s%d, s%d, 8" % (sFlBase, sC))
        ev("s_add_u32 s%d, s%d, %d" % (sFlBase, sFlBase, FLAG))
        ev("s_add_u32 s%d, s%d, s%d" % (sFlOwn, sFlOwn, sFlBase))
        ev("s_lshl_b32 s%d, s%d, 2" % (sA0, sCG))
        ev("s_add_u32 s%d, s%d, s%d" % (sA0, sA0, sW))
        ev("s_mul_i32 s%d, s%d, %d" % (sWOb, sA0, 25 * KB))
        ev("s_add_u32 s%d, s%d, %d" % (sWOb, sWOb, WO))
        ev("s_mul_i32 s%d, s%d, %d" % (sW2b, sA0, 60 * KB))
        ev("s_add_u32 s%d, s%d, %d" % (sW2b, sW2b, W2))
        ev("s_and_b32 s%d, s%d, 1" % (sA1, sW))
        ev("s_lshl_b32 s%d, s%d, 8" % (sK256, sA1))
        ev("s_lshl_b32 s%d, s%d, 1" % (sA1, sA1))
        for i in range(4):
            ev("s_add_u32 s%d, s%d, %d" % (sA0, sA1, i))
            ev("s_and_b32 s%d, s%d, 3" % (sA0, sA0))
            ev("s_mul_i32 s%d, s%d, 20480" % (sA0, sA0))
            ev("s_add_u32 s%d, s%d, s%d" % (SP3[i], sA0, sWk))
        ev("s_add_u32 s%d, s%d, s%d" % (sHd, sA1, sRtA))
        ev("s_mul_i32 s%d, s%d, %d" % (sHd, sHd, 48 * KB))
        ev("s_mul_i32 s%d, s%d, 3072" % (sA0, sM))
        ev("s_add_u32 s%d, s%d, s%d" % (sHd, sHd, sA0))
        ev("s_add_u32 s%d, s%d, %d" % (sHd, sHd, HB))
        ev("s_mul_i32 s%d, s%d, 5" % (sA1, sWk))
        ev("s_mul_i32 s%d, s%d, 12" % (sA2, sWk))
        for i in range(4):
            ev("s_add_u32 s%d, s%d, %d" % (sA0, sW, i))
            ev("s_and_b32 s%d, s%d, 3" % (sA0, sA0))
            ev("s_add_u32 s%d, s%d, s%d" % (sA0, sA0, sRtT))
            ev("s_mul_i32 s%d, s%d, %d" % (sA0, sA0, 48 * KB))
            ev("s_add_u32 s%d, s%d, %d" % (sA0, sA0, HB))
            ev("s_add_u32 s%d, s%d, s%d" % (sR2 + i, sA0, sA1))
            ev("s_add_u32 s%d, s%d, s%d" % (sR4 + i, sA0, sA2))
        ev("s_lshr_b32 s%d, s%d, 1" % (sA0, sCG))
        ev("s_mul_i32 s%d, s%d, 5" % (sA0, sA0))
        ev("s_and_b32 s%d, s%d, 1" % (sA1, sCG))
        ev("s_add_u32 s%d, s%d, s%d" % (sA2, sRtT, sW))
        ev("s_lshl_b32 s%d, s%d, 10" % (sStd, sA2))
        ev("s_add_u32 s%d, s%d, %d" % (sStd, sStd, ST0))
        ev("s_mul_i32 s%d, s%d, 20" % (sA2, sA2))
        ev("s_add_u32 s%d, s%d, s%d" % (sA2, sA2, sA0))
        ev("s_lshl_b32 s%d, s%d, 10" % (sA2, sA2))
        ev("s_add_u32 s%d, s%d, %d" % (sXdh, sA2, X0 + 2048))
        ev("s_mul_i32 s%d, s%d, 3072" % (sA0, sA1))
        ev("s_add_u32 s%d, s%d, s%d" % (sXd0, sA2, sA0))
        ev("s_add_u32 s%d, s%d, %d" % (sXd0, sXd0, X0))
        ev("s_lshl_b32 s%d, s%d, 3" % (sA1, sA1))
        ev("v_add_u32 v%d, s%d, v%d" % (vHalf, sA1, vL0))
        ev("s_lshr_b32 s%d, s%d, 1" % (sA0, sCG))
        ev("s_lshl_b32 s%d, s%d, 8" % (sA0, sA0))
        ev("s_add_u32 s%d, s%d, s%d" % (sA0, sA0, sA1))
        ev("v_and_b32 v%d, 1, v%d" % (t0, g))
        ev("v_lshlrev_b32 v%d, 2, v%d" % (t0, t0))
        ev("v_lshl_add_u32 v%d, v%d, 4, v%d" % (vSt, tok, t0))
        ev("v_add_u32 v%d, s%d, v%d" % (vSt, sA0, vSt))
        ev("s_mov_b32 s%d, %d" % (sA0, L_ST))
        ev("v_lshl_add_u32 v%d, v%d, 3, s%d" % (vSl, tok, sA0))
        ev("v_lshlrev_b32 v%d, 4, v%d" % (vG, g))
        ev("v_add_u32 v%d, s%d, v%d" % (vAk, sX3, vL1))
        ev("s_and_b32 s%d, s%d, 1" % (sA0, sW))
        ev("s_lshr_b32 s%d, s%d, 1" % (sA1, sW))
        ev("s_mul_i32 s%d, s%d, %d" % (sA2, sA0, 40960 + 1024))
        ev("v_add_u32 v%d, s%d, v%d" % (vP3a, sA2, vL1))
        ev("s_mul_i32 s%d, s%d, %d" % (sA2, sA0, -40960 + 1024))
        ev("s_add_u32 s%d, s%d, 40960" % (sA2, sA2))
        ev("v_add_u32 v%d, s%d, v%d" % (vP3b, sA2, vL1))
        ev("s_lshl_b32 s%d, s%d, 3" % (sA2, sA1))
        ev("v_add_u32 v%d, s%d, v%d" % (vHh, sA2, vL0))
        ev("s_lshl_b32 s%d, s%d, 11" % (sA2, sA1))
        ev("v_add_u32 v%d, s%d, v%d" % (vHf, sA2, vL0))
        ev("s_mul_i32 s%d, s%d, 6144" % (sA2, sW))
        ev("s_add_u32 s%d, s%d, %d" % (sA2, sA2, L_E3))
        ev("v_add_u32 v%d, s%d, v%d" % (vE3w, sA2, vL0))
        ev("s_xor_b32 s%d, s%d, 1" % (sA2, sW))
        ev("s_mul_i32 s%d, s%d, 6144" % (sA2, sA2))
        ev("s_add_u32 s%d, s%d, %d" % (sA2, sA2, L_E3))
        ev("v_add_u32 v%d, s%d, v%d" % (vE3r, sA2, vL0))
        for i, vr in ((1, vRw1), (2, vRw2), (3, vRw3)):
            ev("s_add_u32 s%d, s%d, %d" % (sA2, sW, i))
            ev("s_and_b32 s%d, s%d, 3" % (sA2, sA2))
            ev("s_mul_i32 s%d, s%d, 15360" % (sA2, sA2))
            ev("s_add_u32 s%d, s%d, %d" % (sA2, sA2, L_RED + (i - 1) * 5120))
            ev("v_add_u32 v%d, s%d, v%d" % (vr, sA2, vL0))
        ev("s_mul_i32 s%d, s%d, 15360" % (sA2, sW))
        ev("s_add_u32 s%d, s%d, %d" % (sA2, sA2, L_RED))
        ev("v_add_u32 v%d, s%d, v%d" % (vRr, sA2, vL0))
        ev("v_and_b32 v%d, 31, v%d" % (t0, lane))
        ev("v_mul_u32_u24 v%d, %d, v%d" % (t0, EXS, t0))
        ev("v_lshrrev_b32 v%d, 5, v%d" % (t1, lane))
        ev("v_lshl_add_u32 v%d, v%d, 3, v%d" % (vXw0, t1, t0))
        ev("s_lshl_b32 s%d, s%d, 6" % (sA2, sW))
        ev("s_add_u32 s%d, s%d, %d" % (sA0, sA2, L_EX))
        ev("v_add_u32 v%d, s%d, v%d" % (vXw0, sA0, vXw0))
        ev("v_mul_u32_u24 v%d, %d, v%d" % (t0, EXS, tok))
        ev("s_add_u32 s%d, s%d, 2" % (sFlip, sW))
        ev("s_and_b32 s%d, s%d, 3" % (sFlip, sFlip))
        ev("s_sub_u32 s%d, s%d, s%d" % (sFlip, sFlip, sW))
        ev("s_sub_u32 s%d, s%d, 4" % (sFlip, sFlip))
        ev("s_mul_i32 s%d, s%d, %d" % (sFlip, sFlip, EXT))
        ev("v_mul_u32_u24 v%d, %d, v%d" % (vKv, EXS, g))
        ev("v_lshl_add_u32 v%d, v%d, 4, v%d" % (vKv, tok, vKv))
        ev("s_mul_i32 s%d, s%d, %d" % (sA0, sW, 4 * EXS))
        ev("s_add_u32 s%d, s%d, %d" % (sA0, sA0, L_EX))
        ev("v_add_u32 v%d, s%d, v%d" % (vKv, sA0, vKv))
        ev("s_lshl_b32 s%d, s%d, 4" % (sA0, sC))
        ev("s_add_u32 s%d, s%d, s%d" % (sA0, sA0, sM))
        ev("s_sub_u32 s%d, s%d, 16" % (sA1, sA0))
        ev("s_max_i32 s%d, s%d, s%d" % (sA1, sA1, sM))
        ev("s_lshl_b32 s%d, s%d, 12" % (sKvo, sA0))
        ev("s_add_u32 s%d, s%d, s%d" % (sKvo, sKvo, sWk))
        ev("s_add_u32 s%d, s%d, %d" % (sKvo, sKvo, KVH))
        ev("s_lshl_b32 s%d, s%d, 12" % (sKvi, sA1))
        ev("s_add_u32 s%d, s%d, s%d" % (sKvi, sKvi, sWk))
        ev("s_add_u32 s%d, s%d, %d" % (sKvi, sKvi, KVH))
        ev("s_lshl_b32 s%d, s%d, 7" % (sKfi, sA1))
        ev("s_add_u32 s%d, s%d, %d" % (sKfi, sKfi, KVF))
        ev("s_lshl_b32 s%d, s%d, 7" % (sKfo, sA0))
        ev("s_lshl_b32 s%d, s%d, 2" % (sA1, sW))
        ev("s_add_u32 s%d, s%d, s%d" % (sKfo, sKfo, sA1))
        ev("s_add_u32 s%d, s%d, %d" % (sKfo, sKfo, KVF))
        ev("s_mul_i32 s%d, s%d, %d" % (sA0, sW, EXT))
        ev("s_add_u32 s%d, s%d, %d" % (sA0, sA0, L_EX + 4 * EXT))
        ev("v_lshl_add_u32 v%d, v%d, 3, v%d" % (vXp, g, t0))
        ev("v_add_u32 v%d, s%d, v%d" % (vXp, sA0, vXp))
        ev("v_add_u32 v%d, %d, v%d" % (vXc, EXT, vXp))
        ev("v_lshrrev_b32 v%d, 2, v%d" % (t0, lane))
        ev("v_mul_u32_u24 v%d, %d, v%d" % (t0, EXS, t0))
        ev("v_and_b32 v%d, 3, v%d" % (t1, lane))
        ev("v_lshl_add_u32 v%d, v%d, 3, v%d" % (vXv, t1, t0))
        ev("s_add_u32 s%d, s%d, 160" % (sA0, sA0))
        ev("v_add_u32 v%d, s%d, v%d" % (vXv, sA0, vXv))
        ev("v_and_b32 v%d, 1, v%d" % (t0, tok))
        ev("v_cmp_eq_u32 %s, 1, v%d" % (sp(sOdd), t0))
        ev("v_lshl_add_u32 v%d, v%d, 2, v%d" % (t0, g, t0))
        ev("v_cmp_gt_u32 %s, v%d, v%d" % (sp(sPA), t0, tok))
        ev("v_add_u32 v%d, 2, v%d" % (t0, t0))
        ev("v_cmp_gt_u32 %s, v%d, v%d" % (sp(sPB), t0, tok))
        ev("v_cmp_eq_u32 %s, 0, v%d" % (sp(sG0), g))
        ev("v_mov_b32 v%d, 0xffff" % t0)
        ev("v_mov_b32 v%d, 0xffff0000" % t1)
        ev("v_cndmask_b32 v%d, v%d, v%d, %s" % (t0, t0, t1, sp(sOdd)))
        ev("v_cndmask_b32 v%d, 0, v%d, %s" % (vM0, t0, sp(sPA)))
        ev("v_cndmask_b32 v%d, v%d, 0, %s" % (vM2, t0, sp(sPA)))
        ev("v_cndmask_b32 v%d, 0, v%d, %s" % (vM1, t0, sp(sPB)))
        ev("v_cndmask_b32 v%d, v%d, 0, %s" % (vM3, t0, sp(sPB)))
        e("s_xor_b32 s%d, s%d, 2" % (sA0, sW))
        e("s_or_b32 s%d, s%d, s%d" % (sA0, sA0, sC))
        e("s_cmp_eq_u32 s%d, 0" % sA0)
        e("s_cselect_b64 %s, %s, 0" % (sp(sPAx), sp(sPA)))
        ev("s_cselect_b64 %s, %s, 0" % (sp(sPBx), sp(sPB)))
        res = [Load("res", [], lambda: a.vm("res", "buffer_load_dwordx4 %s, v%d, %s, s%d offen" % (q(vRes), vL0, sWS, sXd0))),
               Load("res", [], lambda: a.vm("res", "buffer_load_dwordx4 %s, v%d, %s, s%d offen offset:1024" % (q(vRes + 4), vL0, sWS, sXd0))),
               Load("res", [], lambda: a.vm("res", "buffer_load_dwordx2 %s, v%d, %s, s%d offen" % (p2(vRes + 8), vHalf, sWS, sXdh)))]
        flagtouch = Load("touch", [], lambda: a.vm("touch", "buffer_load_dword v0, v%d, %s, s%d offen sc1" % (vFl, sWS, sFlBase)))
        self.stream += (chunk(2) + ct + self.items_stats(0) + self.items_stats(1, self.RAW + 4) + chunk(3) + chunk(4) +
                        ([] if te else [self.item_touch(10, 1280)]) + [flagtouch] + res)
        self.period = self.opt("fper", 40)

    def ct_write(self):
        c0 = self.ct_regs
        ops = [S_(lambda: self.vwait(["ct"]))]
        ops += ["v_add_f32 v%d, v%d, v%d" % (c0 + r, c0 + r, c0 + 4 + r) for r in range(4)]
        ops += ["v_add_f32 v%d, v%d, v%d" % (c0 + 8 + r, c0 + 8 + r, c0 + 12 + r) for r in range(4)]
        ops += ["v_add_f32 v%d, v%d, v%d" % (c0 + r, c0 + r, c0 + 16 + r) for r in range(4)]
        ops += ["v_add_f32 v%d, v%d, v%d" % (c0 + r, c0 + r, c0 + 8 + r) for r in range(4)]
        assert L_CT == 0
        ops.append("v_min_u32 v%d, 2032, v%d" % (c0 + 20, c0 + 20))
        ops.append(self.DS("ctw", "ds_write_b128 v%d, %s" % (c0 + 20, q(c0)), 24))
        return ops

    def mode_check(self):
        e = self.e
        self.poll_check(1, sMaskX, soff=sXT, acquire=False)
        e("v_cmp_ne_u32 vcc, s%d, v%d" % (sXcc, vPoll))
        e("s_and_b64 %s, %s, vcc" % (sp(sTmp2), sp(sMaskX)))
        e("s_cselect_b32 s%d, 1, 0" % sMode)
        if self.opts.get("force_slow"):
            e("s_mov_b32 s%d, 1" % sMode)

    P1_ACC = W0
    P1_AB = W0 + 48
    P1_CS = W0 + 80
    RAW = W0 + 96
    P1_MS = W0 + 104
    P1_S32 = W0 + 106
    P1_XB = W0 + 107
    P1_KV = W0 + 108
    P1_ATT = [W0 + 112 + 4 * i for i in range(4)] + [W0 + 32 + 4 * i for i in range(4)]

    def attention_ops(self, layer, sb):
        a, e, DS = self.a, self.e, self.DS
        A = self.P1_ATT
        ops = []
        Q, Kp, Kc = [A[0], A[3]], [A[1], A[4]], [A[2], A[5]]
        Sp, Sc = [A[6], A[0]], [A[7], A[1]]
        sa, sbb, mx = [A[2], A[2] + 2], [A[2] + 1, A[2] + 3], [A[3], A[3] + 1]
        neg = A[3] + 2
        Va, Vb = [A[4], A[6]], [A[5], A[7]]
        P = [A[0], A[1]]
        Oa, Ob = [A[2], A[4]], [A[3], A[5]]
        G = [A[6], A[7]]
        for h in range(2):
            ops.append(DS(("q", h), "ds_read2_b64 %s, v%d offset0:%d offset1:%d" % (q(Q[h]), vXc, 10 + 5 * h, 14 + 5 * h)))
            ops.append(DS(("kp", h), "ds_read2_b64 %s, v%d offset0:%d offset1:%d" % (q(Kp[h]), vXp, 5 * h, 4 + 5 * h)))
            ops.append(DS(("kc", h), "ds_read2_b64 %s, v%d offset0:%d offset1:%d" % (q(Kc[h]), vXc, 5 * h, 4 + 5 * h)))
        ops += ["s_add_u32 s%d, s%d, %d" % (sA0, sOd, sb * SBH), 7]
        for h in range(2):
            ops.append(self.WD([("q", h)]))
            ops.append("v_cndmask_b32 v%d, 0, v%d, %s" % (Q[h] + 2, Q[h] + 2, sp(sG0)))
            ops.append("v_cndmask_b32 v%d, 0, v%d, %s" % (Q[h] + 3, Q[h] + 3, sp(sG0)))
        ops.append(self.WD([("kc", 1)]))
        for h in range(2):
            ops.append(B_(lambda h=h: self.mfma(Sp[h], Kp[h], Q[h], first=True)))
            ops.append(B_(lambda h=h: self.mfma(Sc[h], Kc[h], Q[h], first=True)))

        def vreads(h):
            o = []
            for vv, off in ((Va[h], 0), (Vb[h], 32)):
                o.append(DS(("v", h), "ds_read_b64_tr_b16 %s, v%d offset:%d" % (p2(vv), vXv, 40 * h + off)))
                o.append(DS(("v", h), "ds_read_b64_tr_b16 %s, v%d offset:%d" % (p2(vv + 2), vXv, 40 * h + off + EXT)))
            return o
        ops += vreads(0)
        if sb == 1:
            ops.append("v_mov_b32 v%d, s%d" % (neg, sNeg))
        for h in range(2):
            s_, c = Sp[h], Sc[h]
            ops += ["v_cndmask_b32 v%d, v%d, v%d, %s" % (s_, s_, s_ + 1, sp(sOdd)),
                    "v_cndmask_b32 v%d, v%d, v%d, %s" % (s_ + 2, s_ + 2, s_ + 3, sp(sOdd)),
                    "v_cndmask_b32 v%d, v%d, v%d, %s" % (c, c, c + 1, sp(sOdd)),
                    "v_cndmask_b32 v%d, v%d, v%d, %s" % (c + 2, c + 2, c + 3, sp(sOdd)),
                    "v_cndmask_b32 v%d, v%d, v%d, %s" % (sa[h], c, s_, sp(sPA)),
                    "v_cndmask_b32 v%d, v%d, v%d, %s" % (sbb[h], c + 2, s_ + 2, sp(sPB))]
            if sb == 1:
                ops += ["v_cndmask_b32 v%d, v%d, v%d, %s" % (sa[h], sa[h], neg, sp(sPAx)),
                        "v_cndmask_b32 v%d, v%d, v%d, %s" % (sbb[h], sbb[h], neg, sp(sPBx))]
            ops.append("v_max_f32 v%d, v%d, v%d" % (mx[h], sa[h], sbb[h]))

        def red2(op, x, y, pad):
            pad = list(pad) + [0] * 6
            return [pad[4], pad[5],
                    "v_permlane16_swap_b32 v%d, v%d" % (x, y), "%s v%d, v%d, v%d" % (op, x, x, y), "v_mov_b32 v%d, v%d" % (y, x),
                    pad[0], pad[1],
                    "v_permlane32_swap_b32 v%d, v%d" % (x, y), "%s v%d, v%d, v%d" % (op, x, x, y), "v_mov_b32 v%d, v%d" % (y, x),
                    pad[2], pad[3],
                    "v_permlane16_swap_b32 v%d, v%d" % (x, y)]
        ops += red2("v_max_f32", mx[0], mx[1], vreads(1))
        ops += ["v_mul_f32 v%d, s%d, v%d" % (mx[h], sScale, mx[h]) for h in range(2)]
        for h in range(2):
            ops += ["v_fma_f32 v%d, v%d, s%d, -v%d" % (sa[h], sa[h], sScale, mx[h]),
                    "v_fma_f32 v%d, v%d, s%d, -v%d" % (sbb[h], sbb[h], sScale, mx[h])]
        for h in range(2):
            ops += ["v_exp_f32 v%d, v%d" % (sa[h], sa[h]), "v_exp_f32 v%d, v%d" % (sbb[h], sbb[h])]
        ops += ["v_add_f32 v%d, v%d, v%d" % (mx[h], sa[h], sbb[h]) for h in range(2)]
        d = "v_add_u32" if sb == 0 else "v_subrev_u32"
        ops += red2("v_add_f32", mx[0], mx[1], ["%s v%d, s%d, v%d" % (d, r, sFlip, r) for r in (vXp, vXc, vXv)])
        ops += ["v_rcp_f32 v%d, v%d" % (mx[h], mx[h]) for h in range(2)]
        for h in range(2):
            ops += ["v_mul_f32 v%d, v%d, v%d" % (sa[h], sa[h], mx[h]), "v_mul_f32 v%d, v%d, v%d" % (sbb[h], sbb[h], mx[h])]
        for h in range(2):
            ops += ["v_cvt_pk_bf16_f32 v%d, v%d, v%d" % (sa[h], sa[h], sa[h]),
                    "v_cvt_pk_bf16_f32 v%d, v%d, v%d" % (sbb[h], sbb[h], sbb[h]),
                    "v_and_b32 v%d, v%d, v%d" % (P[h], vM0, sa[h]),
                    "v_and_b32 v%d, v%d, v%d" % (P[h] + 1, vM1, sbb[h]),
                    "v_and_b32 v%d, v%d, v%d" % (P[h] + 2, vM2, sa[h]),
                    "v_and_b32 v%d, v%d, v%d" % (P[h] + 3, vM3, sbb[h])]
        ops.append(self.WD([("v", 1)]))
        for h in range(2):
            ops.append(B_(lambda h=h: self.mfma(Oa[h], Va[h], P[h], first=True)))
            ops.append(B_(lambda h=h: self.mfma(Ob[h], Vb[h], P[h], first=True)))
        ops.append(3)
        for src, dst in ((Oa, G[0]), (Ob, G[1])):
            for h in range(2):
                ops += ["v_cvt_pk_bf16_f32 v%d, v%d, v%d" % (dst + 2 * h, src[h], src[h] + 1),
                        "v_cvt_pk_bf16_f32 v%d, v%d, v%d" % (dst + 2 * h + 1, src[h] + 2, src[h] + 3)]
            if src is Oa:
                ops.append(V_(lambda: a.vm("st", "buffer_store_dwordx4 %s, v%d, %s, s%d offen" % (q(G[0]), vL0, sWS, sA0))))

        def last():
            e("s_mov_b64 exec, %s" % sp(sMaskX))
            a.vm("st", "buffer_store_dwordx4 %s, v%d, %s, s%d offen offset:1024" % (q(G[1]), vL0, sWS, sA0))
            e("s_mov_b64 exec, -1")
        ops.append(B_(last))
        return ops

    def p1(self, layer):
        a, e, DS, WD = self.a, self.e, self.DS, self.WD
        typ = self.typ
        ACC, AB, NAB, MS = self.P1_ACC, self.P1_AB, 8, self.P1_MS
        self.stamp("p1_%d_begin" % layer)
        groups = [[1, 0], [2], [3]] if layer == 0 else [[1], [0], [2], [3]]
        units = [(p, ks, hk) for gr in groups for ks in range(20) for hk in range(2) for p in gr]
        idx = {u: i for i, u in enumerate(units)}
        accof = {1: ACC, 0: ACC + 16, 2: ACC + 32, 3: ACC}
        half = {1: 1, 0: 0, 2: 1, 3: 0}

        def read(u):
            p, ks, hk = units[u]
            base, off = vX32, half[p] * 40960
            return "ds_read_b128 %s, v%d offset:%d" % (q(AB + (u % NAB) * 4), base, off + ks * 1024 + hk * 512)

        def compute(u):
            p, ks, hk = units[u]

            def f():
                self.mfma32(accof[p], ("a", (ks * 2 + hk) * 4), AB + (u % NAB) * 4, first=(ks == 0 and hk == 0))
                if layer == 1 and p == 3:
                    self.free.append(("a", (ks * 2 + hk) * 4))
            return [f]

        def sync(tags, ds=None):
            def f():
                self.vwait(tags)
                if ds:
                    a.wait(ds=ds)
                e("s_barrier")
            return f

        def ms_read(p):
            return DS("ms", "ds_read_b64 %s, v%d offset:%d" % (p2(MS), self.P1_S32, p * 256))

        def fix(p, packed=False):
            ops = [WD(["ms", "cs"])]
            for j in range(4):
                acc = accof[p] + 4 * j
                cs = self.P1_CS + 4 * j
                if packed:
                    for hh in (0, 2):
                        ops.append("v_pk_fma_f32 %s, %s, %s, %s op_sel_hi:[1,0,1] neg_lo:[0,1,0] neg_hi:[0,1,0]" %
                                   (p2(acc + hh), p2(cs + hh), p2(MS), p2(acc + hh)))
                    for hh in (0, 2):
                        ops.append("v_pk_mul_f32 %s, %s, %s op_sel:[0,1] op_sel_hi:[1,1]" % (p2(acc + hh), p2(acc + hh), p2(MS)))
                else:
                    ops += ["v_fma_f32 v%d, -v%d, v%d, v%d" % (acc + r, cs + r, MS, acc + r) for r in range(4)]
                    ops += ["v_mul_f32 v%d, v%d, v%d" % (acc + r, acc + r, MS + 1) for r in range(4)]
                ops.append("v_cvt_pk_bf16_f32 v%d, v%d, v%d" % (acc, acc, acc + 1))
                ops.append("v_cvt_pk_bf16_f32 v%d, v%d, v%d" % (acc + 1, acc + 2, acc + 3))
                row = {0: 5, 1: 7, 2: 3, 3: 1}[p]
                ops.append(DS("xw", "ds_write_b64 v%d, %s offset:%d" % (vXw0, p2(acc), 16 * j + row * EXT), 16))
            return ops + [self.mark(("fix", p))]

        def fixr(p):
            return [ms_read(p), 8] + fix(p)

        def setup():
            c = self.P1_CS
            o = ["v_lshrrev_b32 v%d, 3, v%d" % (c + 12, vFl),
                 "v_and_b32 v%d, 16, v%d" % (c + 12, c + 12),
                 "v_add_u32 v%d, s%d, v%d" % (c + 12, sW128, c + 12)]
            o += [DS("cs", "ds_read_b128 %s, v%d offset:%d" % (q(c + 4 * j), c + 12, L_CT + 32 * j)) for j in range(4)]
            o += ["v_and_b32 v%d, 124, v%d" % (self.P1_S32, vFl),
                  "v_lshlrev_b32 v%d, 1, v%d" % (self.P1_S32, self.P1_S32),
                  "v_add_u32 v%d, %d, v%d" % (self.P1_S32, L_ST, self.P1_S32)]
            return o

        KV = self.P1_KV
        lo = layer * 256 * 4 * KB

        def kv_out():
            def flag():
                e("v_mov_b32 v%d, %d" % (vT0, layer + 1))
                e("s_mov_b64 exec, 1")
                a.wait(vm=["kvo"])
                a.vm("flag", "buffer_store_dword v%d, off, %s, s%d sc1" % (vT0, sWS, sKfo))
                e("s_mov_b64 exec, -1")
            return ["v_add_u32 v%d, %d, v%d" % (KV, 8 * EXT, vKv),
                    DS("kv", "ds_read2_b64 %s, v%d offset1:1" % (q(KV), KV)),
                    "s_add_u32 s%d, s%d, %d" % (sA2, sKvo, lo), 8, WD(["kv"]),
                    V_(lambda: a.vm("kvo", "buffer_store_dwordx4 %s, v%d, %s, s%d offen sc1" % (q(KV), vL0, sWS, sA2)), 8),
                    Z_(lambda: self.later(self.opt("kvd", 36), flag))]

        def kv_in():
            self.poll_check(layer + 1, sMaskW, sKfi, acquire=False)
            e("s_add_u32 s%d, s%d, %d" % (sA2, sKvi, lo))
            a.vm("kvi", "buffer_load_dwordx4 %s, v%d, %s, s%d offen sc1" % (q(KV), vL0, sWS, sA2))

        def kv_put():
            a.wait(vm=["kvi"])
            a.ds("xw", "ds_write2_b64 v%d, %s, %s offset1:1" % (vKv, p2(KV), p2(KV + 2)))

        self.bg = []
        pre_read, pre_unit = {}, {}

        def hook(d, u, f):
            u = idx[u if len(u) == 3 else (u[0], u[1], 0)]
            old = d.get(u)
            d[u] = f if old is None else (lambda: (old(), f()))

        def bgx(f):
            return lambda: self.bg.extend(f())

        def soon(f):
            return lambda: self.bg.insert(0, B_(f))

        nb0, nb1 = self.items_p1(1, 0, "A1", shift=40960), self.items_p1(1, 1, "A1", shift=-40960)
        allb0 = [("A1", 0, j) for j in range(5)]
        allb1 = [("A1", 1, j) for j in range(5)]

        def go():
            a.wait(ds=["xw"])
            e("s_barrier")
        if layer == 0:
            hook(pre_read, (1, 16), lambda: self.need("st0"))
            for j in range(5):
                hook(pre_read, (1, 4 * j), sync([("A0", 0, j), ("A0", 1, j)], ds=["sw", "ctw"]))
            hook(pre_read, (1, 16), lambda: self.stream.extend(nb0[:6] + nb1[:6]))
            for ks in range(20):
                hook(pre_unit, (1, ks), lambda ks=ks: self.vwait([("WQ", ks)]))
            hook(pre_unit, (1, 10), bgx(lambda: self.ct_write() + self.stats_share(0) + self.stats_share(1, self.RAW + 4) +
                                        [self.mark("st0")]))
            hook(pre_unit, (1, 16), bgx(lambda: setup() + [ms_read(1), V_(lambda: self.poll_issue(sXT))]))
            hook(pre_read, (2, 0), sync([("A1", 0, j) for j in range(3)]))

            def turn():
                self.stamp("p1_0_a")
                e("s_barrier")
                self.push_front(nb0[6:])
                self.stream.extend(nb1[6:])
                self.urgent = set(allb0)
                self.period = self.opt("per1", 64)
                self.b_on = True
                self.fcredit = 0
                self.drain_bg()
                self.bg = fix(1, True)
                self.drain_bg()
                self.bg = [2, B_(go)] + kv_out() + [B_(self.mode_check), self.mark("kvo")] + [20] + fixr(0)
            hook(pre_unit, (2, 0), turn)
            hook(pre_read, (2, 12), sync(allb0))
            kvi, kvc = (3, self.opt("kvi0", 8)), (3, self.opt("kvc0", 15))
        else:
            hook(pre_read, (1, 0), sync([("A0", 1, 0), ("A0", 1, 1)]))
            hook(pre_read, (1, 8), sync([("A0", 1, j) for j in range(2, 5)]))
            hook(pre_unit, (1, 1), bgx(setup))
            hook(pre_unit, (1, 7), bgx(lambda: self.stats_share(0) + [self.mark("st0")]))
            hook(pre_unit, (1, 8), soon(self.poll_issue))

            def refill(tags, items, pre=None):
                def f():
                    self.need("st0")
                    sync(tags, ds=["sw"])()
                    if pre:
                        pre()
                    self.urgent = set(ld.tag for ld in items) if self.opt("urgr", 1) else set()
                    self.stream.extend(items)
                return f
            hook(pre_read, (0, 0), refill([("A0", 0, j) for j in range(5)], self.items_stats(1) + nb0[:8],
                                          pre=lambda: self.poll_check(6, sMaskB)))
            hook(pre_unit, (0, 3), lambda: (e("s_barrier"), self.stream.extend(nb0[8:])))
            hook(pre_unit, (0, self.opt("fixat1", 4)), bgx(lambda: fixr(1) + [4, B_(go)] + kv_out() + [self.mark("kvo")] + self.stats_share(1) +
                                                             [self.mark("st0")]))
            hook(pre_read, (2, 0), refill(allb0, nb1[:8]))
            hook(pre_unit, (2, 3), lambda: (e("s_barrier"), self.stream.extend(nb1[8:])))
            hook(pre_unit, (2, self.opt("fixat", 9)), bgx(lambda: fixr(0)))
            hook(pre_unit, (3, 0), lambda: self.stamp("p1_1_a"))
            kvi, kvc = (3, self.opt("kvi", 1)), (3, self.opt("kvc", 10))
        hook(pre_read, (3, 0), sync(allb1))
        hook(pre_unit, (3, 0), lambda: self.need(("fix", 1)))
        hook(pre_unit, (3, 0), bgx(lambda: fixr(2) + [4, B_(go)] + self.attention_ops(layer, 0)))
        hook(pre_unit, kvi, lambda: (self.need("kvo"), self.poll_issue(sKfi)))
        hook(pre_unit, kvc, lambda: (self.run_timed(), kv_in()))
        hook(pre_unit, (3, 0), bgx(lambda: [ms_read(3)]))
        hook(pre_unit, (3, 0), lambda: setattr(self, "hurry", self.opt("hurry1", 15)))
        if layer == 1 or self.opt("tearly", 0):
            hook(pre_unit, (2, 14), lambda: self.stream.extend([self.item_touch(24, 3072), self.item_code()]))
        else:
            np_ = self.opt("tpieces", 8)
            for z in range(np_):
                at = idx[(2, 6, 0)] + z * self.opt("tstep", 4)
                hook(pre_unit, units[at], lambda z=z: self.stream.append(self.item_touch(24 // np_, 3072, z * (24 // np_))))
            hook(pre_unit, (2, 15), lambda: self.stream.append(self.item_code()))
        if layer == 1:
            self.period = self.opt("per1", 64)
            self.b_on = True
            self.bmin = self.opt("bmin1", 200)
            hook(pre_unit, (2, 10), lambda: setattr(self, "bmin", 0))
        hook(pre_unit, (3, self.opt("bend1", 14)), lambda: setattr(self, "b_on", bool(self.opt("ball", 1))))
        self.gapdt = self.opt("dt1", 34)
        self.glen = 32
        self.unit_loop(len(units), read, compute, look=self.opt("look1", 6), pre_read=pre_read, pre_unit=pre_unit,
                       wait_every=self.opt("we1", 2), name="p1_%d" % layer, every=self.opt("ev1", 8))
        self.glen = 16
        self.hurry = 10 ** 9
        self.stamp("p1_%d_loop" % layer)
        self.drain_bg()
        self.bg = fix(3, packed=True)
        self.drain_bg()
        kv_put()
        self.publish(6 * layer + 1)
        a.wait_all(ds=True)
        e("s_barrier")
        self.stamp("p1_%d_gemm" % layer)
        ops = self.attention_ops(layer, 1)
        if typ == 0:
            def a2go():
                self.poll_check(6 * layer + 1, sMask16)
                self.stream.extend([self.item_pk(False, n) for n in range(20)])
                self.period = self.opt("pera2", 32)
            ops.insert(self.opt("a2at", 75), B_(a2go))
            ops.insert(self.opt("a2is", 20), B_(self.poll_issue))
        self.bg = ops
        self.drain_bg()
        self.lend()
        self.flush(n=6)
        self.publish(6 * layer + 2)
        self.stamp("p1_%d_end" % layer)

    def pk(self, layer, which):
        a, e, ev, DS, WD = self.a, self.e, self.ev, self.DS, self.WD
        typ = self.typ
        is4 = which == 4
        name = ("W2" if is4 else "WO", layer)
        ACC, AB = W0, W0 + 80
        last = layer == 1 and is4
        order = self.pk_order(is4)
        n_units = len(order)
        self.stamp("p%d_%d_begin" % (which, layer))
        e("s_barrier")
        if typ == 1:
            if not is4:
                self.bpref(self.opt("bwait2_%d" % layer, (3, 0)[layer]))
            self.poll(6 * layer + (5 if is4 else 2), sMask16)
            self.stream.extend([self.item_pk(is4, n) for n in range(20)])
            self.flush(n=8)
        self.urgent = set(("Ak", n) for n in range(self.opt("urgk", 12)))
        self.stamp("p%d_%d_poll" % (which, layer))
        if is4:
            self.unlend()
        init = []
        if self.sq:
            init += ["s_add_u32 s%d, s%d, %d" % (sA0, sWk, STAGE[0]),
                     "v_add_u32 v%d, s%d, v%d" % (vSg0, sA0, vL0),
                     "v_add_u32 v%d, %d, v%d" % (vSg1, STAGE[5] - STAGE[0], vSg0)]
            self.unstage = True
        if layer == 0 and not is4:
            init.append(S_(lambda: self.vwait(["res"])))
        BT = W0 + 96
        if is4:
            init += [DS(("b2", ct), "ds_read_b128 %s, v%d offset:%d" % (q(BT + 4 * ct), vG, L_CT + 1536 + 64 * ct)) for ct in range(5)]
        for ct in range(5):
            for hh in range(2):
                src = vRes + 2 * ct + hh
                init.append("v_lshlrev_b32 v%d, 16, v%d" % (ACC + 4 * ct + 2 * hh, src))
                init.append("v_and_b32 v%d, 0xffff0000, v%d" % (ACC + 4 * ct + 2 * hh + 1, src))
        if is4:
            init.append(WD([("b2", 4)]))
            init += ["v_add_f32 v%d, v%d, v%d" % (ACC + r, ACC + r, BT + r) for r in range(20)]
        init.append(self.mark("init"))
        vOut, vOutH = BT, BT + 1
        if last:
            init += ["v_lshrrev_b32 v%d, 2, v%d" % (vOut, vFl),
                     "v_and_b32 v%d, 15, v%d" % (vOut, vOut),
                     "v_mul_u32_u24 v%d, 1280, v%d" % (vOut, vOut),
                     "v_add_u32 v%d, v%d, v%d" % (vOut, vOut, vG),
                     "v_sub_u32 v%d, v%d, v%d" % (vOutH, vHalf, vL0),
                     "v_add_u32 v%d, v%d, v%d" % (vOutH, vOutH, vOut),
                     "s_add_u32 s%d, s%d, s%d" % (sA0, sRtT, sW),
                     "s_mul_i32 s%d, s%d, %d" % (sA1, sA0, 20 * KB),
                     "s_add_u32 s%d, s%d, %d" % (sA1, sA1, X0),
                     "s_add_u32 s%d, s%d, %d" % (sA0, sW, 2 if typ else 4),
                     "s_and_b32 s%d, s%d, %d" % (sA0, sA0, 3 if typ else 7),
                     "s_lshl_b32 s%d, s%d, 3" % (sA2, sC),
                     "s_add_u32 s%d, s%d, s%d" % (sA0, sA0, sA2),
                     "s_mul_i32 s%d, s%d, %d" % (sA0, sA0, 20 * KB),
                     "s_sub_u32 s%d, s%d, s%d" % (sA2, sXd0, sA1),
                     "s_lshr_b32 s%d, s%d, 4" % (sA2, sA2),
                     "s_add_u32 s%d, s%d, s%d" % (sA2, sA2, sA0),
                     "s_sub_u32 s%d, s%d, s%d" % (sA3, sXdh, sA1),
                     "s_lshr_b32 s%d, s%d, 4" % (sA3, sA3),
                     "s_add_u32 s%d, s%d, s%d" % (sA3, sA3, sA0)]
        self.bg = init
        started = set()
        lastuse = {k: n for n, (i, k) in enumerate(order)}
        fin = {i: max(n for n, (ii, k) in enumerate(order) if ii == i) for i in range(4)}

        def read(n):
            return "ds_read_b128 %s, v%d offset:%d" % (q(AB + (n % 4) * 4), vAk, (n % 20) * 1024)

        def compute(n):
            i, k = order[n]
            if i == 0:
                self.need("init")
            regs = self.bget([(name, k * 5 + ct) for ct in range(5)])
            fst = i != 0 and i not in started
            started.add(i)

            def mk(ct):
                def f():
                    self.mfma(ACC + (i * 5 + ct) * 4, regs[ct], AB + (n % 4) * 4, first=fst)
                    if ct == 0 and n + 20 < n_units:
                        self.stream.append(self.item_pk(is4, n + 20))
                    if ct == 4 and lastuse[k] == n:
                        for c in range(5):
                            self.bfree((name, k * 5 + c))
                return f
            return [mk(ct) for ct in range(5)]

        pre_read = {n: (lambda n=n: self.vwait([("Ak", n)])) for n in range(n_units)}
        pre_unit = {}

        def writes(i):
            return [DS("rw", "ds_write_b128 v%d, %s offset:%d" % ((vRw1, vRw2, vRw3)[i - 1], q(ACC + (i * 5 + ct) * 4), ct * 1024), 24)
                    for ct in range(5)]

        def spaced(ws, n):
            out = []
            for w in ws:
                out += [w, n]
            return out

        staged = bool(self.sq)
        if not last and self.opt("xtouch%d" % which, 0):
            def xt(soff, imm):
                return Load("touch", [], lambda: a.vm("touch", "buffer_load_dword v0, v%d, %s, s%d offen offset:%d" % (vL0, sWS, soff, imm)))
            pre_unit[28 if is4 else 4] = lambda: self.stream.extend([xt(sXd0, 0), xt(sXd0, 1024), xt(sXdh, 0), xt(sStd, 0)])

        def first_writes():
            if staged:
                assert not self.sq
                e("s_barrier")
            self.bg.extend([1] + spaced(writes(1), 2))
        pre_unit[fin[1] + 1] = first_writes
        pre_unit[fin[2] + 1] = lambda: self.bg.extend([1] + spaced(writes(2), 2))

        def stage1():
            self.b_on = bool(self.opt("ball", 1))
            self.drain_bg()
            a.wait(ds=["rw"])
            e("s_barrier")
            ops = []
            w3 = writes(3)
            for ct in range(5):
                for j in range(2):
                    ops.append(DS(("rr", j, ct), "ds_read_b128 %s, v%d offset:%d" %
                                  (q(ACC + 20 + (j * 5 + ct) * 4), vRr, (j * 5 + ct) * 1024)))
                ops.append(w3[ct])
            ops.append(self.mark("w3"))
            for ct in range(5):
                ops.append(WD([("rr", 1, ct)]))
                ops += ["v_add_f32 v%d, v%d, v%d" % (ACC + 20 + 4 * ct + r, ACC + 20 + 4 * ct + r, ACC + 40 + 4 * ct + r)
                        for r in range(4)]
            self.bg.extend(ops)
        pre_unit[fin[3] + 1] = stage1
        self.deadline = {("Ak", n): n for n in range(n_units)}
        for n, (i, k) in reversed(list(enumerate(order))):
            for ct in range(5):
                self.deadline[(name, k * 5 + ct)] = n - self.opt("blead", 4)
        self.period = self.opt("perk", 64)
        self.minlead = self.opt("leadk", 12)
        self.gapdt = self.opt("dtk", 18)
        self.b_on = True
        self.b_stop = name if (is4 and self.opt("bstop4", 0)) else None
        self.unit_loop(n_units, read, compute, look=3, pre_read=pre_read, pre_unit=pre_unit, name="p%d_%d" % (which, layer))
        self.b_on = bool(self.opt("ball", 1))
        self.b_stop = None
        self.unstage = False
        self.minlead = None
        self.deadline = {}
        self.stamp("p%d_%d_loop" % (which, layer))
        self.need("w3")
        a.wait(ds=["rw"])
        e("s_barrier")
        self.stamp("p%d_%d_gemm" % (which, layer))
        for ct in range(5):
            a.ds(("rr", 2, ct), "ds_read_b128 %s, v%d offset:%d" % (q(ACC + 60 + ct * 4), vRr, (10 + ct) * 1024))
        self.period = self.opt("pere", 64)
        if typ == 1 and not last:
            self.poll_issue()
        self.drain_bg()
        for ct in range(5):
            for hh in (0, 2):
                ev("v_pk_add_f32 %s, %s, %s" % (p2(ACC + 4 * ct + hh), p2(ACC + 4 * ct + hh), p2(ACC + 20 + 4 * ct + hh)))
        srd, v0_, vh, o2, d0, dh = (sOUT, vOut, vOutH, 64, sA2, sA3) if last else (sWS, vL0, vHalf, 1024, sXd0, sXdh)
        s0, s1 = vT1, vT2
        for ct in range(5):
            a.wait(ds=[("rr", 2, ct)])
            for hh in (0, 2):
                ev("v_pk_add_f32 %s, %s, %s" % (p2(ACC + 4 * ct + hh), p2(ACC + 4 * ct + hh), p2(ACC + 60 + 4 * ct + hh)))
            ev("v_cvt_pk_bf16_f32 v%d, v%d, v%d" % (vRes + 2 * ct, ACC + 4 * ct, ACC + 4 * ct + 1))
            ev("v_cvt_pk_bf16_f32 v%d, v%d, v%d" % (vRes + 2 * ct + 1, ACC + 4 * ct + 2, ACC + 4 * ct + 3))
            if ct == 1:
                a.vm("st", "buffer_store_dwordx4 %s, v%d, %s, s%d offen" % (q(vRes), v0_, srd, d0))
            if ct == 3:
                a.vm("st", "buffer_store_dwordx4 %s, v%d, %s, s%d offen offset:%d" % (q(vRes + 4), v0_, srd, d0, o2))
            if ct == 4:
                a.vm("st", "buffer_store_dwordx2 %s, v%d, %s, s%d offen" % (p2(vRes + 8), vh, srd, dh))
        if last:
            self.stamp("p4_1_end")
            return
        for r in range(10):
            ev("v_dot2_f32_bf16 v%d, v%d, s%d, %s" % (s0, vRes + r, sOnes, "0" if r == 0 else "v%d" % s0))
            ev("v_dot2_f32_bf16 v%d, v%d, v%d, %s" % (s1, vRes + r, vRes + r, "0" if r == 0 else "v%d" % s1))
        ev("v_permlane16_swap_b32 v%d, v%d" % (s0, s1))
        ev("v_add_f32 v%d, v%d, v%d" % (s0, s0, s1))
        ev("v_mov_b32 v%d, v%d" % (s1, s0))
        ev("v_permlane32_swap_b32 v%d, v%d" % (s0, s1))
        ev("v_add_f32 v%d, v%d, v%d" % (vHst, s0, s1))
        e("s_mov_b64 exec, %s" % sp(sMaskA))
        a.vm("st", "buffer_store_dword v%d, v%d, %s, s%d offen" % (vHst, vSt, sWS, sStd))
        e("s_mov_b64 exec, -1")
        val = 6 * layer + (6 if is4 else 3)

        if typ == 0:
            self.publish(val)
            self.bpref(self.opt("bwait%d_%d" % (which + 10, layer), 6 if (layer == 0 and not is4) else 0))
            self.poll(val, sMaskA)
            self.next_fetch(layer, is4)
            self.flush(n=10)
        else:
            self.poll_check(val, sMaskA)
            self.next_fetch(layer, is4)
            self.flush(n=6)
            self.publish(val)
        self.stamp("p%d_%d_end" % (which, layer))

    def next_fetch(self, layer, is4):
        st = self.items_stats(0)
        if is4:
            i0, i1 = self.items_p1(0, 1, "A0"), self.items_p1(0, 0, "A0")
            it = i0[:4] + st + i0[4:] + i1
        else:
            it = self.items_p3(0, 2, "A0") + st + [x for i in (3, 0, 1) for x in self.items_p3(0, i, "A0")]
        self.urgent = set(ld.tag for ld in it)
        self.stream.extend(it)

    P3_ACC = W0
    P3_AB = W0 + 48
    P3_CT = [W0 + 80, W0 + 84, W0 + 88, W0 + 92, W0 + 100, W0 + 104]
    P3_OUT = W0 + 108
    P3_MS = [46, W0 + 114]

    def p3(self, layer):
        a, e, DS, WD = self.a, self.e, self.DS, self.WD
        typ = self.typ
        name = ("W1", layer)
        ACC, AB, CT, OUT = self.P3_ACC, self.P3_AB, self.P3_CT, self.P3_OUT
        self.stamp("p3_%d_begin" % layer)
        phases = [(sb, i) for sb in range(2) for i in (2, 3, 0, 1)]
        units = [(sb, i, k) for sb, i in phases for k in range(10)]

        def read(u):
            sb, i, k = units[u]
            return "ds_read_b128 %s, v%d offset:%d" % (q(AB + (u % 8) * 4), vP3a if i < 2 else vP3b, (i & 1) * 20480 + k * 2048)

        def compute(u):
            sb, i, k = units[u]
            regs = self.bget([(name, k * 3 + ct) for ct in range(3)])

            def mk(ct):
                def f():
                    self.mfma(ACC + (i * 3 + ct) * 4, regs[ct], AB + (u % 8) * 4, first=(k == 0))
                    if ct == 2 and u >= 70:
                        for c in range(3):
                            self.bfree((name, k * 3 + c))
                return f
            return [mk(ct) for ct in range(3)]

        pre_read, pre_unit = {}, {}

        def hook(d, u, f):
            old = d.get(u)
            d[u] = f if old is None else (lambda: (old(), f()))

        def tags(p):
            sb, i = phases[p]
            return [("A%d" % sb, i, j) for j in range(5)]

        def sync(tg):
            def f():
                self.vwait(tg)
                e("s_barrier")
            return f

        def soon(f):
            return lambda: self.bg.insert(0, B_(f))

        def writes(i):
            ops = [2]
            for ct in range(3):
                ops += [DS("ew", "ds_write_b128 v%d, %s offset:%d" % (vE3w, q(ACC + (i * 3 + ct) * 4), ((i - 2) * 3 + ct) * 1024), 24), 1]
            return ops + [self.mark("ew")]

        def consts():
            o = ["s_lshr_b32 s%d, s%d, 1" % (sA3, sW),
                 "s_mul_i32 s%d, s%d, 192" % (sA3, sA3),
                 "v_add_u32 v%d, s%d, v%d" % (OUT, sA3, vG)]
            for ct in range(3):
                for z in range(2):
                    o.append(DS("c3", "ds_read_b128 %s, v%d offset:%d" % (q(CT[2 * ct + z]), OUT, L_CT + 480 + z * 384 + ct * 64)))
            return o

        def fetch(sb):
            ops = []
            for i in range(2):
                ms = self.P3_MS[i]
                ops += ["v_add_u32 v%d, s%d, v%d" % (ms, sK256, vSl),
                        DS(("ms", i), "ds_read_b64 %s, v%d offset:%d" % (p2(ms), ms, sb * 512 + i * 128))]
                for ct in range(3):
                    ops.append(DS(("er", i, ct), "ds_read_b128 %s, v%d offset:%d" %
                                  (q(ACC + 24 + (i * 3 + ct) * 4), vE3r, (i * 3 + ct) * 1024)))
            return ops + [4]

        def zz(i):
            ms = self.P3_MS[i]
            ops = [WD([("er", i, 2), "c3"])]
            for ct in range(3):
                z = ACC + 24 + (i * 3 + ct) * 4
                ops += ["v_fma_f32 v%d, -v%d, v%d, v%d" % (z + r, CT[2 * ct] + r, ms, z + r) for r in range(4)]
                ops += ["v_fma_f32 v%d, v%d, v%d, v%d" % (z + r, z + r, ms + 1, CT[2 * ct + 1] + r) for r in range(4)]
            return ops

        def epi(sb, i, packed=False):
            ms = self.P3_MS[i]
            ops = ["s_add_u32 s%d, s%d, %d" % (sA1, sHd, sb * SBH + i * 48 * KB)]
            for ct in range(3):
                acc = ACC + (i * 3 + ct) * 4
                z = acc + 24
                if packed:
                    ops += ["v_pk_fma_f32 %s, %s, %s, %s op_sel:[0,1,0] op_sel_hi:[1,1,1]" %
                            (p2(acc + hh), p2(acc + hh), p2(ms), p2(z + hh)) for hh in (0, 2)]
                else:
                    ops += ["v_fma_f32 v%d, v%d, v%d, v%d" % (acc + r, acc + r, ms + 1, z + r) for r in range(4)]
            ops.append(self.mark(("zfree", i)))
            for ct in range(3):
                acc = ACC + (i * 3 + ct) * 4
                ops += ["v_mul_f32 v%d, v%d, abs(v%d)" % (acc + r, acc + r, acc + r) for r in range(4)]
                o = OUT + 2 * ct
                ops += ["v_cvt_pk_bf16_f32 v%d, v%d, v%d" % (o, acc, acc + 1),
                        "v_cvt_pk_bf16_f32 v%d, v%d, v%d" % (o + 1, acc + 2, acc + 3),
                        "v_pk_max_i16 v%d, v%d, 0" % (o, o),
                        "v_pk_max_i16 v%d, v%d, 0" % (o + 1, o + 1)]
                if ct == 1:
                    ops.append(V_(lambda: a.vm("st", "buffer_store_dwordx4 %s, v%d, %s, s%d offen" % (q(OUT), vHf, sWS, sA1))))
                if ct == 2:
                    ops.append(V_(lambda o=o: a.vm("st", "buffer_store_dwordx2 %s, v%d, %s, s%d offen offset:1024" %
                                                   (p2(o), vHh, sWS, sA1))))
            return ops + [self.mark(("epi", i))]

        self.bg = []
        MID = self.opt("mid3", 5)
        hook(pre_read, 0, sync(tags(0)))
        hook(pre_read, 10, sync(tags(1)))
        hook(pre_read, 20, sync(tags(2)))
        hook(pre_read, 30, sync(tags(3)))
        hook(pre_read, 40, sync(tags(4)))
        hook(pre_read, 50, sync(tags(5)))
        hook(pre_read, 60, sync(tags(6)))
        hook(pre_read, 70, sync(tags(7)))
        for sb in range(2):
            b = 40 * sb
            w2 = self.opt("w2at", 18)
            hook(pre_unit, b + w2, lambda: self.bg.__setitem__(slice(0, 0), writes(2)[1:]))
            hook(pre_unit, b + 20, lambda: (self.need("ew"), self.bg.__setitem__(slice(0, 0), writes(3))))
            hook(pre_unit, b + 31, lambda sb=sb: self.bg.extend(epi(sb, 0)))
        look = self.opt("look3", 5)

        def pre_mid(sb):
            def f():
                self.need("ew")
                self.need(("st", sb))
                a.wait(ds=["ew", "sw"])
            return f
        for sb in range(2):
            old = pre_read[40 * sb + 30]
            pre_read[40 * sb + 30] = (lambda sb=sb, old=old: (pre_mid(sb)(), old(), self.bg.extend(fetch(sb) + zz(0) + zz(1))))
        hook(pre_unit, 40, lambda: self.need(("zfree", 0)))
        hook(pre_unit, 41, lambda: self.bg.extend(epi(0, 1)))
        hook(pre_unit, 50, lambda: self.need(("zfree", 1)))
        hook(pre_unit, 60, lambda: self.need(("epi", 0)))
        hook(pre_unit, 1, lambda: self.bg.extend(consts()))
        if layer == 0:
            hook(pre_unit, 10, lambda: setattr(self, "stage_free", list(range(self.opt("nstage", 13)))))
            hook(pre_unit, 70, lambda: setattr(self, "stage_free", []))
        hook(pre_unit, 8, lambda: self.bg.extend(self.stats_share(0) + [self.mark(("st", 0))]))
        hook(pre_unit, self.opt("iss3", 8), soon(self.poll_issue))
        self.marks.discard("chk3")
        hook(pre_unit, self.opt("chk3", 20), lambda: (self.need(("st", 0)), self.bg.insert(0, B_(lambda: (
            self.poll_check(6 * layer + 3, sMaskB),
            self.stream.extend(self.items_p3(1, 2, "A1") + self.items_stats(1)), self.marks.add("chk3"))))))
        hook(pre_read, 30, lambda: (self.need("chk3"), self.stream.extend(self.items_p3(1, 3, "A1"))))
        hook(pre_read, 40, lambda: self.stream.extend(self.items_p3(1, 0, "A1")))
        hook(pre_read, 50, lambda: (self.urgent.update(tags(7) if self.opt("urg7", 1) else []),
                                    self.stream.extend(self.items_p3(1, 1, "A1") + [self.item_code()])))
        hook(pre_unit, 52, lambda: self.bg.extend(self.stats_share(1) + [self.mark(("st", 1))]))
        hook(pre_unit, 40, lambda: self.stamp("p3_%d_a" % layer))
        hook(pre_unit, 62, lambda: (self.need(("epi", 1)), self.bg.insert(0, B_(lambda: self.publish(6 * layer + 4)))))
        self.deadline = {}
        for n, (sb, i, k) in reversed(list(enumerate(units))):
            self.deadline[("A%d" % sb, i, k // 2)] = n
            for ct in range(3):
                self.deadline[(name, k * 3 + ct)] = n - self.opt("blead3", 12)
        self.period = self.opt("per3", 64)
        self.gapdt = self.opt("dt3", 18)
        self.b_on = True
        self.hurry = self.opt("hurry3", 45)
        hook(pre_unit, 80 - self.opt("bstop3", 2), lambda: setattr(self, "b_on", bool(self.opt("ball", 1))))
        self.unit_loop(len(units), read, compute, look=look, pre_read=pre_read, pre_unit=pre_unit, wait_every=2,
                       name="p3_%d" % layer, every=self.opt("ev3", 5))
        self.hurry = 10 ** 9
        self.b_on = bool(self.opt("ball", 1))
        self.deadline = {}
        self.stamp("p3_%d_loop" % layer)
        self.period = self.opt("pere", 64)
        if typ == 0:
            self.poll_issue()
        self.drain_bg()
        self.bg = epi(1, 1, packed=True)
        self.drain_bg()
        if typ == 0:
            e("s_barrier")
            self.poll_check(6 * layer + 4, sMask16)
            self.stream.extend([self.item_pk(True, n) for n in range(20)])
            self.flush(n=6)
            self.bpref(self.opt("bwait3a_%d" % layer, 0))
        else:
            self.bpref(self.opt("bwait3_%d" % layer, (6, 0)[layer]))
        self.publish(6 * layer + 5)
        self.stamp("p3_%d_end" % layer)

    def program(self):
        e = self.e
        lab = "prog_%d" % self.typ
        self.a.label(lab)
        e("s_getpc_b64 s[20:21]")
        e("s_mov_b32 s22, %s-%s-4" % ("main_typeb" if self.typ == 0 else "main_end", lab))
        e("s_mov_b32 s23, 0x20000")
        for layer in range(2):
            self.queue_b(("WO", layer), sWOb, 25)
            self.queue_b(("W1", layer), sW1b, 30)
            self.queue_b(("W2", layer), sW2b, 60)
        for layer in range(2):
            self.p1(layer)
            self.pk(layer, 2)
            self.p3(layer)
            self.pk(layer, 4)
        if self.stamps:
            self.rstamp(63)
            e("s_lshl_b32 s%d, s2, 2" % sA0)
            e("s_add_u32 s%d, s%d, s%d" % (sA0, sA0, sW))
            e("s_lshl_b32 s%d, s%d, 8" % (sA0, sA0))
            e("s_add_u32 s%d, s%d, %d" % (sA0, sA0, DBG))
            e("buffer_store_dword v%d, v%d, %s, s%d offen" % (vStamp, vFl, sWS, sA0))
        e("s_endpgm")
        for l in self.cold:
            self.a.raw(l)

    def build(self):
        import copy
        a, e = self.a, self.e
        a.label("main_kernel")
        self.prologue()
        e("s_cmp_lt_u32 s%d, 8" % sM)
        e("s_cbranch_scc0 main_typeb")
        st = [Load(ld.tag, ld.pre, ld.issue) for ld in self.stream]
        saved = (list(a.vmq), list(a.dsq), st, self.credit, self.period, self.nstamp, list(a.hist))
        self.program()
        a.label("main_typeb")
        self.log_a = self.log
        self.reset_state()
        self.typ = 1
        a.vmq, a.dsq, self.stream, self.credit, self.period, self.nstamp, a.hist = saved
        self.program()
        a.label("main_end")
        return a.text()
```

```python
from layout import *

MATS = {0: (3840, 30, 5), 1: (3072, 24, 5), 2: (1280, 10, 5), 3: (1280, 10, 12)}
TAB_BASE = {0: 0, 1: 480, 2: 864, 3: 1024}
NKQ = 5


def jobs():
    lst = []
    for mat in (0, 2, 1, 3):
        pitch, ncb, nkq = MATS[mat]
        lst += [(mat, cb, kq) for kq in range(nkq) for cb in range(ncb)]
    assert len(lst) == 440
    return lst + [(4, 0, 0)] * (512 - len(lst))


def col_table():
    t = []
    for c in range(480):
        t += list(wq_col(4 * c))
    for c in range(384):
        t += list(w1_col(4 * c))
    for c in range(160):
        t += list(wo_col(4 * c))
    for c in range(160):
        t += list(w2_col(4 * c))
    return t


def job_table():
    return [m | cb << 8 | kq << 16 for m, cb, kq in jobs()]


class P0:
    def __init__(self, a, sreg, v0, lds, ws, stf):
        self.a, self.s, self.v, self.lds, self.ws, self.stf = a, sreg, v0, lds, ws, stf

    def decode(self, r, wg):
        e, s = self.a.e, self.s
        P = s["par"] + 12 * r
        mat, cb, ks, pitch, tab, gst, ksoff, kq, A, B, Dd, tmp = range(P, P + 12)
        srd = s["src"] + 4 * r
        lab = self.a.newlabel
        done = lab("p0d")
        e("s_add_u32 s%d, s%d, %d" % (tmp, wg, 256 * r))
        bounds = [(0, 0, 150), (2, 150, 200), (1, 200, 320), (3, 320, 440)]
        magic = {30: 2185, 24: 2731, 10: 6554}
        e("s_mov_b32 s%d, 4" % mat)
        for x in (cb, ks, pitch, tab, gst, ksoff, A, B, Dd):
            e("s_mov_b32 s%d, 0" % x)
        e("s_mov_b32 s%d, -1" % kq)
        e("s_mov_b32 s%d, s%d" % (srd, s["ptr"][0]))
        e("s_mov_b32 s%d, s%d" % (srd + 1, s["ptr"][0] + 1))
        e("s_mov_b32 s%d, 0" % (srd + 2))
        e("s_mov_b32 s%d, 0x20000" % (srd + 3))
        for m, lo, hi in bounds:
            if hi <= 256 * r or lo >= 256 * (r + 1):
                continue
            nxt = lab("p0n")
            pit, ncb, nkq = MATS[m]
            e("s_cmp_ge_u32 s%d, %d" % (tmp, hi))
            e("s_cbranch_scc1 %s" % nxt)
            e("s_mov_b32 s%d, %d" % (mat, m))
            e("s_sub_u32 s%d, s%d, %d" % (tmp, tmp, lo))
            e("s_mul_i32 s%d, s%d, %d" % (ks, tmp, magic[ncb]))
            e("s_lshr_b32 s%d, s%d, 16" % (ks, ks))
            e("s_mul_i32 s%d, s%d, %d" % (cb, ks, ncb))
            e("s_sub_u32 s%d, s%d, s%d" % (cb, tmp, cb))
            if m in (0, 1):
                e("s_mov_b32 s%d, s%d" % (kq, ks))
            e("s_lshl_b32 s%d, s%d, 2" % (ks, ks))
            e("s_add_u32 s%d, s%d, s%d" % (ks, ks, s["w"]))
            e("s_mov_b32 s%d, %d" % (pitch, pit))
            e("s_mov_b32 s%d, %d" % (tab, TAB_BASE[m] * 8))
            e("s_mov_b32 s%d, %d" % (gst, 512 if m == 0 else 256))
            e("s_mov_b32 s%d, s%d" % (srd, s["ptr"][m]))
            e("s_mov_b32 s%d, s%d" % (srd + 1, s["ptr"][m] + 1))
            e("s_mov_b32 s%d, %d" % (srd + 2, {0: D * 3 * D * 2, 1: D * F * 2, 2: D * D * 2, 3: F * D * 2}[m]))
            for x, val in ((A, 4 if m == 2 else 8), (B, 20 if m == 2 else 0), (Dd, 20 if m == 2 else 4)):
                e("s_mov_b32 s%d, %d" % (x, val))
            if m == 1:
                e("s_lshr_b32 s%d, s%d, 1" % (ksoff, ks))
                e("s_mul_i32 s%d, s%d, %d" % (ksoff, ksoff, 3 * KB))
                e("s_and_b32 s%d, s%d, 1" % (tmp, ks))
                e("s_mul_i32 s%d, s%d, %d" % (tmp, tmp, 30 * KB))
                e("s_add_u32 s%d, s%d, s%d" % (ksoff, ksoff, tmp))
            else:
                e("s_mul_i32 s%d, s%d, %d" % (ksoff, ks, (2 if m == 0 else 5) * KB))
            e("s_branch %s" % done)
            self.a.label(nxt)
        self.a.label(done)

    def lanes(self, lane):
        e, v = self.a.e, self.v
        e("v_lshrrev_b32 v%d, 3, v%d" % (v, lane))
        e("v_and_b32 v%d, 7, v%d" % (v + 1, lane))
        e("v_lshlrev_b32 v%d, 4, v%d" % (v + 1, v + 1))
        e("v_lshrrev_b32 v%d, 4, v%d" % (v + 2, lane))
        e("v_and_b32 v%d, 15, v%d" % (v + 3, lane))

    def issue(self, r):
        a, e, s, v = self.a, self.a.e, self.s, self.v
        P = s["par"] + 12 * r
        mat, cb, ks, pitch, tab, gst, ksoff, kq, A, B, Dd, tmp = range(P, P + 12)
        srd = "s[%d:%d]" % (s["src"] + 4 * r, s["src"] + 4 * r + 3)
        t0, t1 = v + 4, v + 5
        e("v_and_b32 v%d, 3, v%d" % (t0, v))
        e("v_lshrrev_b32 v%d, 2, v%d" % (t1, v))
        e("v_mad_u32_u24 v%d, v%d, s%d, v%d" % (t0, t1, Dd, t0))
        e("v_mad_u32_u24 v%d, v%d, s%d, v%d" % (t0, t0, pitch, v + 1))
        x, y = s["t"], s["t"] + 1
        for g in range(4):
            e("s_lshl_b32 s%d, s%d, 2" % (x, ks))
            e("s_add_u32 s%d, s%d, %d" % (x, x, g))
            e("s_mul_i32 s%d, s%d, 205" % (y, x))
            e("s_lshr_b32 s%d, s%d, 10" % (y, y))
            e("s_mul_i32 s%d, s%d, s%d" % (y, y, B))
            e("s_mul_i32 s%d, s%d, s%d" % (x, x, A))
            e("s_add_u32 s%d, s%d, s%d" % (x, x, y))
            e("s_mul_i32 s%d, s%d, s%d" % (x, x, pitch))
            e("s_lshl_b32 s%d, s%d, 7" % (y, cb))
            e("s_add_u32 s%d, s%d, s%d" % (x, x, y))
            e("s_add_u32 m0, s%d, %d" % (s["w8k"], self.lds + r * 4096 + g * 1024))
            a.vm(("p0", r), "buffer_load_dwordx4 v%d, %s, s%d offen lds" % (t0, srd, x))
        c4r, c4d = v + 6 + 4 * r, v + 7 + 4 * r
        e("s_cmp_eq_u32 s%d, 0" % mat)
        e("s_cselect_b64 s[%d:%d], -1, 0" % (s["m2"], s["m2"] + 1))
        for dst, sh in ((c4r, None), (c4d, 2)):
            if sh is None:
                e("v_and_b32 v%d, 3, v%d" % (t0, v + 3))
            else:
                e("v_lshrrev_b32 v%d, 2, v%d" % (t0, v + 3))
            e("v_lshl_add_u32 v%d, v%d, 2, v%d" % (dst, v + 2, t0))
            e("v_lshrrev_b32 v%d, 1, v%d" % (t1, v + 2))
            e("v_lshlrev_b32 v%d, 2, v%d" % (t1, t1))
            e("v_add_u32 v%d, v%d, v%d" % (t0, t0, t1))
            e("v_and_b32 v%d, 1, v%d" % (t1, v + 2))
            e("v_lshl_add_u32 v%d, v%d, 1, v%d" % (t0, t0, t1))
            e("v_cndmask_b32 v%d, v%d, v%d, s[%d:%d]" % (dst, t0, dst, s["m2"], s["m2"] + 1))
        e("s_lshl_b32 s%d, s%d, 7" % (x, cb))
        e("s_add_u32 s%d, s%d, s%d" % (x, x, tab))
        e("v_lshlrev_b32 v%d, 3, v%d" % (t0, c4d))
        a.vm(("p0", r), "buffer_load_dwordx2 v[%d:%d], v%d, %s, s%d offen" % (v + 8 + 4 * r, v + 9 + 4 * r, t0, s["tab"], x))
        e("v_lshrrev_b32 v%d, 2, v%d" % (t0, v + 3))
        e("v_lshlrev_b32 v%d, 7, v%d" % (t0, t0))
        e("v_lshl_add_u32 v%d, v%d, 3, v%d" % (c4r, c4r, t0))
        e("v_add_u32 v%d, s%d, v%d" % (c4r, s["w8k"], c4r))

    def finish(self, r, red):
        a, e, s, v = self.a, self.a.e, self.s, self.v
        P = s["par"] + 12 * r
        mat, cb, ks, pitch, tab, gst, ksoff, kq, A, B, Dd, tmp = range(P, P + 12)
        c4r, c4d, dst, cso = v + 6 + 4 * r, v + 7 + 4 * r, v + 8 + 4 * r, v + 9 + 4 * r
        G = v + 16
        t0, t1 = v + 4, v + 5
        skip = a.newlabel("p0s")
        a.wait(vm=[("p0", r)])
        for g in range(4):
            for z in range(2):
                a.ds(("p0t", g), "ds_read_b64_tr_b16 v[%d:%d], v%d offset:%d" %
                     (G + 4 * g + 2 * z, G + 4 * g + 2 * z + 1, c4r, self.lds + r * 4096 + g * 1024 + z * 512))
        e("v_and_b32 v%d, 3, v%d" % (t0, v + 3))
        e("v_lshl_add_u32 v%d, v%d, 4, v%d" % (dst, t0, dst))
        e("v_lshl_add_u32 v%d, v%d, 2, v%d" % (cso, t0, cso))
        e("v_lshl_add_u32 v%d, v%d, 2, v%d" % (c4d, c4d, t0))
        a.wait_all(ds=True)
        e("s_cmp_eq_u32 s%d, 4" % mat)
        e("s_cbranch_scc1 %s" % skip)
        for g in range(4):
            e("buffer_store_dwordx4 v[%d:%d], v%d, %s, s%d offen%s" % (G + 4 * g, G + 4 * g + 3, dst, self.ws, ksoff, self.stf))
            if g < 3:
                e("s_add_u32 s%d, s%d, s%d" % (ksoff, ksoff, gst))
        nob = a.newlabel("p0b")
        e("s_and_b32 s%d, s%d, 1" % (tmp, mat))
        e("s_cmp_eq_u32 s%d, 0" % ks)
        e("s_cselect_b32 s%d, s%d, 0" % (tmp, tmp))
        e("s_cmp_eq_u32 s%d, 0" % tmp)
        e("s_cbranch_scc1 %s" % nob)
        srd = s["src"] + 4 * r
        e("s_cmp_eq_u32 s%d, 1" % mat)
        e("s_cselect_b32 s%d, s%d, s%d" % (srd, s["b1"], s["b2"]))
        e("s_cselect_b32 s%d, s%d, s%d" % (srd + 1, s["b1"] + 1, s["b2"] + 1))
        e("s_cselect_b32 s%d, 384, 0" % tmp)
        e("s_mov_b32 s%d, %d" % (srd + 2, D * 2))
        e("s_cselect_b32 s%d, %d, s%d" % (srd + 2, F * 2, srd + 2))
        e("s_lshl_b32 s%d, s%d, 7" % (cb, cb))
        e("v_lshlrev_b32 v%d, 1, v%d" % (t0, c4d))
        e("buffer_load_ushort v%d, v%d, s[%d:%d], s%d offen" % (t0, t0, srd, srd + 3, cb))
        e("s_waitcnt vmcnt(0)")
        e("v_lshlrev_b32 v%d, 16, v%d" % (t0, t0))
        e("buffer_store_dword v%d, v%d, %s, s%d offen%s" % (t0, cso, self.ws, tmp, self.stf))
        a.label(nob)
        a.label(skip)
        for k in range(16):
            e("v_dot2_f32_bf16 v%d, v%d, s%d, %s" % (t0, G + k, s["ones"], "0" if k == 0 else "v%d" % t0))
        e("v_lshlrev_b32 v%d, 2, v0" % t1)
        e("ds_write_b32 v%d, v%d offset:%d" % (t1, t0, red))
        e("s_waitcnt lgkmcnt(0)")
        e("s_barrier")
        noc = a.newlabel("p0c")
        e("s_cmp_lt_i32 s%d, 0" % kq)
        e("s_cbranch_scc1 %s" % noc)
        e("s_cmp_lg_u32 s%d, 0" % s["w"])
        e("s_cbranch_scc1 %s" % noc)
        for k in range(1, 4):
            e("ds_read_b32 v%d, v%d offset:%d" % (G + k, t1, red + 256 * k))
        e("s_waitcnt lgkmcnt(0)")
        e("v_add_f32 v%d, v%d, v%d" % (t0, t0, G + 1))
        e("v_add_f32 v%d, v%d, v%d" % (G + 2, G + 2, G + 3))
        e("v_add_f32 v%d, v%d, v%d" % (t0, t0, G + 2))
        e("s_lshl_b32 s%d, s%d, 15" % (kq, kq))
        e("buffer_store_dword v%d, v%d, %s, s%d offen%s" % (t0, cso, self.ws, kq, self.stf))
        a.label(noc)

    def x_issue(self, lane):
        a, e, s, v = self.a, self.a.e, self.s, self.v
        X = s["xp"]
        tile, w5, xd, sd, t = range(X, X + 5)
        srd = s["xsrd"]
        e("s_lshl_b32 s%d, s%d, 2" % (t, s["m"]))
        e("s_add_u32 s%d, s%d, s%d" % (t, t, s["w"]))
        e("s_mul_i32 s%d, s%d, 205" % (tile, t))
        e("s_lshr_b32 s%d, s%d, 10" % (tile, tile))
        e("s_mul_i32 s%d, s%d, 5" % (w5, tile))
        e("s_sub_u32 s%d, s%d, s%d" % (w5, t, w5))
        e("s_add_u32 s%d, s%d, 2" % (xd, tile))
        e("s_and_b32 s%d, s%d, 3" % (xd, xd))
        e("s_add_u32 s%d, s%d, 4" % (t, tile))
        e("s_cmp_gt_u32 s%d, 3" % tile)
        e("s_cselect_b32 s%d, s%d, s%d" % (t, xd, t))
        e("s_lshl_b32 s%d, s%d, 3" % (xd, s["c"]))
        e("s_add_u32 s%d, s%d, s%d" % (t, t, xd))
        e("s_mul_i32 s%d, s%d, %d" % (t, t, 16 * 1280))
        e("s_lshl_b32 s%d, s%d, 8" % (xd, w5))
        e("s_add_u32 s%d, s%d, s%d" % (t, t, xd))
        e("s_mov_b32 s%d, s%d" % (srd, s["x"]))
        e("s_mov_b32 s%d, s%d" % (srd + 1, s["x"] + 1))
        e("s_cmp_gt_u32 s%d, 7" % tile)
        e("s_cselect_b32 s%d, 0, %d" % (srd + 2, S * D * 2))
        e("s_mov_b32 s%d, 0x20000" % (srd + 3))
        e("v_mul_u32_u24 v%d, 1280, v%d" % (v + 4, v + 3))
        e("v_lshl_add_u32 v%d, v%d, 4, v%d" % (v + 4, v + 2, v + 4))
        for k in range(4):
            a.vm("p0x", "buffer_load_dwordx4 v[%d:%d], v%d, s[%d:%d], s%d offen offset:%d" %
                 (v + 32 + 4 * k, v + 35 + 4 * k, v + 4, srd, srd + 3, t, 64 * k))
        e("s_and_b32 s%d, s%d, 3" % (t, tile))
        e("s_lshl_b32 s%d, s%d, 2" % (xd, s["c"]))
        e("s_add_u32 s%d, s%d, s%d" % (t, t, xd))
        e("s_lshr_b32 s%d, s%d, 2" % (xd, tile))
        e("s_lshl_b32 s%d, s%d, 6" % (xd, xd))
        e("s_add_u32 s%d, s%d, s%d" % (t, t, xd))
        e("s_mul_i32 s%d, s%d, %d" % (xd, t, 20 * KB))
        e("s_lshl_b32 s%d, s%d, 10" % (sd, t))
        e("s_add_u32 s%d, s%d, %d" % (xd, xd, X0))
        e("s_add_u32 s%d, s%d, %d" % (sd, sd, ST0))
        e("s_lshl_b32 s%d, s%d, 12" % (t, w5))
        e("s_add_u32 s%d, s%d, s%d" % (xd, xd, t))

    def x_finish(self, lane, vl16):
        a, e, s, v = self.a, self.a.e, self.s, self.v
        X = s["xp"]
        tile, w5, xd, sd, t = range(X, X + 5)
        skip = a.newlabel("p0x")
        a.wait(vm=["p0x"])
        e("s_cmp_gt_u32 s%d, 7" % tile)
        e("s_cbranch_scc1 %s" % skip)
        for k in range(4):
            e("buffer_store_dwordx4 v[%d:%d], v%d, %s, s%d offen offset:%d%s" %
              (v + 32 + 4 * k, v + 35 + 4 * k, vl16, self.ws, xd, 1024 * k, self.stf))
        s0, s1, z0, z1 = v + 48, v + 49, v + 50, v + 51
        for r in range(16):
            e("v_dot2_f32_bf16 v%d, v%d, s%d, %s" % (s0, v + 32 + r, s["ones"], "0" if r == 0 else "v%d" % s0))
            e("v_dot2_f32_bf16 v%d, v%d, v%d, %s" % (s1, v + 32 + r, v + 32 + r, "0" if r == 0 else "v%d" % s1))
        e("v_permlane16_swap_b32 v%d, v%d" % (s0, s1))
        e("v_add_f32 v%d, v%d, v%d" % (s0, s0, s1))
        e("v_mov_b32 v%d, v%d" % (s1, s0))
        e("v_permlane32_swap_b32 v%d, v%d" % (s0, s1))
        e("v_add_f32 v%d, v%d, v%d" % (s0, s0, s1))
        e("s_min_u32 s%d, s%d, 2" % (t, w5))
        e("s_add_u32 s%d, s%d, 5" % (t, t))
        e("v_mov_b32 v%d, s%d" % (z0, w5))
        e("v_mov_b32 v%d, s%d" % (z1, t))
        e("v_cmp_gt_u32 vcc, 32, v%d" % lane)
        e("v_cndmask_b32 v%d, v%d, v%d, vcc" % (z0, z1, z0))
        e("v_cndmask_b32 v%d, 0, v%d, vcc" % (s0, s0))
        e("v_lshrrev_b32 v%d, 1, v%d" % (z1, z0))
        e("v_lshlrev_b32 v%d, 8, v%d" % (z1, z1))
        e("v_and_b32 v%d, 1, v%d" % (z0, z0))
        e("v_lshl_add_u32 v%d, v%d, 3, v%d" % (z1, z0, z1))
        e("v_lshl_add_u32 v%d, v%d, 4, v%d" % (z1, v + 3, z1))
        e("v_and_b32 v%d, 1, v%d" % (z0, v + 2))
        e("v_lshl_add_u32 v%d, v%d, 2, v%d" % (z1, z0, z1))
        e("buffer_store_dword v%d, v%d, %s, s%d offen%s" % (s0, z1, self.ws, sd, self.stf))
        a.label(skip)
```

```python
from asmlib import Asm
from layout import *
from phase0 import P0, col_table

PREP_WGS = 256
PREP_BLOCK = 256
PREP_LDS = 36 * 1024


def table_asm(a):
    a.raw(".p2align 3")
    a.raw(".type prep_table,@object")
    a.label("prep_table")
    t = col_table()
    for i in range(0, len(t), 8):
        a.raw("    .long " + ", ".join("0x%x" % v for v in t[i:i + 8]))
    a.raw(".size prep_table, %d" % (len(t) * 4))


def gen_prep(main_label, main_end_label, opts=None):
    opts = opts or {}
    a = Asm()
    a._lab = 100000
    e = a.e
    stf = opts.get("pst", "").replace("_", " ")
    diag = opts.get("pdiag", 0)

    def rs(k):
        if diag:
            e("s_memrealtime s[%d:%d]" % (90 + 2 * k, 91 + 2 * k))

    a.label("prep_kernel")
    e("s_cmp_ge_u32 s2, %d" % PREP_WGS)
    e("s_cbranch_scc0 prep_go")
    e("s_endpgm")
    a.label("prep_go")
    rs(0)
    e("s_load_dwordx16 s[16:31], s[0:1], 0x0")
    e("s_load_dwordx2 s[4:5], s[0:1], 0x50")
    e("v_lshrrev_b32 v1, 6, v0")
    e("v_and_b32 v2, 63, v0")
    e("v_readfirstlane_b32 s3, v1")
    e("v_lshlrev_b32 v3, 4, v2")
    e("s_getpc_b64 s[34:35]")
    a.label("prep_pc")
    e("s_mov_b32 s6, %d" % WS_USED)
    e("s_mov_b32 s7, 0x20000")
    e("s_add_u32 s12, s34, prep_table-prep_pc")
    e("s_addc_u32 s13, s35, 0")
    e("s_mov_b32 s14, %d" % (1184 * 8))
    e("s_mov_b32 s15, 0x20000")
    e("s_add_u32 s36, s34, %s-prep_pc" % main_label)
    e("s_addc_u32 s37, s35, 0")
    e("s_mov_b32 s38, %s-%s" % (main_end_label, main_label))
    e("s_mov_b32 s39, 0x20000")
    e("s_mov_b32 s32, 0x3f803f80")
    e("s_lshl_b32 s33, s3, 13")
    e("s_and_b32 s8, s2, 7")
    e("s_lshl_b32 s8, s8, 1")
    e("s_lshr_b32 s9, s2, 7")
    e("s_add_u32 s8, s8, s9")
    e("s_bfe_u32 s9, s2, 0x40003")
    sreg = dict(par=56, src=40, ptr={0: 18, 1: 24, 2: 20, 3: 28}, w=3, w8k=33, t=10, m2=52, tab="s[12:15]", ones=32,
                b1=26, b2=30, xp=80, xsrd=48, x=16, m=9, c=8)
    p = P0(a, sreg, 8, 0, "s[4:7]", stf)
    p.lanes(2)
    e("s_waitcnt lgkmcnt(0)")
    p.x_issue(2)
    p.decode(0, 2)
    p.issue(0)
    e("s_lshr_b32 s10, s2, 3")
    e("s_lshl_b32 s10, s10, 2")
    e("s_add_u32 s10, s10, s3")
    e("s_lshl_b32 s10, s10, 10")
    a.vm("pf", "buffer_load_dword v63, v3, s[36:39], s10 offen")
    e("v_mov_b32 v62, 0")
    e("v_lshlrev_b32 v61, 2, v0")
    e("s_lshl_b32 s10, s2, 8")
    e("s_add_u32 s10, s10, %d" % FL)
    e("v_cmp_gt_u32 vcc, 64, v0")
    e("s_and_saveexec_b64 s[54:55], vcc")
    e("s_cbranch_execz prep_nz")
    e("buffer_store_dword v62, v61, s[4:7], s10 offen%s" % stf)
    a.label("prep_nz")
    e("s_mov_b64 exec, s[54:55]")
    p.decode(1, 2)
    if opts.get("pearly", 1):
        p.issue(1)
    hz = opts.get("hz", "_sc1")
    if hz != "no":
        for k in range(4):
            e("v_mov_b32 v%d, 0" % (64 + k))
        e("s_lshl_b32 s10, s2, 2")
        e("s_add_u32 s10, s10, s3")
        e("s_mul_i32 s10, s10, 6144")
        e("s_add_u32 s10, s10, %d" % HB)
        e("s_add_u32 s11, s10, 4096")
        for k in range(6):
            a.vm("hz", "buffer_store_dwordx4 v[64:67], v3, s[4:7], s%d offen offset:%d%s" % (10 + k // 4, (k % 4) * 1024, hz.replace("_", " ")))
    p.x_finish(2, 3)
    p.finish(0, 32768)
    rs(1)
    if not opts.get("pearly", 1):
        p.issue(1)
        if diag:
            e("s_waitcnt vmcnt(5)")
    rs(2)
    p.finish(1, 33792)
    if diag:
        e("s_waitcnt vmcnt(0)")
        rs(3)
        e("s_waitcnt lgkmcnt(0)")
        for k in range(4):
            e("v_mov_b32 v%d, s%d" % (56 + k, 90 + 2 * k))
        e("s_lshl_b32 s45, s2, 2")
        e("s_add_u32 s45, s45, s3")
        e("s_lshl_b32 s45, s45, 4")
        e("s_add_u32 s45, s45, %d" % DBG)
        e("buffer_store_dwordx4 v[56:59], off, s[4:7], s45")
    e("s_endpgm")
    table_asm(a)
    return a.text()
```

```python
import struct
from asmlib import Asm, Ins
from layout import *

LDS_BYTES_ = 163840
L_CT = 0
L_A = 4096
L_HALO = L_A + 81920
L_RED = L_A + 81920
L_EX = L_A + 102400
L_E3 = L_A + 102400
L_ST = 2048
STAGE = [L_HALO + 4096 * j for j in range(5)] + [L_E3 + 24576 + 4096 * j for j in range(8)]
LDS_BYTES = 163840
EXS = 264
EXT = 16 * EXS
SBH = 64 * 48 * KB

(vL0, vL1, vL2, vKv, vFl, vP3a, vP3b, vXw0, vX32, vXp, vXc, vXv, vM0, vM1, vM2, vM3, vSl, vE3w, vE3r,
 vRw1, vRw2, vRw3, vRr, vG, vHalf, vHh, vHf, vSt, vPoll, vT0, vT1, vT2, vAk, vHst) = range(1, 35)
vSg0, vSg1 = 35, vHst
vRes = 36
W0 = 48
vStamp = 255

sWS, sOUT, sXA, sXB, sCode = "s[4:7]", "s[8:11]", "s[12:15]", "s[16:19]", "s[20:23]"
sW, sC, sM, sCG, sMode, sSpin, sOnes, sFlBase, sFlOwn, sBcur = range(24, 34)
sMask16, sMaskA, sMaskB, sMaskW, sMaskX, sOdd, sPA, sPB, sG0, sPAx, sPBx, sTmp2, sStamp = range(34, 60, 2)
sWOb, sW1b, sW2b, sScale, sInv640, sEps, sNeg, sRtA, sRtT, sK256 = range(60, 70)
SP3 = {0: 70, 1: 71, 2: 72, 3: 73}
sR2, sR4 = 74, 78
sX1, sX3, sWk, sKvo, sKvi, sKfi, sD0 = range(82, 89)
sA0, sA1, sA2, sA3 = range(89, 93)
sOd, sHd, sXd0, sXdh, sStd, sSta, sWQ, sXcc, sXT = range(93, 102)
sKfo = 3
sFlip = 1
sW128 = 0


ODIAG = ["start", "p1_0_a", "p1_0_end", "p2_0_end", "p3_0_end", "p4_0_end", "p1_1_end", "p2_1_end", "p3_1_end", "p4_1_end"]


def fbits(x):
    return struct.unpack("<I", struct.pack("<f", x))[0]


def q(r):
    if isinstance(r, int):
        r = ("v", r)
    return "%s[%d:%d]" % (r[0], r[1], r[1] + 3)


def p2(n):
    return "v[%d:%d]" % (n, n + 1)


def sp(n):
    return "s[%d:%d]" % (n, n + 1)


class Op:
    def __init__(self, kind, fn, cost=4):
        self.kind, self.fn, self.cost = kind, fn, cost


def S_(fn):
    return Op("s", fn)


def V_(fn, cost=4):
    return Op("v", fn, cost)


def B_(fn):
    return Op("b", fn)


def Z_(fn):
    return Op("z", fn, 0)


class Load:
    def __init__(self, tag, pre, issue):
        self.tag, self.pre, self.issue = tag, list(pre), issue
        self.npre = len(self.pre)


class Core:
    def __init__(self, stamps=False, opts=None):
        self.a = Asm()
        self.stamps = stamps
        self.nstamp = 0
        self.stamp_names = []
        self.opts = opts or {}
        self.typ = 0
        self.reset_state()

    def reset_state(self):
        self.free = [("a", n) for n in range(160, 256, 4)] + [("v", n) for n in range(248 if self.stamps else 252, 172, -4)]
        self.retire = set()
        self.bq = []
        self.breg = {}
        self.bgroup = None
        self.b_stop = None
        self.b_on = False
        self.stream = []
        self.credit = 0
        self.fcredit = 0
        self.period = 64
        self.deadline = {}
        self.urgent = set()
        self.now = 0
        self.gap = 0
        self.cold = []
        self.bg = []
        self.hurry = 10 ** 9
        self.marks = set()
        self.timed = []
        self.minlead = None
        self.unit = 0
        self.gapdt = 16
        self.glen = 16
        self.bmin = 0
        self.stage_free = []
        self.sq = []
        self.unstage = False
        self.from_lds = set()
        self.bissue = {}
        self.log = []

    def opt(self, k, d):
        return self.opts.get(k, d)

    def e(self, t):
        return self.a.e(t)

    def ev(self, t, dt=5):
        self.a.e(t)
        self.advance(dt)
        self.try_load()

    def stamp(self, name, fine=False):
        if not fine:
            self.a.raw("    ; @@" + name)
        od = self.opt("odiag", 0)
        if od and name in ODIAG:
            k = ODIAG.index(name)
            self.a.wait_all(ds=True)
            self.e("s_memrealtime %s" % sp(sStamp))
            self.e("s_waitcnt lgkmcnt(0)")
            self.e("v_mov_b32 v%d, s%d" % (vT0, sStamp))
            self.e("s_mov_b64 exec, 1")
            self.e("buffer_atomic_umax v%d, off, s[20:23], 0 offset:%d" % (vT0, 16 + 4 * k))
            if k == 0:
                self.e("v_not_b32 v%d, v%d" % (vT0, vT0))
                self.e("buffer_atomic_umax v%d, off, s[20:23], 0 offset:12" % vT0)
            self.e("s_mov_b64 exec, -1")
        if not self.stamps:
            return
        ws = self.opts.get("wst")
        if ws is not None:
            if name == ws + "_begin":
                self.a.whook = self.wstamp
            elif name == ws + "_end":
                self.a.whook = None
            elif name != "start":
                return
            self.wstamp(name)
            return
        only = self.opts.get("only")
        if only is not None:
            if name != "start" and not name.startswith(only):
                return
        elif fine:
            return
        if self.opt("clk", 0) and not (name == "start" or name.endswith("_end") or name.endswith("_a") or name.endswith("loop")):
            return
        self.a.wait_all(ds=True)
        self.e("s_memtime %s" % sp(sStamp))
        self.e("s_waitcnt lgkmcnt(0)")
        self.e("v_writelane_b32 v%d, s%d, %d" % (vStamp, sStamp, self.nstamp))
        if self.opt("clk", 0):
            self.rstamp(30 + self.nstamp)
        if self.typ == 0:
            self.stamp_names.append(name)
        self.nstamp += 1

    def wstamp(self, name):
        if self.nstamp >= 61 or (name != "start" and self.unit < self.opt("wfrom", 0)):
            return
        self.a.dsq = []
        self.e("s_memtime %s" % sp(sStamp))
        self.e("s_waitcnt lgkmcnt(0)")
        self.e("v_writelane_b32 v%d, s%d, %d" % (vStamp, sStamp, self.nstamp))
        if self.typ == self.opt("wtyp", 0) or name == "start":
            self.stamp_names.append("%02d u%d %s" % (self.nstamp, self.unit, name))
        self.nstamp += 1

    def rstamp(self, lane):
        if not self.stamps:
            return
        self.a.wait_all(ds=True)
        self.e("s_memrealtime %s" % sp(sStamp))
        self.e("s_waitcnt lgkmcnt(0)")
        self.e("v_writelane_b32 v%d, s%d, %d" % (vStamp, sStamp, lane))

    def mfma(self, d, wa, xb, first=False):
        self.e("v_mfma_f32_16x16x32_bf16 %s, %s, %s, %s" % (q(d), q(wa), q(xb), "0" if first else q(d)))

    def mfma32(self, d, wa, xb, first=False):
        dd = "v[%d:%d]" % (d, d + 15)
        self.e("v_mfma_f32_32x32x16_bf16 %s, %s, %s, %s" % (dd, q(wa), q(xb), "0" if first else dd))

    @staticmethod
    def voff(i):
        return (vL0, vL1, vL2)[i >> 2], (i & 3) * 1024

    def cur_period(self):
        if self.stream and self.stream[0].tag in self.urgent:
            return self.opt("uper", 32)
        if self.minlead is not None:
            ds = []
            if self.stream and self.stream[0].tag in self.deadline:
                ds.append(self.deadline[self.stream[0].tag])
            if self.b_ready() and self.bq[0][0] in self.deadline:
                ds.append(self.deadline[self.bq[0][0]])
            if ds and min(ds) - self.unit < self.minlead:
                return 16
        return self.period

    def advance(self, dt):
        self.now += dt
        self.credit = min(self.credit + dt, self.cur_period() + 24)
        self.fcredit = min(self.fcredit + dt, self.bmin + 40 if self.bmin else self.opt("fcap", 900))

    def b_ready(self):
        return bool(self.bq and (self.free or self.stage_free) and (self.b_stop is None or self.bq[0][0][0] == self.b_stop))

    def bcost(self):
        c = self.opt("w1cost", 110) if self.bq[0][0][0][0] == "W1" else self.opt("wcost", 72)
        return max(c, self.bmin)

    def pick_load(self):
        if self.credit < self.cur_period():
            return None
        if self.b_ready():
            db = self.deadline.get(self.bq[0][0])
            if db is not None:
                if (not self.stream) or db < self.deadline.get(self.stream[0].tag, -1):
                    return "b"
            elif self.b_on and self.fcredit >= self.bcost() and (
                    not self.stream or (self.opt("bmix", 0) and self.stream[0].tag not in self.urgent)):
                return "b"
        return "s" if self.stream else None

    def issue_head(self):
        ld = self.stream.pop(0)
        for t in ld.pre:
            self.e(t)
        ld.issue()

    def try_load(self):
        k = self.pick_load()
        if k is None:
            return False
        per = self.cur_period()
        if k == "b":
            self.bpref(1)
        else:
            self.issue_head()
        self.credit -= per
        return True

    def flush(self, upto=None, n=None):
        if n is None:
            if upto is None:
                n = len(self.stream)
            else:
                n = max([i + 1 for i, ld in enumerate(self.stream) if ld.tag in upto] or [0])
        n = min(n, len(self.stream))
        for _ in range(n):
            self.issue_head()

    def push_front(self, items):
        self.stream[1:1] = items

    def vwait(self, tags):
        self.flush(upto=tags)
        self.a.wait(vm=tags)

    def queue_b(self, name, base, n):
        self.bq += [((name, i), base, i) for i in range(n)]

    def b_pre(self):
        key, base, i = self.bq[0]
        if self.bgroup != (base, i // 12):
            return "s_add_u32 s%d, s%d, %d" % (sBcur, base, (i // 12) * 12288)
        return None

    def b_do_pre(self):
        t = self.b_pre()
        if t:
            self.e(t)
            self.bgroup = (self.bq[0][1], self.bq[0][2] // 12)

    def bpref(self, n=1):
        done = 0
        while done < n and self.b_ready():
            self.fcredit = max(self.fcredit - self.bcost(), -400)
            self.b_do_pre()
            if not self.free:
                if self.stream and len(self.stream[0].pre) < self.stream[0].npre:
                    self.issue_head()
                key, base, i = self.bq.pop(0)
                assert key[0][0] == "W2"
                slot = self.stage_free.pop(0)
                vo, imm = self.voff(i % 12)
                self.e("s_add_u32 m0, s%d, %d" % (sWk, STAGE[slot] - imm))
                if not self.opt("x_nob", 0):
                    self.a.vm(key, "buffer_load_dwordx4 v%d, %s, s%d offen offset:%d lds" % (vo, sWS, sBcur, imm))
                self.sq.append((key, slot))
                done += 1
                continue
            key, base, i = self.bq.pop(0)
            r = self.free.pop(0)
            self.breg[key] = r
            self.bissue[key] = self.now
            vo, imm = self.voff(i % 12)
            nt = " nt" if key[0][0] in str(self.opt("nt", "")).split("+") else ""
            if not self.opt("x_nob", 0):
                self.a.vm(key, "buffer_load_dwordx4 %s, v%d, %s, s%d offen offset:%d%s" % (q(r), vo, sWS, sBcur, imm, nt))
            done += 1
        return done

    def bget(self, keys):
        for key in keys:
            if key in self.from_lds:
                self.need(("un", key))
            while key not in self.breg:
                assert all(k != key for k, _ in self.sq), "staged fragment %s has no register" % (key,)
                assert self.bpref(1), "no free register for %s" % (key,)
            if key in self.bissue:
                self.log.append((key, self.now - self.bissue.pop(key)))
        self.a.wait(vm=list(keys), ds=[k for k in keys if k in self.from_lds])
        return [self.breg[k] for k in keys]

    def bfree(self, key):
        r = self.breg.pop(key)
        if self.unstage and self.sq:
            k2, slot = self.sq.pop(0)
            self.breg[k2] = r
            self.from_lds.add(k2)
            base, off = (vSg0, STAGE[slot] - STAGE[0]) if slot < 5 else (vSg1, STAGE[slot] - STAGE[5])
            self.bg += [S_(lambda: self.a.wait(vm=[k2])),
                        V_(lambda: self.a.ds(k2, "ds_read_b128 %s, v%d offset:%d" % (q(r), base, off))),
                        self.mark(("un", k2))]
            return
        if r not in self.retire:
            self.free.append(r)

    LEND = [("v", W0 + 116 + 4 * i) for i in range(3)]

    def lend(self):
        self.retire = set()
        self.free = self.LEND + self.free

    def unlend(self):
        self.retire = set(self.LEND)
        self.free = [r for r in self.free if r not in self.retire]

    def poll_issue(self, soff=sFlBase):
        self.a.vm("poll", "buffer_load_dword v%d, v%d, %s, s%d offen sc1" % (vPoll, vFl, sWS, soff))

    def poll_check(self, target, mask, soff=sFlBase, acquire=True):
        a = self.a
        again, top, acq, dn = a.newlabel("pollr"), a.newlabel("poll"), a.newlabel("acq"), a.newlabel("polld")
        a.wait(vm=["poll"])
        a.label(top)
        self.e("v_cmp_le_u32 vcc, %s, v%d" % (target, vPoll))
        self.e("s_andn2_b64 %s, %s, vcc" % (sp(sTmp2), sp(mask)))
        self.e("s_cbranch_scc1 %s" % again)
        self.cold += [again + ":",
                      "    buffer_load_dword v%d, v%d, %s, s%d offen sc1" % (vPoll, vFl, sWS, soff),
                      "    s_sub_u32 s%d, s%d, 1" % (sSpin, sSpin),
                      "    s_waitcnt vmcnt(0)",
                      "    s_cbranch_scc0 %s" % top,
                      "    s_endpgm"]
        if acquire:
            self.e("s_cmp_lg_u32 s%d, 0" % sMode)
            self.e("s_cbranch_scc1 %s" % acq)
            a.label(dn)
            self.cold += [acq + ":", "    buffer_inv sc1", "    s_waitcnt vmcnt(0)", "    s_branch %s" % dn]

    def poll(self, target, mask, soff=sFlBase, acquire=True):
        self.poll_issue(soff)
        self.poll_check(target, mask, soff, acquire)

    def publish(self, value, tags=("st",)):
        a = self.a
        slow, dn = a.newlabel("pubs"), a.newlabel("pubd")
        self.e("v_mov_b32 v%d, %d" % (vT0, value))
        self.e("s_mov_b64 exec, 1")
        self.e("s_cmp_lg_u32 s%d, 0" % sMode)
        a.wait(vm=list(tags))
        self.e("s_cbranch_scc1 %s" % slow)
        self.e("buffer_store_dword v%d, off, %s, s%d" % (vT0, sWS, sFlOwn))
        a.label(dn)
        self.cold += [slow + ":", "    buffer_wbl2 sc1", "    s_waitcnt vmcnt(0)",
                      "    buffer_store_dword v%d, off, %s, s%d sc1" % (vT0, sWS, sFlOwn), "    s_branch %s" % dn]
        a.vmq.append("flag")
        self.e("s_mov_b64 exec, -1")

    def mark(self, name):
        self.marks.discard(name)
        return Z_(lambda: self.marks.add(name))

    def run_op(self, x, paced=False):
        if isinstance(x, int):
            return
        if isinstance(x, Op):
            x.fn()
            if paced:
                self.advance(max(x.cost, 4))
                self.try_load()
        elif paced:
            self.ev(x)
        elif not self.opt("x_nobg", 0):
            self.e(x)

    def later(self, gaps, fn):
        self.timed.append([gaps, fn])

    def run_timed(self):
        while self.timed:
            self.timed.pop(0)[1]()

    def need(self, name):
        while name not in self.marks:
            self.run_op(self.bg.pop(0))

    def drain_bg(self, timed=True):
        self.gap = 0
        while self.bg:
            self.run_op(self.bg.pop(0), paced=True)
        while self.timed and timed:
            self.timed.pop(0)[1]()

    def fits(self, x, limit):
        t = self.a.t
        if isinstance(x, Op):
            if x.kind == "z":
                return True
            if x.kind == "b":
                return t <= limit - 12
            if x.kind == "s":
                return t + 4 <= limit
            return max(t, 8) + min(x.cost, 8) <= limit
        return Asm.after(t, Ins(x)) <= limit

    @staticmethod
    def is_scalar(x):
        if isinstance(x, Op):
            return x.kind in ("s", "z")
        return isinstance(x, str) and x.startswith("s_")

    def fill_gap(self, must_s=None, must_v=None):
        a = self.a
        self.advance(self.gapdt)
        limit = (self.opt("lim32", 32) if self.glen == 32 else 16) + (4 if len(self.bg) > self.hurry else 0) + (4 if len(self.bg) > 2 * self.hurry else 0)
        blocked = self.gap > 0
        if blocked:
            self.gap -= 1
        for x in self.timed:
            x[0] -= 1
        if self.timed and self.timed[0][0] <= 0:
            self.timed.pop(0)[1]()
        if must_s:
            must_s()
        while a.t <= 4:
            if self.stream and self.stream[0].pre:
                self.e(self.stream[0].pre.pop(0))
            elif self.bq and self.b_pre() and (self.b_on or self.deadline):
                self.b_do_pre()
            elif self.bg and not blocked and not isinstance(self.bg[0], int) and \
                    (self.is_scalar(self.bg[0]) or (isinstance(self.bg[0], Op) and self.bg[0].kind == "b")):
                self.run_op(self.bg.pop(0))
            else:
                break
        if must_v:
            must_v()
        k = self.pick_load()
        if k and max(a.t, 8) + 8 <= limit:
            npre = len(self.stream[0].pre) if k == "s" else (1 if self.b_pre() else 0)
            if npre == 0 or self.credit >= self.cur_period() + 16 or (self.glen > 16 and max(a.t, 8) + 8 + 4 * npre <= limit):
                self.try_load()
        while self.bg and not blocked:
            x = self.bg[0]
            if isinstance(x, int):
                self.bg.pop(0)
                self.gap = (x * 16 + self.glen - 1) // self.glen
                if x == 0 and self.glen > 16:
                    continue
                break
            if not self.fits(x, limit):
                break
            self.run_op(self.bg.pop(0))

    def unit_loop(self, n, read, compute, look, pre_read=None, pre_unit=None, wait_every=1, name="", every=4):
        a = self.a
        pre_read = pre_read or {}
        pre_unit = pre_unit or {}

        def rd(u):
            if u in pre_read:
                pre_read[u]()
            a.ds(("U", u), read(u))

        def wt(u):
            if u < n and u % wait_every == 0:
                a.wait(ds=[("U", min(u + wait_every - 1, n - 1))])

        for u in range(min(look, n)):
            rd(u)
        for u in range(n):
            self.unit = u
            if u % every == 0:
                self.stamp("%s_u%d" % (name, u), fine=True)
            if u in pre_unit:
                pre_unit[u]()
            ms = compute(u)
            wt(u)
            for j, m in enumerate(ms):
                m()
                self.fill_gap(must_s=(lambda: wt(u + 1)) if j == len(ms) - 1 else None,
                              must_v=(lambda: rd(u + look)) if (j == 0 and u + look < n) else None)
```

```python
import math
from core import *


class Gen(Core):
    def dma(self, tag, srd, soff, vo=vL0, imm=0):
        def f():
            if not self.opt("x_nodma", 0):
                self.a.vm(tag, "buffer_load_dwordx4 v%d, %s, %s offen offset:%d%s lds" % (vo, srd, soff, imm, self.opt("dmaf", " sc1").replace("_", " ")))
        return f

    def items_p1(self, sb, half, tag, shift=0):
        out = []
        for j in range(5):
            for z in range(2):
                off = half * 40960 + j * 4096 + z * 1024
                pre = ["s_add_u32 m0, s%d, %d" % (sX1, L_A + off + shift)]
                if shift:
                    pre.append("s_add_u32 s%d, s%d, %d" % (sD0, sX1, L_A + off))
                out.append(Load((tag, half, j), pre, self.dma((tag, half, j), (sXA, sXB)[sb], "s%d" % sD0 if shift else "m0")))
        return out

    def items_p3(self, sb, i, tag):
        return [Load((tag, i, j), ["s_add_u32 m0, s%d, %d" % (SP3[i], L_A + j * 4096)],
                     self.dma((tag, i, j), (sXA, sXB)[sb], "m0")) for j in range(5)]

    def items_stats(self, sb, raw=None):
        return [Load(("S", sb), ["s_add_u32 s%d, s%d, %d" % (sD0, sSta, sb * 65536)],
                     lambda: self.a.vm(("S", sb), "buffer_load_dwordx4 %s, v%d, %s, s%d offen sc1" % (q(raw or self.RAW), vL0, sWS, sD0)))]

    def pk_order(self, is4):
        NK = 12 if is4 else 5
        head = NK - self.opt("p4tail", 4) if is4 else self.opt("p2head", 2)
        order = [(i, k) for k in range(head) for i in (1, 2, 3, 0)]
        if head >= 2:
            order.remove((0, 0))
            order.insert(order.index((0, 1)), (0, 0))
        order += [(i, k) for i in (1, 2, 3, 0) for k in range(head, NK)]
        return order

    def item_pk(self, is4, n):
        i, k = self.pk_order(is4)[n]
        vo, imm = self.voff(k)
        return Load(("Ak", n), ["s_add_u32 m0, s%d, %d" % (sX3, L_A + (n % 20) * 1024 - imm)],
                    self.dma(("Ak", n), sWS, "s%d" % ((sR4 if is4 else sR2) + i), vo, imm))

    def item_touch(self, nlines, mstride, first=0):
        pre = ["v_lshrrev_b32 v%d, 2, v%d" % (vT2, vFl),
               "v_and_b32 v%d, 31, v%d" % (vT1, vT2),
               "v_min_u32 v%d, %d, v%d" % (vT1, nlines - 1, vT1),
               "v_lshlrev_b32 v%d, 7, v%d" % (vT1, vT1),
               "v_lshrrev_b32 v%d, 5, v%d" % (vT2, vT2),
               "s_mov_b32 s%d, %d" % (sD0, SBH),
               "v_mad_u32_u24 v%d, v%d, s%d, v%d" % (vT1, vT2, sD0, vT1),
               "s_mul_i32 s%d, s%d, %d" % (sD0, sM, mstride - 1280),
               "s_add_u32 s%d, s%d, s%d" % (sD0, sD0, sOd)]
        return Load("touch", pre, lambda: self.a.vm("touch", "buffer_load_dword v0, v%d, %s, s%d offen offset:%d" % (vT1, sWS, sD0, first * 128)))

    def item_code(self):
        pre = ["s_lshl_b32 s%d, s%d, 2" % (sD0, sCG),
               "s_add_u32 s%d, s%d, s%d" % (sD0, sD0, sW),
               "s_lshl_b32 s%d, s%d, 11" % (sD0, sD0),
               "v_lshlrev_b32 v%d, 5, v%d" % (vT1, vFl),
               "v_and_b32 v%d, 0x780, v%d" % (vT1, vT1)]
        return Load("touch", pre, lambda: self.a.vm("touch", "buffer_load_dword v0, v%d, %s, s%d offen" % (vT1, sCode, sD0)))

    def stats_ops(self, raw, dst):
        r = raw
        return [
            "v_add_f32 v%d, v%d, v%d" % (r, r, r + 2),
            "v_add_f32 v%d, v%d, v%d" % (r + 1, r + 1, r + 3), 0,
            "v_permlane16_swap_b32 v%d, v%d" % (r, r + 1),
            "v_add_f32 v%d, v%d, v%d" % (r, r, r + 1),
            "v_mov_b32 v%d, v%d" % (r + 1, r), 0,
            "v_permlane32_swap_b32 v%d, v%d" % (r, r + 1),
            "v_add_f32 v%d, v%d, v%d" % (r, r, r + 1),
            "v_mov_b32 v%d, v%d" % (r + 1, r), 0,
            "v_permlane16_swap_b32 v%d, v%d" % (r, r + 1),
            "v_mul_f32 v%d, s%d, v%d" % (dst, sInv640, r),
            "v_mul_f32 v%d, s%d, v%d" % (r + 1, sInv640, r + 1),
            "v_fma_f32 v%d, -v%d, v%d, v%d" % (r + 1, dst, dst, r + 1),
            "v_max_f32 v%d, 0, v%d" % (r + 1, r + 1),
            "v_add_f32 v%d, s%d, v%d" % (r + 1, sEps, r + 1),
            "v_rsq_f32 v%d, v%d" % (dst + 1, r + 1),
        ]

    def stats_share(self, sb, raw=None):
        r = raw or self.RAW
        return ([S_(lambda: self.vwait([("S", sb)]))] + self.stats_ops(r, r + 2) + ["v_add_u32 v%d, s%d, v%d" % (r, sW128, vSl)] +
                [V_(lambda: self.a.ds("sw", "ds_write_b64 v%d, %s offset:%d" % (r, p2(r + 2), sb * 512)), 16)])

    def DS(self, tag, txt, cost=4):
        return V_(lambda: self.a.ds(tag, txt), cost)

    def WD(self, tags):
        return S_(lambda: self.a.wait(ds=tags))

    def prologue(self):
        a, e, ev = self.a, self.e, self.ev
        e("s_cmp_ge_u32 s2, 256")
        e("s_cbranch_scc0 main_go")
        e("s_endpgm")
        a.label("main_go")
        e("s_load_dwordx2 s[4:5], s[0:1], 0x50")
        e("s_load_dwordx2 s[8:9], s[0:1], 0x40")
        if self.opt("odiag", 0):
            e("s_load_dwordx2 s[20:21], s[0:1], 0x48")
        lane, tok, g, t0, t1 = W0 + 112, W0 + 113, W0 + 114, W0 + 115, W0 + 116
        tid = W0 + 118
        vq1 = W0 + 117
        e("v_lshrrev_b32 v%d, 6, v0" % vT0)
        e("v_and_b32 v%d, 63, v0" % lane)
        e("v_readfirstlane_b32 s%d, v%d" % (sW, vT0))
        e("v_lshlrev_b32 v%d, 4, v%d" % (vL0, lane))
        e("s_mov_b32 s6, %d" % WS_USED)
        e("s_mov_b32 s7, 0x20000")
        e("s_mov_b32 s10, %d" % (S * D * 2))
        e("s_mov_b32 s11, 0x20000")
        e("s_mov_b32 s14, %d" % (L_A + 80 * KB))
        e("s_mov_b32 s15, 0x20000")
        e("s_mov_b32 s18, %d" % (L_A + 80 * KB))
        e("s_mov_b32 s19, 0x20000")
        e("s_and_b32 s%d, s2, 7" % sC)
        e("s_lshl_b32 s%d, s%d, 1" % (sC, sC))
        e("s_lshr_b32 s%d, s2, 7" % sA0)
        e("s_add_u32 s%d, s%d, s%d" % (sC, sC, sA0))
        e("s_bfe_u32 s%d, s2, 0x40003" % sM)
        e("s_lshl_b32 s%d, s%d, 2" % (sRtA, sC))
        e("s_mul_i32 s%d, s%d, %d" % (sD0, sC, 80 * KB))
        e("s_add_u32 s%d, s%d, %d" % (sD0, sD0, X0 - L_A))
        e("s_lshl_b32 s%d, s%d, 10" % (sWk, sW))
        e("s_and_b32 s%d, s%d, 1" % (sA0, sW))
        e("s_mul_i32 s%d, s%d, 20480" % (sX1, sA0))
        e("s_and_b32 s%d, s%d, 2048" % (sA0, sWk))
        e("s_add_u32 s%d, s%d, s%d" % (sX1, sX1, sA0))
        e("s_lshl_b32 s%d, s%d, 2" % (sA3, sM))
        e("s_add_u32 s%d, s%d, s%d" % (sA3, sA3, sW))
        e("s_mul_i32 s%d, s%d, %d" % (sWQ, sA3, 40 * KB))
        e("s_cmp_eq_u32 s%d, 3" % sW)
        e("s_cselect_b32 s%d, 128, 0" % sA1)
        e("v_lshrrev_b32 v%d, 1, v%d" % (vq1, vL0))
        e("v_and_b32 v%d, v%d, v%d" % (vq1, vq1, vL0))
        e("v_and_b32 v%d, s%d, v%d" % (vq1, sA1, vq1))
        e("v_sub_u32 v%d, v%d, v%d" % (vq1, vL0, vq1))
        e("v_add_u32 v%d, 4096, v%d" % (vL1, vL0))
        e("v_add_u32 v%d, 4096, v%d" % (vL2, vL1))
        e("s_add_u32 s%d, s%d, s%d" % (sOd, sW, sRtA))
        e("s_mul_i32 s%d, s%d, %d" % (sOd, sOd, 48 * KB))
        e("s_mul_i32 s%d, s%d, 1280" % (sA0, sM))
        e("s_add_u32 s%d, s%d, s%d" % (sOd, sOd, sA0))
        e("s_add_u32 s%d, s%d, %d" % (sOd, sOd, OB))
        e("v_lshlrev_b32 v%d, 2, v%d" % (vFl, lane))
        e("v_mov_b32 v%d, v0" % tid)
        e("s_waitcnt lgkmcnt(0)")
        e("s_add_u32 s12, s4, s%d" % sD0)
        e("s_addc_u32 s13, s5, 0")
        e("s_add_u32 s16, s12, %d" % (64 * 20 * KB))
        e("s_addc_u32 s17, s13, 0")
        if self.opt("odiag", 0):
            e("s_mov_b32 s22, 256")
            e("s_mov_b32 s23, 0x20000")
        self.rstamp(62)
        self.stamp("start")
        assert WQ == 0
        h0, h1 = self.items_p1(0, 0, "A0"), self.items_p1(0, 1, "A0")

        def wq(ks, t):
            pre = ["s_add_u32 s%d, s%d, 4096" % (sWQ, sWQ)] if (t == 0 and ks % 2 == 0 and ks > 0) else []
            nt = " nt" if "WQ" in str(self.opt("nt", "")).split("+") else ""
            return Load(("WQ", ks), pre, lambda: a.vm(("WQ", ks), "buffer_load_dwordx4 %s, v%d, %s, s%d offen offset:%d%s" % (
                q(("a", (ks * 2 + t) * 4)), vq1, sWS, sWQ, (ks % 2) * 2048 + t * 1024, nt)))

        def chunk(j):
            return ([wq(4 * j, 0), wq(4 * j, 1)] + h0[2 * j:2 * j + 2] + h1[2 * j:2 * j + 2] +
                    [wq(ks, t) for ks in range(4 * j + 1, 4 * j + 4) for t in range(2)])

        te = self.opt("tearly", 0)
        self.stream = chunk(0)
        if te == 1:
            self.stream = [self.item_touch(24, 3072)] + self.stream
        if te == 2:
            self.stream.append(self.item_touch(24, 3072))
        self.flush()
        self.stream = chunk(1)
        self.period = self.opt("pper", 60)
        ev("s_and_b32 s%d, s%d, 7" % (sCG, sM))
        ev("s_lshl_b32 s%d, s%d, 7" % (sW128, sW))
        ev("s_mul_i32 s%d, s%d, 20480" % (sX3, sW))
        ev("s_mul_i32 s%d, s%d, %d" % (sW1b, sA3, 30 * KB))
        ev("s_add_u32 s%d, s%d, %d" % (sW1b, sW1b, W1))
        ev("s_lshl_b32 s%d, s%d, 2" % (sFlOwn, sA3))
        ev("s_lshr_b32 s%d, s%d, 3" % (sRtT, sM))
        ev("s_lshl_b32 s%d, s%d, 6" % (sRtT, sRtT))
        ev("s_add_u32 s%d, s%d, s%d" % (sRtT, sRtT, sRtA))
        ev("s_lshl_b32 s%d, s%d, 10" % (sSta, sRtA))
        ev("s_add_u32 s%d, s%d, s%d" % (sSta, sSta, sWk))
        ev("s_add_u32 s%d, s%d, %d" % (sSta, sSta, ST0))
        ev("s_getreg_b32 s%d, hwreg(HW_REG_XCC_ID)" % sXcc)
        ev("s_and_b32 s%d, s%d, 15" % (sXcc, sXcc))
        ev("s_add_u32 s%d, s%d, 1" % (sXcc, sXcc))
        ev("s_lshl_b32 s%d, s%d, 7" % (sA2, sC))
        ev("s_add_u32 s%d, s%d, %d" % (sXT, sA2, XT))
        ev("s_lshl_b32 s%d, s%d, 2" % (sA2, sM))
        ev("s_add_u32 s%d, s%d, s%d" % (sA2, sA2, sXT))
        ev("v_mov_b32 v%d, s%d" % (vT0, sXcc))
        e("s_cmp_lg_u32 s%d, 0" % sW)
        e("s_cbranch_scc1 main_noxt")
        e("s_mov_b64 exec, 1")
        e("buffer_store_dword v%d, off, %s, s%d sc1" % (vT0, sWS, sA2))
        e("s_mov_b64 exec, -1")
        a.label("main_noxt")
        ev("v_and_b32 v%d, 15, v%d" % (tok, lane))
        ev("v_lshrrev_b32 v%d, 4, v%d" % (g, lane))
        ev("v_lshrrev_b32 v%d, 5, v%d" % (t0, lane))
        ev("v_lshlrev_b32 v%d, 8, v%d" % (t0, t0))
        ev("v_lshl_add_u32 v%d, v%d, 4, v%d" % (t0, tok, t0))
        ev("v_and_b32 v%d, 1, v%d" % (t1, g))
        ev("s_mov_b32 s%d, 20480" % sA0)
        ev("v_mad_u32_u24 v%d, v%d, s%d, v%d" % (vX32, t1, sA0, t0))
        ev("v_add_u32 v%d, %d, v%d" % (vX32, L_A, vX32))
        c0 = 176
        ev("s_lshl_b32 s%d, s%d, 11" % (sA0, sM))
        ev("s_add_u32 s%d, s%d, %d" % (sA0, sA0, CG))
        ev("s_lshl_b32 s%d, s%d, 9" % (sA1, sCG))
        ev("s_add_u32 s%d, s%d, %d" % (sA1, sA1, CB2 - 96 * 16))
        c0x = c0
        c0 = c0 + 4
        ev("v_lshlrev_b32 v%d, 4, v%d" % (c0 + 16, tid))
        ev("v_add_u32 v%d, s%d, v%d" % (c0 + 17, sA0, c0 + 16))
        ev("v_add_u32 v%d, s%d, v%d" % (c0 + 18, sA1, c0 + 16))
        ev("v_mov_b32 v%d, 0x7ffffff0" % (c0 + 19))
        ev("v_cmp_gt_u32 vcc, 54, v%d" % tid)
        ev("v_cndmask_b32 v%d, v%d, v%d, vcc" % (c0 + 20, c0 + 19, c0 + 17))
        ev("v_cmp_gt_u32 vcc, 78, v%d" % tid)
        ev("v_cndmask_b32 v%d, v%d, v%d, vcc" % (c0 + 17, c0 + 19, c0 + 17))
        ev("v_subrev_u32 v%d, 96, v%d" % (c0 + 21, tid))
        ev("v_cmp_gt_u32 vcc, 20, v%d" % (c0 + 21))
        ev("v_cndmask_b32 v%d, v%d, v%d, vcc" % (c0 + 17, c0 + 17, c0 + 18))
        ct = [Load("ct", [], lambda: a.vm("ct", "buffer_load_dwordx4 %s, v%d, %s, 0 offen" % (q(c0x), c0 + 17, sWS)))]
        for k in range(1, 5):
            ct.append(Load("ct", ["s_mov_b32 s%d, %d" % (sD0, k * 32768)], lambda k=k: a.vm(
                "ct", "buffer_load_dwordx4 %s, v%d, %s, s%d offen" % (q(c0x + 4 * k), c0 + 20, sWS, sD0))))
        self.ct_regs = c0x
        ev("s_mov_b32 s%d, 0x3f803f80" % sOnes)
        ev("s_mov_b32 s%d, 0x%x" % (sScale, fbits(20 ** -0.5 * math.log2(math.e))))
        ev("s_mov_b32 s%d, 0x%x" % (sInv640, fbits(1.0 / 640)))
        ev("s_mov_b32 s%d, 0x%x" % (sEps, fbits(1e-5)))
        ev("s_mov_b32 s%d, 0x%x" % (sNeg, fbits(-1e30)))
        ev("s_mov_b32 s%d, %d" % (sSpin, 400000))
        ev("s_mov_b32 s%d, 0" % sMode)
        ev("s_lshl_b64 %s, 1, s%d" % (sp(sMaskW), sW))
        ev("s_mov_b64 %s, 0xffff" % sp(sMaskX))
        ev("s_lshl_b32 s%d, s%d, 4" % (sA0, sW))
        ev("s_lshl_b64 %s, %s, s%d" % (sp(sMask16), sp(sMaskX), sA0))
        ev("s_mov_b32 s%d, -1" % sMaskA)
        ev("s_mov_b32 s%d, 0" % (sMaskA + 1))
        ev("s_mov_b32 s%d, 0" % sMaskB)
        ev("s_mov_b32 s%d, -1" % (sMaskB + 1))
        ev("s_lshl_b32 s%d, s%d, 8" % (sFlBase, sC))
        ev("s_add_u32 s%d, s%d, %d" % (sFlBase, sFlBase, FLAG))
        ev("s_add_u32 s%d, s%d, s%d" % (sFlOwn, sFlOwn, sFlBase))
        ev("s_lshl_b32 s%d, s%d, 2" % (sA0, sCG))
        ev("s_add_u32 s%d, s%d, s%d" % (sA0, sA0, sW))
        ev("s_mul_i32 s%d, s%d, %d" % (sWOb, sA0, 25 * KB))
        ev("s_add_u32 s%d, s%d, %d" % (sWOb, sWOb, WO))
        ev("s_mul_i32 s%d, s%d, %d" % (sW2b, sA0, 60 * KB))
        ev("s_add_u32 s%d, s%d, %d" % (sW2b, sW2b, W2))
        ev("s_and_b32 s%d, s%d, 1" % (sA1, sW))
        ev("s_lshl_b32 s%d, s%d, 8" % (sK256, sA1))
        ev("s_lshl_b32 s%d, s%d, 1" % (sA1, sA1))
        for i in range(4):
            ev("s_add_u32 s%d, s%d, %d" % (sA0, sA1, i))
            ev("s_and_b32 s%d, s%d, 3" % (sA0, sA0))
            ev("s_mul_i32 s%d, s%d, 20480" % (sA0, sA0))
            ev("s_add_u32 s%d, s%d, s%d" % (SP3[i], sA0, sWk))
        ev("s_add_u32 s%d, s%d, s%d" % (sHd, sA1, sRtA))
        ev("s_mul_i32 s%d, s%d, %d" % (sHd, sHd, 48 * KB))
        ev("s_mul_i32 s%d, s%d, 3072" % (sA0, sM))
        ev("s_add_u32 s%d, s%d, s%d" % (sHd, sHd, sA0))
        ev("s_add_u32 s%d, s%d, %d" % (sHd, sHd, HB))
        ev("s_mul_i32 s%d, s%d, 5" % (sA1, sWk))
        ev("s_mul_i32 s%d, s%d, 12" % (sA2, sWk))
        for i in range(4):
            ev("s_add_u32 s%d, s%d, %d" % (sA0, sW, i))
            ev("s_and_b32 s%d, s%d, 3" % (sA0, sA0))
            ev("s_add_u32 s%d, s%d, s%d" % (sA0, sA0, sRtT))
            ev("s_mul_i32 s%d, s%d, %d" % (sA0, sA0, 48 * KB))
            ev("s_add_u32 s%d, s%d, %d" % (sA0, sA0, HB))
            ev("s_add_u32 s%d, s%d, s%d" % (sR2 + i, sA0, sA1))
            ev("s_add_u32 s%d, s%d, s%d" % (sR4 + i, sA0, sA2))
        ev("s_lshr_b32 s%d, s%d, 1" % (sA0, sCG))
        ev("s_mul_i32 s%d, s%d, 5" % (sA0, sA0))
        ev("s_and_b32 s%d, s%d, 1" % (sA1, sCG))
        ev("s_add_u32 s%d, s%d, s%d" % (sA2, sRtT, sW))
        ev("s_lshl_b32 s%d, s%d, 10" % (sStd, sA2))
        ev("s_add_u32 s%d, s%d, %d" % (sStd, sStd, ST0))
        ev("s_mul_i32 s%d, s%d, 20" % (sA2, sA2))
        ev("s_add_u32 s%d, s%d, s%d" % (sA2, sA2, sA0))
        ev("s_lshl_b32 s%d, s%d, 10" % (sA2, sA2))
        ev("s_add_u32 s%d, s%d, %d" % (sXdh, sA2, X0 + 2048))
        ev("s_mul_i32 s%d, s%d, 3072" % (sA0, sA1))
        ev("s_add_u32 s%d, s%d, s%d" % (sXd0, sA2, sA0))
        ev("s_add_u32 s%d, s%d, %d" % (sXd0, sXd0, X0))
        ev("s_lshl_b32 s%d, s%d, 3" % (sA1, sA1))
        ev("v_add_u32 v%d, s%d, v%d" % (vHalf, sA1, vL0))
        ev("s_lshr_b32 s%d, s%d, 1" % (sA0, sCG))
        ev("s_lshl_b32 s%d, s%d, 8" % (sA0, sA0))
        ev("s_add_u32 s%d, s%d, s%d" % (sA0, sA0, sA1))
        ev("v_and_b32 v%d, 1, v%d" % (t0, g))
        ev("v_lshlrev_b32 v%d, 2, v%d" % (t0, t0))
        ev("v_lshl_add_u32 v%d, v%d, 4, v%d" % (vSt, tok, t0))
        ev("v_add_u32 v%d, s%d, v%d" % (vSt, sA0, vSt))
        ev("s_mov_b32 s%d, %d" % (sA0, L_ST))
        ev("v_lshl_add_u32 v%d, v%d, 3, s%d" % (vSl, tok, sA0))
        ev("v_lshlrev_b32 v%d, 4, v%d" % (vG, g))
        ev("v_add_u32 v%d, s%d, v%d" % (vAk, sX3, vL1))
        ev("s_and_b32 s%d, s%d, 1" % (sA0, sW))
        ev("s_lshr_b32 s%d, s%d, 1" % (sA1, sW))
        ev("s_mul_i32 s%d, s%d, %d" % (sA2, sA0, 40960 + 1024))
        ev("v_add_u32 v%d, s%d, v%d" % (vP3a, sA2, vL1))
        ev("s_mul_i32 s%d, s%d, %d" % (sA2, sA0, -40960 + 1024))
        ev("s_add_u32 s%d, s%d, 40960" % (sA2, sA2))
        ev("v_add_u32 v%d, s%d, v%d" % (vP3b, sA2, vL1))
        ev("s_lshl_b32 s%d, s%d, 3" % (sA2, sA1))
        ev("v_add_u32 v%d, s%d, v%d" % (vHh, sA2, vL0))
        ev("s_lshl_b32 s%d, s%d, 11" % (sA2, sA1))
        ev("v_add_u32 v%d, s%d, v%d" % (vHf, sA2, vL0))
        ev("s_mul_i32 s%d, s%d, 6144" % (sA2, sW))
        ev("s_add_u32 s%d, s%d, %d" % (sA2, sA2, L_E3))
        ev("v_add_u32 v%d, s%d, v%d" % (vE3w, sA2, vL0))
        ev("s_xor_b32 s%d, s%d, 1" % (sA2, sW))
        ev("s_mul_i32 s%d, s%d, 6144" % (sA2, sA2))
        ev("s_add_u32 s%d, s%d, %d" % (sA2, sA2, L_E3))
        ev("v_add_u32 v%d, s%d, v%d" % (vE3r, sA2, vL0))
        for i, vr in ((1, vRw1), (2, vRw2), (3, vRw3)):
            ev("s_add_u32 s%d, s%d, %d" % (sA2, sW, i))
            ev("s_and_b32 s%d, s%d, 3" % (sA2, sA2))
            ev("s_mul_i32 s%d, s%d, 15360" % (sA2, sA2))
            ev("s_add_u32 s%d, s%d, %d" % (sA2, sA2, L_RED + (i - 1) * 5120))
            ev("v_add_u32 v%d, s%d, v%d" % (vr, sA2, vL0))
        ev("s_mul_i32 s%d, s%d, 15360" % (sA2, sW))
        ev("s_add_u32 s%d, s%d, %d" % (sA2, sA2, L_RED))
        ev("v_add_u32 v%d, s%d, v%d" % (vRr, sA2, vL0))
        ev("v_and_b32 v%d, 31, v%d" % (t0, lane))
        ev("v_mul_u32_u24 v%d, %d, v%d" % (t0, EXS, t0))
        ev("v_lshrrev_b32 v%d, 5, v%d" % (t1, lane))
        ev("v_lshl_add_u32 v%d, v%d, 3, v%d" % (vXw0, t1, t0))
        ev("s_lshl_b32 s%d, s%d, 6" % (sA2, sW))
        ev("s_add_u32 s%d, s%d, %d" % (sA0, sA2, L_EX))
        ev("v_add_u32 v%d, s%d, v%d" % (vXw0, sA0, vXw0))
        ev("v_mul_u32_u24 v%d, %d, v%d" % (t0, EXS, tok))
        ev("s_add_u32 s%d, s%d, 2" % (sFlip, sW))
        ev("s_and_b32 s%d, s%d, 3" % (sFlip, sFlip))
        ev("s_sub_u32 s%d, s%d, s%d" % (sFlip, sFlip, sW))
        ev("s_sub_u32 s%d, s%d, 4" % (sFlip, sFlip))
        ev("s_mul_i32 s%d, s%d, %d" % (sFlip, sFlip, EXT))
        ev("v_mul_u32_u24 v%d, %d, v%d" % (vKv, EXS, g))
        ev("v_lshl_add_u32 v%d, v%d, 4, v%d" % (vKv, tok, vKv))
        ev("s_mul_i32 s%d, s%d, %d" % (sA0, sW, 4 * EXS))
        ev("s_add_u32 s%d, s%d, %d" % (sA0, sA0, L_EX))
        ev("v_add_u32 v%d, s%d, v%d" % (vKv, sA0, vKv))
        ev("s_lshl_b32 s%d, s%d, 4" % (sA0, sC))
        ev("s_add_u32 s%d, s%d, s%d" % (sA0, sA0, sM))
        ev("s_sub_u32 s%d, s%d, 16" % (sA1, sA0))
        ev("s_max_i32 s%d, s%d, s%d" % (sA1, sA1, sM))
        ev("s_lshl_b32 s%d, s%d, 12" % (sKvo, sA0))
        ev("s_add_u32 s%d, s%d, s%d" % (sKvo, sKvo, sWk))
        ev("s_add_u32 s%d, s%d, %d" % (sKvo, sKvo, KVH))
        ev("s_lshl_b32 s%d, s%d, 12" % (sKvi, sA1))
        ev("s_add_u32 s%d, s%d, s%d" % (sKvi, sKvi, sWk))
        ev("s_add_u32 s%d, s%d, %d" % (sKvi, sKvi, KVH))
        ev("s_lshl_b32 s%d, s%d, 7" % (sKfi, sA1))
        ev("s_add_u32 s%d, s%d, %d" % (sKfi, sKfi, KVF))
        ev("s_lshl_b32 s%d, s%d, 7" % (sKfo, sA0))
        ev("s_lshl_b32 s%d, s%d, 2" % (sA1, sW))
        ev("s_add_u32 s%d, s%d, s%d" % (sKfo, sKfo, sA1))
        ev("s_add_u32 s%d, s%d, %d" % (sKfo, sKfo, KVF))
        ev("s_mul_i32 s%d, s%d, %d" % (sA0, sW, EXT))
        ev("s_add_u32 s%d, s%d, %d" % (sA0, sA0, L_EX + 4 * EXT))
        ev("v_lshl_add_u32 v%d, v%d, 3, v%d" % (vXp, g, t0))
        ev("v_add_u32 v%d, s%d, v%d" % (vXp, sA0, vXp))
        ev("v_add_u32 v%d, %d, v%d" % (vXc, EXT, vXp))
        ev("v_lshrrev_b32 v%d, 2, v%d" % (t0, lane))
        ev("v_mul_u32_u24 v%d, %d, v%d" % (t0, EXS, t0))
        ev("v_and_b32 v%d, 3, v%d" % (t1, lane))
        ev("v_lshl_add_u32 v%d, v%d, 3, v%d" % (vXv, t1, t0))
        ev("s_add_u32 s%d, s%d, 160" % (sA0, sA0))
        ev("v_add_u32 v%d, s%d, v%d" % (vXv, sA0, vXv))
        ev("v_and_b32 v%d, 1, v%d" % (t0, tok))
        ev("v_cmp_eq_u32 %s, 1, v%d" % (sp(sOdd), t0))
        ev("v_lshl_add_u32 v%d, v%d, 2, v%d" % (t0, g, t0))
        ev("v_cmp_gt_u32 %s, v%d, v%d" % (sp(sPA), t0, tok))
        ev("v_add_u32 v%d, 2, v%d" % (t0, t0))
        ev("v_cmp_gt_u32 %s, v%d, v%d" % (sp(sPB), t0, tok))
        ev("v_cmp_eq_u32 %s, 0, v%d" % (sp(sG0), g))
        ev("v_mov_b32 v%d, 0xffff" % t0)
        ev("v_mov_b32 v%d, 0xffff0000" % t1)
        ev("v_cndmask_b32 v%d, v%d, v%d, %s" % (t0, t0, t1, sp(sOdd)))
        ev("v_cndmask_b32 v%d, 0, v%d, %s" % (vM0, t0, sp(sPA)))
        ev("v_cndmask_b32 v%d, v%d, 0, %s" % (vM2, t0, sp(sPA)))
        ev("v_cndmask_b32 v%d, 0, v%d, %s" % (vM1, t0, sp(sPB)))
        ev("v_cndmask_b32 v%d, v%d, 0, %s" % (vM3, t0, sp(sPB)))
        e("s_xor_b32 s%d, s%d, 2" % (sA0, sW))
        e("s_or_b32 s%d, s%d, s%d" % (sA0, sA0, sC))
        e("s_cmp_eq_u32 s%d, 0" % sA0)
        e("s_cselect_b64 %s, %s, 0" % (sp(sPAx), sp(sPA)))
        ev("s_cselect_b64 %s, %s, 0" % (sp(sPBx), sp(sPB)))
        res = [Load("res", [], lambda: a.vm("res", "buffer_load_dwordx4 %s, v%d, %s, s%d offen" % (q(vRes), vL0, sWS, sXd0))),
               Load("res", [], lambda: a.vm("res", "buffer_load_dwordx4 %s, v%d, %s, s%d offen offset:1024" % (q(vRes + 4), vL0, sWS, sXd0))),
               Load("res", [], lambda: a.vm("res", "buffer_load_dwordx2 %s, v%d, %s, s%d offen" % (p2(vRes + 8), vHalf, sWS, sXdh)))]
        flagtouch = Load("touch", [], lambda: a.vm("touch", "buffer_load_dword v0, v%d, %s, s%d offen sc1" % (vFl, sWS, sFlBase)))
        self.stream += (chunk(2) + ct + self.items_stats(0) + self.items_stats(1, self.RAW + 4) + chunk(3) + chunk(4) +
                        ([] if te else [self.item_touch(10, 1280)]) + [flagtouch] + res)
        self.period = self.opt("fper", 40)

    def ct_write(self):
        c0 = self.ct_regs
        ops = [S_(lambda: self.vwait(["ct"]))]
        ops += ["v_add_f32 v%d, v%d, v%d" % (c0 + r, c0 + r, c0 + 4 + r) for r in range(4)]
        ops += ["v_add_f32 v%d, v%d, v%d" % (c0 + 8 + r, c0 + 8 + r, c0 + 12 + r) for r in range(4)]
        ops += ["v_add_f32 v%d, v%d, v%d" % (c0 + r, c0 + r, c0 + 16 + r) for r in range(4)]
        ops += ["v_add_f32 v%d, v%d, v%d" % (c0 + r, c0 + r, c0 + 8 + r) for r in range(4)]
        assert L_CT == 0
        ops.append("v_min_u32 v%d, 2032, v%d" % (c0 + 20, c0 + 20))
        ops.append(self.DS("ctw", "ds_write_b128 v%d, %s" % (c0 + 20, q(c0)), 24))
        return ops

    def mode_check(self):
        e = self.e
        self.poll_check(1, sMaskX, soff=sXT, acquire=False)
        e("v_cmp_ne_u32 vcc, s%d, v%d" % (sXcc, vPoll))
        e("s_and_b64 %s, %s, vcc" % (sp(sTmp2), sp(sMaskX)))
        e("s_cselect_b32 s%d, 1, 0" % sMode)
        if self.opts.get("force_slow"):
            e("s_mov_b32 s%d, 1" % sMode)

    P1_ACC = W0
    P1_AB = W0 + 48
    P1_CS = W0 + 80
    RAW = W0 + 96
    P1_MS = W0 + 104
    P1_S32 = W0 + 106
    P1_XB = W0 + 107
    P1_KV = W0 + 108
    P1_ATT = [W0 + 112 + 4 * i for i in range(4)] + [W0 + 32 + 4 * i for i in range(4)]

    def attention_ops(self, layer, sb):
        a, e, DS = self.a, self.e, self.DS
        A = self.P1_ATT
        ops = []
        Q, Kp, Kc = [A[0], A[3]], [A[1], A[4]], [A[2], A[5]]
        Sp, Sc = [A[6], A[0]], [A[7], A[1]]
        sa, sbb, mx = [A[2], A[2] + 2], [A[2] + 1, A[2] + 3], [A[3], A[3] + 1]
        neg = A[3] + 2
        Va, Vb = [A[4], A[6]], [A[5], A[7]]
        P = [A[0], A[1]]
        Oa, Ob = [A[2], A[4]], [A[3], A[5]]
        G = [A[6], A[7]]
        for h in range(2):
            ops.append(DS(("q", h), "ds_read2_b64 %s, v%d offset0:%d offset1:%d" % (q(Q[h]), vXc, 10 + 5 * h, 14 + 5 * h)))
            ops.append(DS(("kp", h), "ds_read2_b64 %s, v%d offset0:%d offset1:%d" % (q(Kp[h]), vXp, 5 * h, 4 + 5 * h)))
            ops.append(DS(("kc", h), "ds_read2_b64 %s, v%d offset0:%d offset1:%d" % (q(Kc[h]), vXc, 5 * h, 4 + 5 * h)))
        ops += ["s_add_u32 s%d, s%d, %d" % (sA0, sOd, sb * SBH), 7]
        for h in range(2):
            ops.append(self.WD([("q", h)]))
            ops.append("v_cndmask_b32 v%d, 0, v%d, %s" % (Q[h] + 2, Q[h] + 2, sp(sG0)))
            ops.append("v_cndmask_b32 v%d, 0, v%d, %s" % (Q[h] + 3, Q[h] + 3, sp(sG0)))
        ops.append(self.WD([("kc", 1)]))
        for h in range(2):
            ops.append(B_(lambda h=h: self.mfma(Sp[h], Kp[h], Q[h], first=True)))
            ops.append(B_(lambda h=h: self.mfma(Sc[h], Kc[h], Q[h], first=True)))

        def vreads(h):
            o = []
            for vv, off in ((Va[h], 0), (Vb[h], 32)):
                o.append(DS(("v", h), "ds_read_b64_tr_b16 %s, v%d offset:%d" % (p2(vv), vXv, 40 * h + off)))
                o.append(DS(("v", h), "ds_read_b64_tr_b16 %s, v%d offset:%d" % (p2(vv + 2), vXv, 40 * h + off + EXT)))
            return o
        ops += vreads(0)
        if sb == 1:
            ops.append("v_mov_b32 v%d, s%d" % (neg, sNeg))
        for h in range(2):
            s_, c = Sp[h], Sc[h]
            ops += ["v_cndmask_b32 v%d, v%d, v%d, %s" % (s_, s_, s_ + 1, sp(sOdd)),
                    "v_cndmask_b32 v%d, v%d, v%d, %s" % (s_ + 2, s_ + 2, s_ + 3, sp(sOdd)),
                    "v_cndmask_b32 v%d, v%d, v%d, %s" % (c, c, c + 1, sp(sOdd)),
                    "v_cndmask_b32 v%d, v%d, v%d, %s" % (c + 2, c + 2, c + 3, sp(sOdd)),
                    "v_cndmask_b32 v%d, v%d, v%d, %s" % (sa[h], c, s_, sp(sPA)),
                    "v_cndmask_b32 v%d, v%d, v%d, %s" % (sbb[h], c + 2, s_ + 2, sp(sPB))]
            if sb == 1:
                ops += ["v_cndmask_b32 v%d, v%d, v%d, %s" % (sa[h], sa[h], neg, sp(sPAx)),
                        "v_cndmask_b32 v%d, v%d, v%d, %s" % (sbb[h], sbb[h], neg, sp(sPBx))]
            ops.append("v_max_f32 v%d, v%d, v%d" % (mx[h], sa[h], sbb[h]))

        def red2(op, x, y, pad):
            pad = list(pad) + [0] * 6
            return [pad[4], pad[5],
                    "v_permlane16_swap_b32 v%d, v%d" % (x, y), "%s v%d, v%d, v%d" % (op, x, x, y), "v_mov_b32 v%d, v%d" % (y, x),
                    pad[0], pad[1],
                    "v_permlane32_swap_b32 v%d, v%d" % (x, y), "%s v%d, v%d, v%d" % (op, x, x, y), "v_mov_b32 v%d, v%d" % (y, x),
                    pad[2], pad[3],
                    "v_permlane16_swap_b32 v%d, v%d" % (x, y)]
        ops += red2("v_max_f32", mx[0], mx[1], vreads(1))
        ops += ["v_mul_f32 v%d, s%d, v%d" % (mx[h], sScale, mx[h]) for h in range(2)]
        for h in range(2):
            ops += ["v_fma_f32 v%d, v%d, s%d, -v%d" % (sa[h], sa[h], sScale, mx[h]),
                    "v_fma_f32 v%d, v%d, s%d, -v%d" % (sbb[h], sbb[h], sScale, mx[h])]
        for h in range(2):
            ops += ["v_exp_f32 v%d, v%d" % (sa[h], sa[h]), "v_exp_f32 v%d, v%d" % (sbb[h], sbb[h])]
        ops += ["v_add_f32 v%d, v%d, v%d" % (mx[h], sa[h], sbb[h]) for h in range(2)]
        d = "v_add_u32" if sb == 0 else "v_subrev_u32"
        ops += red2("v_add_f32", mx[0], mx[1], ["%s v%d, s%d, v%d" % (d, r, sFlip, r) for r in (vXp, vXc, vXv)])
        ops += ["v_rcp_f32 v%d, v%d" % (mx[h], mx[h]) for h in range(2)]
        for h in range(2):
            ops += ["v_mul_f32 v%d, v%d, v%d" % (sa[h], sa[h], mx[h]), "v_mul_f32 v%d, v%d, v%d" % (sbb[h], sbb[h], mx[h])]
        for h in range(2):
            ops += ["v_cvt_pk_bf16_f32 v%d, v%d, v%d" % (sa[h], sa[h], sa[h]),
                    "v_cvt_pk_bf16_f32 v%d, v%d, v%d" % (sbb[h], sbb[h], sbb[h]),
                    "v_and_b32 v%d, v%d, v%d" % (P[h], vM0, sa[h]),
                    "v_and_b32 v%d, v%d, v%d" % (P[h] + 1, vM1, sbb[h]),
                    "v_and_b32 v%d, v%d, v%d" % (P[h] + 2, vM2, sa[h]),
                    "v_and_b32 v%d, v%d, v%d" % (P[h] + 3, vM3, sbb[h])]
        ops.append(self.WD([("v", 1)]))
        for h in range(2):
            ops.append(B_(lambda h=h: self.mfma(Oa[h], Va[h], P[h], first=True)))
            ops.append(B_(lambda h=h: self.mfma(Ob[h], Vb[h], P[h], first=True)))
        ops.append(3)
        for src, dst in ((Oa, G[0]), (Ob, G[1])):
            for h in range(2):
                ops += ["v_cvt_pk_bf16_f32 v%d, v%d, v%d" % (dst + 2 * h, src[h], src[h] + 1),
                        "v_cvt_pk_bf16_f32 v%d, v%d, v%d" % (dst + 2 * h + 1, src[h] + 2, src[h] + 3)]
            if src is Oa:
                ops.append(V_(lambda: a.vm("st", "buffer_store_dwordx4 %s, v%d, %s, s%d offen" % (q(G[0]), vL0, sWS, sA0))))

        def last():
            e("s_mov_b64 exec, %s" % sp(sMaskX))
            a.vm("st", "buffer_store_dwordx4 %s, v%d, %s, s%d offen offset:1024" % (q(G[1]), vL0, sWS, sA0))
            e("s_mov_b64 exec, -1")
        ops.append(B_(last))
        return ops

    def p1(self, layer):
        a, e, DS, WD = self.a, self.e, self.DS, self.WD
        typ = self.typ
        ACC, AB, NAB, MS = self.P1_ACC, self.P1_AB, 8, self.P1_MS
        self.stamp("p1_%d_begin" % layer)
        groups = [[1, 0], [2], [3]] if layer == 0 else [[1], [0], [2], [3]]
        units = [(p, ks, hk) for gr in groups for ks in range(20) for hk in range(2) for p in gr]
        idx = {u: i for i, u in enumerate(units)}
        accof = {1: ACC, 0: ACC + 16, 2: ACC + 32, 3: ACC}
        half = {1: 1, 0: 0, 2: 1, 3: 0}

        def read(u):
            p, ks, hk = units[u]
            base, off = vX32, half[p] * 40960
            return "ds_read_b128 %s, v%d offset:%d" % (q(AB + (u % NAB) * 4), base, off + ks * 1024 + hk * 512)

        def compute(u):
            p, ks, hk = units[u]

            def f():
                self.mfma32(accof[p], ("a", (ks * 2 + hk) * 4), AB + (u % NAB) * 4, first=(ks == 0 and hk == 0))
                if layer == 1 and p == 3:
                    self.free.append(("a", (ks * 2 + hk) * 4))
            return [f]

        def sync(tags, ds=None):
            def f():
                self.vwait(tags)
                if ds:
                    a.wait(ds=ds)
                e("s_barrier")
            return f

        def ms_read(p):
            return DS("ms", "ds_read_b64 %s, v%d offset:%d" % (p2(MS), self.P1_S32, p * 256))

        def fix(p, packed=False):
            ops = [WD(["ms", "cs"])]
            for j in range(4):
                acc = accof[p] + 4 * j
                cs = self.P1_CS + 4 * j
                if packed:
                    for hh in (0, 2):
                        ops.append("v_pk_fma_f32 %s, %s, %s, %s op_sel_hi:[1,0,1] neg_lo:[0,1,0] neg_hi:[0,1,0]" %
                                   (p2(acc + hh), p2(cs + hh), p2(MS), p2(acc + hh)))
                    for hh in (0, 2):
                        ops.append("v_pk_mul_f32 %s, %s, %s op_sel:[0,1] op_sel_hi:[1,1]" % (p2(acc + hh), p2(acc + hh), p2(MS)))
                else:
                    ops += ["v_fma_f32 v%d, -v%d, v%d, v%d" % (acc + r, cs + r, MS, acc + r) for r in range(4)]
                    ops += ["v_mul_f32 v%d, v%d, v%d" % (acc + r, acc + r, MS + 1) for r in range(4)]
                ops.append("v_cvt_pk_bf16_f32 v%d, v%d, v%d" % (acc, acc, acc + 1))
                ops.append("v_cvt_pk_bf16_f32 v%d, v%d, v%d" % (acc + 1, acc + 2, acc + 3))
                row = {0: 5, 1: 7, 2: 3, 3: 1}[p]
                ops.append(DS("xw", "ds_write_b64 v%d, %s offset:%d" % (vXw0, p2(acc), 16 * j + row * EXT), 16))
            return ops + [self.mark(("fix", p))]

        def fixr(p):
            return [ms_read(p), 8] + fix(p)

        def setup():
            c = self.P1_CS
            o = ["v_lshrrev_b32 v%d, 3, v%d" % (c + 12, vFl),
                 "v_and_b32 v%d, 16, v%d" % (c + 12, c + 12),
                 "v_add_u32 v%d, s%d, v%d" % (c + 12, sW128, c + 12)]
            o += [DS("cs", "ds_read_b128 %s, v%d offset:%d" % (q(c + 4 * j), c + 12, L_CT + 32 * j)) for j in range(4)]
            o += ["v_and_b32 v%d, 124, v%d" % (self.P1_S32, vFl),
                  "v_lshlrev_b32 v%d, 1, v%d" % (self.P1_S32, self.P1_S32),
                  "v_add_u32 v%d, %d, v%d" % (self.P1_S32, L_ST, self.P1_S32)]
            return o

        KV = self.P1_KV
        lo = layer * 256 * 4 * KB

        def kv_out():
            def flag():
                e("v_mov_b32 v%d, %d" % (vT0, layer + 1))
                e("s_mov_b64 exec, 1")
                a.wait(vm=["kvo"])
                a.vm("flag", "buffer_store_dword v%d, off, %s, s%d sc1" % (vT0, sWS, sKfo))
                e("s_mov_b64 exec, -1")
            return ["v_add_u32 v%d, %d, v%d" % (KV, 8 * EXT, vKv),
                    DS("kv", "ds_read2_b64 %s, v%d offset1:1" % (q(KV), KV)),
                    "s_add_u32 s%d, s%d, %d" % (sA2, sKvo, lo), 8, WD(["kv"]),
                    V_(lambda: a.vm("kvo", "buffer_store_dwordx4 %s, v%d, %s, s%d offen sc1" % (q(KV), vL0, sWS, sA2)), 8),
                    Z_(lambda: self.later(self.opt("kvd", 36), flag))]

        def kv_in():
            self.poll_check(layer + 1, sMaskW, sKfi, acquire=False)
            e("s_add_u32 s%d, s%d, %d" % (sA2, sKvi, lo))
            a.vm("kvi", "buffer_load_dwordx4 %s, v%d, %s, s%d offen sc1" % (q(KV), vL0, sWS, sA2))

        def kv_put():
            a.wait(vm=["kvi"])
            a.ds("xw", "ds_write2_b64 v%d, %s, %s offset1:1" % (vKv, p2(KV), p2(KV + 2)))

        self.bg = []
        pre_read, pre_unit = {}, {}

        def hook(d, u, f):
            u = idx[u if len(u) == 3 else (u[0], u[1], 0)]
            old = d.get(u)
            d[u] = f if old is None else (lambda: (old(), f()))

        def bgx(f):
            return lambda: self.bg.extend(f())

        def soon(f):
            return lambda: self.bg.insert(0, B_(f))

        nb0, nb1 = self.items_p1(1, 0, "A1", shift=40960), self.items_p1(1, 1, "A1", shift=-40960)
        allb0 = [("A1", 0, j) for j in range(5)]
        allb1 = [("A1", 1, j) for j in range(5)]

        def go():
            a.wait(ds=["xw"])
            e("s_barrier")
        if layer == 0:
            hook(pre_read, (1, 16), lambda: self.need("st0"))
            for j in range(5):
                hook(pre_read, (1, 4 * j), sync([("A0", 0, j), ("A0", 1, j)], ds=["sw", "ctw"]))
            hook(pre_read, (1, 16), lambda: self.stream.extend(nb0[:6] + nb1[:6]))
            for ks in range(20):
                hook(pre_unit, (1, ks), lambda ks=ks: self.vwait([("WQ", ks)]))
            hook(pre_unit, (1, 10), bgx(lambda: self.ct_write() + self.stats_share(0) + self.stats_share(1, self.RAW + 4) +
                                        [self.mark("st0")]))
            hook(pre_unit, (1, 16), bgx(lambda: setup() + [ms_read(1), V_(lambda: self.poll_issue(sXT))]))
            hook(pre_read, (2, 0), sync([("A1", 0, j) for j in range(3)]))

            def turn():
                self.stamp("p1_0_a")
                e("s_barrier")
                self.push_front(nb0[6:])
                self.stream.extend(nb1[6:])
                self.urgent = set(allb0)
                self.period = self.opt("per1", 64)
                self.b_on = True
                self.fcredit = 0
                self.drain_bg()
                self.bg = fix(1, True)
                self.drain_bg()
                self.bg = [2, B_(go)] + kv_out() + [B_(self.mode_check), self.mark("kvo")] + [20] + fixr(0)
            hook(pre_unit, (2, 0), turn)
            hook(pre_read, (2, 12), sync(allb0))
            kvi, kvc = (3, self.opt("kvi0", 8)), (3, self.opt("kvc0", 15))
        else:
            hook(pre_read, (1, 0), sync([("A0", 1, 0), ("A0", 1, 1)]))
            hook(pre_read, (1, 8), sync([("A0", 1, j) for j in range(2, 5)]))
            hook(pre_unit, (1, 1), bgx(setup))
            hook(pre_unit, (1, 7), bgx(lambda: self.stats_share(0) + [self.mark("st0")]))
            hook(pre_unit, (1, 8), soon(self.poll_issue))

            def refill(tags, items, pre=None):
                def f():
                    self.need("st0")
                    sync(tags, ds=["sw"])()
                    if pre:
                        pre()
                    self.urgent = set(ld.tag for ld in items) if self.opt("urgr", 1) else set()
                    self.stream.extend(items)
                return f
            hook(pre_read, (0, 0), refill([("A0", 0, j) for j in range(5)], self.items_stats(1) + nb0[:8],
                                          pre=lambda: self.poll_check(6, sMaskB)))
            hook(pre_unit, (0, 3), lambda: (e("s_barrier"), self.stream.extend(nb0[8:])))
            hook(pre_unit, (0, self.opt("fixat1", 4)), bgx(lambda: fixr(1) + [4, B_(go)] + kv_out() + [self.mark("kvo")] + self.stats_share(1) +
                                                             [self.mark("st0")]))
            hook(pre_read, (2, 0), refill(allb0, nb1[:8]))
            hook(pre_unit, (2, 3), lambda: (e("s_barrier"), self.stream.extend(nb1[8:])))
            hook(pre_unit, (2, self.opt("fixat", 9)), bgx(lambda: fixr(0)))
            hook(pre_unit, (3, 0), lambda: self.stamp("p1_1_a"))
            kvi, kvc = (3, self.opt("kvi", 1)), (3, self.opt("kvc", 10))
        hook(pre_read, (3, 0), sync(allb1))
        hook(pre_unit, (3, 0), lambda: self.need(("fix", 1)))
        hook(pre_unit, (3, 0), bgx(lambda: fixr(2) + [4, B_(go)] + self.attention_ops(layer, 0)))
        hook(pre_unit, kvi, lambda: (self.need("kvo"), self.poll_issue(sKfi)))
        hook(pre_unit, kvc, lambda: (self.run_timed(), kv_in()))
        hook(pre_unit, (3, 0), bgx(lambda: [ms_read(3)]))
        hook(pre_unit, (3, 0), lambda: setattr(self, "hurry", self.opt("hurry1", 15)))
        if layer == 1 or self.opt("tearly", 0):
            hook(pre_unit, (2, 14), lambda: self.stream.extend([self.item_touch(24, 3072), self.item_code()]))
        else:
            np_ = self.opt("tpieces", 8)
            for z in range(np_):
                at = idx[(2, 6, 0)] + z * self.opt("tstep", 4)
                hook(pre_unit, units[at], lambda z=z: self.stream.append(self.item_touch(24 // np_, 3072, z * (24 // np_))))
            hook(pre_unit, (2, 15), lambda: self.stream.append(self.item_code()))
        if layer == 1:
            self.period = self.opt("per1", 64)
            self.b_on = True
            self.bmin = self.opt("bmin1", 200)
            hook(pre_unit, (2, 10), lambda: setattr(self, "bmin", 0))
        hook(pre_unit, (3, self.opt("bend1", 14)), lambda: setattr(self, "b_on", bool(self.opt("ball", 1))))
        self.gapdt = self.opt("dt1", 34)
        self.glen = 32
        self.unit_loop(len(units), read, compute, look=self.opt("look1", 6), pre_read=pre_read, pre_unit=pre_unit,
                       wait_every=self.opt("we1", 2), name="p1_%d" % layer, every=self.opt("ev1", 8))
        self.glen = 16
        self.hurry = 10 ** 9
        self.stamp("p1_%d_loop" % layer)
        self.drain_bg()
        self.bg = fix(3, packed=True)
        self.drain_bg()
        kv_put()
        self.publish(6 * layer + 1)
        a.wait_all(ds=True)
        e("s_barrier")
        self.stamp("p1_%d_gemm" % layer)
        ops = self.attention_ops(layer, 1)
        if typ == 0:
            def a2go():
                self.poll_check(6 * layer + 1, sMask16)
                self.stream.extend([self.item_pk(False, n) for n in range(20)])
                self.period = self.opt("pera2", 32)
            ops.insert(self.opt("a2at", 75), B_(a2go))
            ops.insert(self.opt("a2is", 20), B_(self.poll_issue))
        self.bg = ops
        self.drain_bg()
        self.lend()
        self.flush(n=6)
        self.publish(6 * layer + 2)
        self.stamp("p1_%d_end" % layer)

    def pk(self, layer, which):
        a, e, ev, DS, WD = self.a, self.e, self.ev, self.DS, self.WD
        typ = self.typ
        is4 = which == 4
        name = ("W2" if is4 else "WO", layer)
        ACC, AB = W0, W0 + 80
        last = layer == 1 and is4
        order = self.pk_order(is4)
        n_units = len(order)
        self.stamp("p%d_%d_begin" % (which, layer))
        e("s_barrier")
        if typ == 1:
            if not is4:
                self.bpref(self.opt("bwait2_%d" % layer, (3, 0)[layer]))
            self.poll(6 * layer + (5 if is4 else 2), sMask16)
            self.stream.extend([self.item_pk(is4, n) for n in range(20)])
            self.flush(n=8)
        self.urgent = set(("Ak", n) for n in range(self.opt("urgk", 12)))
        self.stamp("p%d_%d_poll" % (which, layer))
        if is4:
            self.unlend()
        init = []
        if self.sq:
            init += ["s_add_u32 s%d, s%d, %d" % (sA0, sWk, STAGE[0]),
                     "v_add_u32 v%d, s%d, v%d" % (vSg0, sA0, vL0),
                     "v_add_u32 v%d, %d, v%d" % (vSg1, STAGE[5] - STAGE[0], vSg0)]
            self.unstage = True
        if layer == 0 and not is4:
            init.append(S_(lambda: self.vwait(["res"])))
        BT = W0 + 96
        if is4:
            init += [DS(("b2", ct), "ds_read_b128 %s, v%d offset:%d" % (q(BT + 4 * ct), vG, L_CT + 1536 + 64 * ct)) for ct in range(5)]
        for ct in range(5):
            for hh in range(2):
                src = vRes + 2 * ct + hh
                init.append("v_lshlrev_b32 v%d, 16, v%d" % (ACC + 4 * ct + 2 * hh, src))
                init.append("v_and_b32 v%d, 0xffff0000, v%d" % (ACC + 4 * ct + 2 * hh + 1, src))
        if is4:
            init.append(WD([("b2", 4)]))
            init += ["v_add_f32 v%d, v%d, v%d" % (ACC + r, ACC + r, BT + r) for r in range(20)]
        init.append(self.mark("init"))
        vOut, vOutH = BT, BT + 1
        if last:
            init += ["v_lshrrev_b32 v%d, 2, v%d" % (vOut, vFl),
                     "v_and_b32 v%d, 15, v%d" % (vOut, vOut),
                     "v_mul_u32_u24 v%d, 1280, v%d" % (vOut, vOut),
                     "v_add_u32 v%d, v%d, v%d" % (vOut, vOut, vG),
                     "v_sub_u32 v%d, v%d, v%d" % (vOutH, vHalf, vL0),
                     "v_add_u32 v%d, v%d, v%d" % (vOutH, vOutH, vOut),
                     "s_add_u32 s%d, s%d, s%d" % (sA0, sRtT, sW),
                     "s_mul_i32 s%d, s%d, %d" % (sA1, sA0, 20 * KB),
                     "s_add_u32 s%d, s%d, %d" % (sA1, sA1, X0),
                     "s_add_u32 s%d, s%d, %d" % (sA0, sW, 2 if typ else 4),
                     "s_and_b32 s%d, s%d, %d" % (sA0, sA0, 3 if typ else 7),
                     "s_lshl_b32 s%d, s%d, 3" % (sA2, sC),
                     "s_add_u32 s%d, s%d, s%d" % (sA0, sA0, sA2),
                     "s_mul_i32 s%d, s%d, %d" % (sA0, sA0, 20 * KB),
                     "s_sub_u32 s%d, s%d, s%d" % (sA2, sXd0, sA1),
                     "s_lshr_b32 s%d, s%d, 4" % (sA2, sA2),
                     "s_add_u32 s%d, s%d, s%d" % (sA2, sA2, sA0),
                     "s_sub_u32 s%d, s%d, s%d" % (sA3, sXdh, sA1),
                     "s_lshr_b32 s%d, s%d, 4" % (sA3, sA3),
                     "s_add_u32 s%d, s%d, s%d" % (sA3, sA3, sA0)]
        self.bg = init
        started = set()
        lastuse = {k: n for n, (i, k) in enumerate(order)}
        fin = {i: max(n for n, (ii, k) in enumerate(order) if ii == i) for i in range(4)}

        def read(n):
            return "ds_read_b128 %s, v%d offset:%d" % (q(AB + (n % 4) * 4), vAk, (n % 20) * 1024)

        def compute(n):
            i, k = order[n]
            if i == 0:
                self.need("init")
            regs = self.bget([(name, k * 5 + ct) for ct in range(5)])
            fst = i != 0 and i not in started
            started.add(i)

            def mk(ct):
                def f():
                    self.mfma(ACC + (i * 5 + ct) * 4, regs[ct], AB + (n % 4) * 4, first=fst)
                    if ct == 0 and n + 20 < n_units:
                        self.stream.append(self.item_pk(is4, n + 20))
                    if ct == 4 and lastuse[k] == n:
                        for c in range(5):
                            self.bfree((name, k * 5 + c))
                return f
            return [mk(ct) for ct in range(5)]

        pre_read = {n: (lambda n=n: self.vwait([("Ak", n)])) for n in range(n_units)}
        pre_unit = {}

        def writes(i):
            return [DS("rw", "ds_write_b128 v%d, %s offset:%d" % ((vRw1, vRw2, vRw3)[i - 1], q(ACC + (i * 5 + ct) * 4), ct * 1024), 24)
                    for ct in range(5)]

        def spaced(ws, n):
            out = []
            for w in ws:
                out += [w, n]
            return out

        staged = bool(self.sq)
        if not last and self.opt("xtouch%d" % which, 0):
            def xt(soff, imm):
                return Load("touch", [], lambda: a.vm("touch", "buffer_load_dword v0, v%d, %s, s%d offen offset:%d" % (vL0, sWS, soff, imm)))
            pre_unit[28 if is4 else 4] = lambda: self.stream.extend([xt(sXd0, 0), xt(sXd0, 1024), xt(sXdh, 0), xt(sStd, 0)])

        def first_writes():
            if staged:
                assert not self.sq
                e("s_barrier")
            self.bg.extend([1] + spaced(writes(1), 2))
        pre_unit[fin[1] + 1] = first_writes
        pre_unit[fin[2] + 1] = lambda: self.bg.extend([1] + spaced(writes(2), 2))

        def stage1():
            self.b_on = bool(self.opt("ball", 1))
            self.drain_bg()
            a.wait(ds=["rw"])
            e("s_barrier")
            ops = []
            w3 = writes(3)
            for ct in range(5):
                for j in range(2):
                    ops.append(DS(("rr", j, ct), "ds_read_b128 %s, v%d offset:%d" %
                                  (q(ACC + 20 + (j * 5 + ct) * 4), vRr, (j * 5 + ct) * 1024)))
                ops.append(w3[ct])
            ops.append(self.mark("w3"))
            for ct in range(5):
                ops.append(WD([("rr", 1, ct)]))
                ops += ["v_add_f32 v%d, v%d, v%d" % (ACC + 20 + 4 * ct + r, ACC + 20 + 4 * ct + r, ACC + 40 + 4 * ct + r)
                        for r in range(4)]
            self.bg.extend(ops)
        pre_unit[fin[3] + 1] = stage1
        self.deadline = {("Ak", n): n for n in range(n_units)}
        for n, (i, k) in reversed(list(enumerate(order))):
            for ct in range(5):
                self.deadline[(name, k * 5 + ct)] = n - self.opt("blead", 4)
        self.period = self.opt("perk", 64)
        self.minlead = self.opt("leadk", 12)
        self.gapdt = self.opt("dtk", 18)
        self.b_on = True
        self.b_stop = name if (is4 and self.opt("bstop4", 0)) else None
        self.unit_loop(n_units, read, compute, look=3, pre_read=pre_read, pre_unit=pre_unit, name="p%d_%d" % (which, layer))
        self.b_on = bool(self.opt("ball", 1))
        self.b_stop = None
        self.unstage = False
        self.minlead = None
        self.deadline = {}
        self.stamp("p%d_%d_loop" % (which, layer))
        self.need("w3")
        a.wait(ds=["rw"])
        e("s_barrier")
        self.stamp("p%d_%d_gemm" % (which, layer))
        for ct in range(5):
            a.ds(("rr", 2, ct), "ds_read_b128 %s, v%d offset:%d" % (q(ACC + 60 + ct * 4), vRr, (10 + ct) * 1024))
        self.period = self.opt("pere", 64)
        if typ == 1 and not last:
            self.poll_issue()
        self.drain_bg()
        for ct in range(5):
            for hh in (0, 2):
                ev("v_pk_add_f32 %s, %s, %s" % (p2(ACC + 4 * ct + hh), p2(ACC + 4 * ct + hh), p2(ACC + 20 + 4 * ct + hh)))
        srd, v0_, vh, o2, d0, dh = (sOUT, vOut, vOutH, 64, sA2, sA3) if last else (sWS, vL0, vHalf, 1024, sXd0, sXdh)
        s0, s1 = vT1, vT2
        for ct in range(5):
            a.wait(ds=[("rr", 2, ct)])
            for hh in (0, 2):
                ev("v_pk_add_f32 %s, %s, %s" % (p2(ACC + 4 * ct + hh), p2(ACC + 4 * ct + hh), p2(ACC + 60 + 4 * ct + hh)))
            ev("v_cvt_pk_bf16_f32 v%d, v%d, v%d" % (vRes + 2 * ct, ACC + 4 * ct, ACC + 4 * ct + 1))
            ev("v_cvt_pk_bf16_f32 v%d, v%d, v%d" % (vRes + 2 * ct + 1, ACC + 4 * ct + 2, ACC + 4 * ct + 3))
            if ct == 1:
                a.vm("st", "buffer_store_dwordx4 %s, v%d, %s, s%d offen" % (q(vRes), v0_, srd, d0))
            if ct == 3:
                a.vm("st", "buffer_store_dwordx4 %s, v%d, %s, s%d offen offset:%d" % (q(vRes + 4), v0_, srd, d0, o2))
            if ct == 4:
                a.vm("st", "buffer_store_dwordx2 %s, v%d, %s, s%d offen" % (p2(vRes + 8), vh, srd, dh))
        if last:
            self.stamp("p4_1_end")
            return
        for r in range(10):
            ev("v_dot2_f32_bf16 v%d, v%d, s%d, %s" % (s0, vRes + r, sOnes, "0" if r == 0 else "v%d" % s0))
            ev("v_dot2_f32_bf16 v%d, v%d, v%d, %s" % (s1, vRes + r, vRes + r, "0" if r == 0 else "v%d" % s1))
        ev("v_permlane16_swap_b32 v%d, v%d" % (s0, s1))
        ev("v_add_f32 v%d, v%d, v%d" % (s0, s0, s1))
        ev("v_mov_b32 v%d, v%d" % (s1, s0))
        ev("v_permlane32_swap_b32 v%d, v%d" % (s0, s1))
        ev("v_add_f32 v%d, v%d, v%d" % (vHst, s0, s1))
        e("s_mov_b64 exec, %s" % sp(sMaskA))
        a.vm("st", "buffer_store_dword v%d, v%d, %s, s%d offen" % (vHst, vSt, sWS, sStd))
        e("s_mov_b64 exec, -1")
        val = 6 * layer + (6 if is4 else 3)

        if typ == 0:
            self.publish(val)
            self.bpref(self.opt("bwait%d_%d" % (which + 10, layer), 6 if (layer == 0 and not is4) else 0))
            self.poll(val, sMaskA)
            self.next_fetch(layer, is4)
            self.flush(n=10)
        else:
            self.poll_check(val, sMaskA)
            self.next_fetch(layer, is4)
            self.flush(n=6)
            self.publish(val)
        self.stamp("p%d_%d_end" % (which, layer))

    def next_fetch(self, layer, is4):
        st = self.items_stats(0)
        if is4:
            i0, i1 = self.items_p1(0, 1, "A0"), self.items_p1(0, 0, "A0")
            it = i0[:4] + st + i0[4:] + i1
        else:
            it = self.items_p3(0, 2, "A0") + st + [x for i in (3, 0, 1) for x in self.items_p3(0, i, "A0")]
        self.urgent = set(ld.tag for ld in it)
        self.stream.extend(it)

    P3_ACC = W0
    P3_AB = W0 + 48
    P3_CT = [W0 + 80, W0 + 84, W0 + 88, W0 + 92, W0 + 100, W0 + 104]
    P3_OUT = W0 + 108
    P3_MS = [46, W0 + 114]

    def p3(self, layer):
        a, e, DS, WD = self.a, self.e, self.DS, self.WD
        typ = self.typ
        name = ("W1", layer)
        ACC, AB, CT, OUT = self.P3_ACC, self.P3_AB, self.P3_CT, self.P3_OUT
        self.stamp("p3_%d_begin" % layer)
        phases = [(sb, i) for sb in range(2) for i in (2, 3, 0, 1)]
        units = [(sb, i, k) for sb, i in phases for k in range(10)]

        def read(u):
            sb, i, k = units[u]
            return "ds_read_b128 %s, v%d offset:%d" % (q(AB + (u % 8) * 4), vP3a if i < 2 else vP3b, (i & 1) * 20480 + k * 2048)

        def compute(u):
            sb, i, k = units[u]
            regs = self.bget([(name, k * 3 + ct) for ct in range(3)])

            def mk(ct):
                def f():
                    self.mfma(ACC + (i * 3 + ct) * 4, regs[ct], AB + (u % 8) * 4, first=(k == 0))
                    if ct == 2 and u >= 70:
                        for c in range(3):
                            self.bfree((name, k * 3 + c))
                return f
            return [mk(ct) for ct in range(3)]

        pre_read, pre_unit = {}, {}

        def hook(d, u, f):
            old = d.get(u)
            d[u] = f if old is None else (lambda: (old(), f()))

        def tags(p):
            sb, i = phases[p]
            return [("A%d" % sb, i, j) for j in range(5)]

        def sync(tg):
            def f():
                self.vwait(tg)
                e("s_barrier")
            return f

        def soon(f):
            return lambda: self.bg.insert(0, B_(f))

        def writes(i):
            ops = [2]
            for ct in range(3):
                ops += [DS("ew", "ds_write_b128 v%d, %s offset:%d" % (vE3w, q(ACC + (i * 3 + ct) * 4), ((i - 2) * 3 + ct) * 1024), 24), 1]
            return ops + [self.mark("ew")]

        def consts():
            o = ["s_lshr_b32 s%d, s%d, 1" % (sA3, sW),
                 "s_mul_i32 s%d, s%d, 192" % (sA3, sA3),
                 "v_add_u32 v%d, s%d, v%d" % (OUT, sA3, vG)]
            for ct in range(3):
                for z in range(2):
                    o.append(DS("c3", "ds_read_b128 %s, v%d offset:%d" % (q(CT[2 * ct + z]), OUT, L_CT + 480 + z * 384 + ct * 64)))
            return o

        def fetch(sb):
            ops = []
            for i in range(2):
                ms = self.P3_MS[i]
                ops += ["v_add_u32 v%d, s%d, v%d" % (ms, sK256, vSl),
                        DS(("ms", i), "ds_read_b64 %s, v%d offset:%d" % (p2(ms), ms, sb * 512 + i * 128))]
                for ct in range(3):
                    ops.append(DS(("er", i, ct), "ds_read_b128 %s, v%d offset:%d" %
                                  (q(ACC + 24 + (i * 3 + ct) * 4), vE3r, (i * 3 + ct) * 1024)))
            return ops + [4]

        def zz(i):
            ms = self.P3_MS[i]
            ops = [WD([("er", i, 2), "c3"])]
            for ct in range(3):
                z = ACC + 24 + (i * 3 + ct) * 4
                ops += ["v_fma_f32 v%d, -v%d, v%d, v%d" % (z + r, CT[2 * ct] + r, ms, z + r) for r in range(4)]
                ops += ["v_fma_f32 v%d, v%d, v%d, v%d" % (z + r, z + r, ms + 1, CT[2 * ct + 1] + r) for r in range(4)]
            return ops

        def epi(sb, i, packed=False):
            ms = self.P3_MS[i]
            ops = ["s_add_u32 s%d, s%d, %d" % (sA1, sHd, sb * SBH + i * 48 * KB)]
            for ct in range(3):
                acc = ACC + (i * 3 + ct) * 4
                z = acc + 24
                if packed:
                    ops += ["v_pk_fma_f32 %s, %s, %s, %s op_sel:[0,1,0] op_sel_hi:[1,1,1]" %
                            (p2(acc + hh), p2(acc + hh), p2(ms), p2(z + hh)) for hh in (0, 2)]
                else:
                    ops += ["v_fma_f32 v%d, v%d, v%d, v%d" % (acc + r, acc + r, ms + 1, z + r) for r in range(4)]
            ops.append(self.mark(("zfree", i)))
            for ct in range(3):
                acc = ACC + (i * 3 + ct) * 4
                ops += ["v_mul_f32 v%d, v%d, abs(v%d)" % (acc + r, acc + r, acc + r) for r in range(4)]
                o = OUT + 2 * ct
                ops += ["v_cvt_pk_bf16_f32 v%d, v%d, v%d" % (o, acc, acc + 1),
                        "v_cvt_pk_bf16_f32 v%d, v%d, v%d" % (o + 1, acc + 2, acc + 3),
                        "v_pk_max_i16 v%d, v%d, 0" % (o, o),
                        "v_pk_max_i16 v%d, v%d, 0" % (o + 1, o + 1)]
                if ct == 1:
                    ops.append(V_(lambda: a.vm("st", "buffer_store_dwordx4 %s, v%d, %s, s%d offen" % (q(OUT), vHf, sWS, sA1))))
                if ct == 2:
                    ops.append(V_(lambda o=o: a.vm("st", "buffer_store_dwordx2 %s, v%d, %s, s%d offen offset:1024" %
                                                   (p2(o), vHh, sWS, sA1))))
            return ops + [self.mark(("epi", i))]

        self.bg = []
        MID = self.opt("mid3", 5)
        hook(pre_read, 0, sync(tags(0)))
        hook(pre_read, 10, sync(tags(1)))
        hook(pre_read, 20, sync(tags(2)))
        hook(pre_read, 30, sync(tags(3)))
        hook(pre_read, 40, sync(tags(4)))
        hook(pre_read, 50, sync(tags(5)))
        hook(pre_read, 60, sync(tags(6)))
        hook(pre_read, 70, sync(tags(7)))
        for sb in range(2):
            b = 40 * sb
            w2 = self.opt("w2at", 18)
            hook(pre_unit, b + w2, lambda: self.bg.__setitem__(slice(0, 0), writes(2)[1:]))
            hook(pre_unit, b + 20, lambda: (self.need("ew"), self.bg.__setitem__(slice(0, 0), writes(3))))
            hook(pre_unit, b + 31, lambda sb=sb: self.bg.extend(epi(sb, 0)))
        look = self.opt("look3", 5)

        def pre_mid(sb):
            def f():
                self.need("ew")
                self.need(("st", sb))
                a.wait(ds=["ew", "sw"])
            return f
        for sb in range(2):
            old = pre_read[40 * sb + 30]
            pre_read[40 * sb + 30] = (lambda sb=sb, old=old: (pre_mid(sb)(), old(), self.bg.extend(fetch(sb) + zz(0) + zz(1))))
        hook(pre_unit, 40, lambda: self.need(("zfree", 0)))
        hook(pre_unit, 41, lambda: self.bg.extend(epi(0, 1)))
        hook(pre_unit, 50, lambda: self.need(("zfree", 1)))
        hook(pre_unit, 60, lambda: self.need(("epi", 0)))
        hook(pre_unit, 1, lambda: self.bg.extend(consts()))
        if layer == 0:
            hook(pre_unit, 10, lambda: setattr(self, "stage_free", list(range(self.opt("nstage", 13)))))
            hook(pre_unit, 70, lambda: setattr(self, "stage_free", []))
        hook(pre_unit, 8, lambda: self.bg.extend(self.stats_share(0) + [self.mark(("st", 0))]))
        hook(pre_unit, self.opt("iss3", 8), soon(self.poll_issue))
        self.marks.discard("chk3")
        hook(pre_unit, self.opt("chk3", 20), lambda: (self.need(("st", 0)), self.bg.insert(0, B_(lambda: (
            self.poll_check(6 * layer + 3, sMaskB),
            self.stream.extend(self.items_p3(1, 2, "A1") + self.items_stats(1)), self.marks.add("chk3"))))))
        hook(pre_read, 30, lambda: (self.need("chk3"), self.stream.extend(self.items_p3(1, 3, "A1"))))
        hook(pre_read, 40, lambda: self.stream.extend(self.items_p3(1, 0, "A1")))
        hook(pre_read, 50, lambda: (self.urgent.update(tags(7) if self.opt("urg7", 1) else []),
                                    self.stream.extend(self.items_p3(1, 1, "A1") + [self.item_code()])))
        hook(pre_unit, 52, lambda: self.bg.extend(self.stats_share(1) + [self.mark(("st", 1))]))
        hook(pre_unit, 40, lambda: self.stamp("p3_%d_a" % layer))
        hook(pre_unit, 62, lambda: (self.need(("epi", 1)), self.bg.insert(0, B_(lambda: self.publish(6 * layer + 4)))))
        self.deadline = {}
        for n, (sb, i, k) in reversed(list(enumerate(units))):
            self.deadline[("A%d" % sb, i, k // 2)] = n
            for ct in range(3):
                self.deadline[(name, k * 3 + ct)] = n - self.opt("blead3", 12)
        self.period = self.opt("per3", 64)
        self.gapdt = self.opt("dt3", 18)
        self.b_on = True
        self.hurry = self.opt("hurry3", 45)
        hook(pre_unit, 80 - self.opt("bstop3", 2), lambda: setattr(self, "b_on", bool(self.opt("ball", 1))))
        self.unit_loop(len(units), read, compute, look=look, pre_read=pre_read, pre_unit=pre_unit, wait_every=2,
                       name="p3_%d" % layer, every=self.opt("ev3", 5))
        self.hurry = 10 ** 9
        self.b_on = bool(self.opt("ball", 1))
        self.deadline = {}
        self.stamp("p3_%d_loop" % layer)
        self.period = self.opt("pere", 64)
        if typ == 0:
            self.poll_issue()
        self.drain_bg()
        self.bg = epi(1, 1, packed=True)
        self.drain_bg()
        if typ == 0:
            e("s_barrier")
            self.poll_check(6 * layer + 4, sMask16)
            self.stream.extend([self.item_pk(True, n) for n in range(20)])
            self.flush(n=6)
            self.bpref(self.opt("bwait3a_%d" % layer, 0))
        else:
            self.bpref(self.opt("bwait3_%d" % layer, (6, 0)[layer]))
        self.publish(6 * layer + 5)
        self.stamp("p3_%d_end" % layer)

    def program(self):
        e = self.e
        lab = "prog_%d" % self.typ
        self.a.label(lab)
        if not self.opt("odiag", 0):
            e("s_getpc_b64 s[20:21]")
            e("s_mov_b32 s22, %s-%s-4" % ("main_typeb" if self.typ == 0 else "main_end", lab))
            e("s_mov_b32 s23, 0x20000")
        for layer in range(2):
            self.queue_b(("WO", layer), sWOb, 25)
            self.queue_b(("W1", layer), sW1b, 30)
            self.queue_b(("W2", layer), sW2b, 60)
        for layer in range(2):
            self.p1(layer)
            self.pk(layer, 2)
            self.p3(layer)
            self.pk(layer, 4)
        if self.stamps:
            self.rstamp(63)
            e("s_lshl_b32 s%d, s2, 2" % sA0)
            e("s_add_u32 s%d, s%d, s%d" % (sA0, sA0, sW))
            e("s_lshl_b32 s%d, s%d, 8" % (sA0, sA0))
            e("s_add_u32 s%d, s%d, %d" % (sA0, sA0, DBG))
            e("buffer_store_dword v%d, v%d, %s, s%d offen" % (vStamp, vFl, sWS, sA0))
        e("s_endpgm")
        for l in self.cold:
            self.a.raw(l)

    def build(self):
        import copy
        a, e = self.a, self.e
        a.label("main_kernel")
        self.prologue()
        e("s_cmp_lt_u32 s%d, 8" % sM)
        e("s_cbranch_scc0 main_typeb")
        st = [Load(ld.tag, ld.pre, ld.issue) for ld in self.stream]
        saved = (list(a.vmq), list(a.dsq), st, self.credit, self.period, self.nstamp, list(a.hist))
        self.program()
        a.label("main_typeb")
        self.log_a = self.log
        self.reset_state()
        self.typ = 1
        a.vmq, a.dsq, self.stream, self.credit, self.period, self.nstamp, a.hist = saved
        self.program()
        a.label("main_end")
        return a.text()
```

```python
from asmlib import Asm
from layout import *
from phase0 import P0, col_table

PREP_WGS = 256
PREP_BLOCK = 256
PREP_LDS = 36 * 1024


def table_asm(a):
    a.raw(".p2align 3")
    a.raw(".type prep_table,@object")
    a.label("prep_table")
    t = col_table()
    for i in range(0, len(t), 8):
        a.raw("    .long " + ", ".join("0x%x" % v for v in t[i:i + 8]))
    a.raw(".size prep_table, %d" % (len(t) * 4))


def gen_prep(main_label, main_end_label, opts=None):
    opts = opts or {}
    a = Asm()
    a._lab = 100000
    e = a.e
    stf = opts.get("pst", "").replace("_", " ")
    diag = opts.get("pdiag", 0)

    def rs(k):
        if diag:
            e("s_memrealtime s[%d:%d]" % (90 + 2 * k, 91 + 2 * k))

    a.label("prep_kernel")
    e("s_cmp_ge_u32 s2, %d" % PREP_WGS)
    e("s_cbranch_scc0 prep_go")
    e("s_endpgm")
    a.label("prep_go")
    rs(0)
    if opts.get("odiag"):
        e("s_memrealtime s[90:91]")
        e("s_load_dwordx2 s[96:97], s[0:1], 0x48")
    e("s_load_dwordx16 s[16:31], s[0:1], 0x0")
    e("s_load_dwordx2 s[4:5], s[0:1], 0x50")
    e("v_lshrrev_b32 v1, 6, v0")
    e("v_and_b32 v2, 63, v0")
    e("v_readfirstlane_b32 s3, v1")
    e("v_lshlrev_b32 v3, 4, v2")
    e("s_getpc_b64 s[34:35]")
    a.label("prep_pc")
    e("s_mov_b32 s6, %d" % WS_USED)
    e("s_mov_b32 s7, 0x20000")
    e("s_add_u32 s12, s34, prep_table-prep_pc")
    e("s_addc_u32 s13, s35, 0")
    e("s_mov_b32 s14, %d" % (1184 * 8))
    e("s_mov_b32 s15, 0x20000")
    e("s_add_u32 s36, s34, %s-prep_pc" % main_label)
    e("s_addc_u32 s37, s35, 0")
    e("s_mov_b32 s38, %s-%s" % (main_end_label, main_label))
    e("s_mov_b32 s39, 0x20000")
    e("s_mov_b32 s32, 0x3f803f80")
    e("s_lshl_b32 s33, s3, 13")
    e("s_and_b32 s8, s2, 7")
    e("s_lshl_b32 s8, s8, 1")
    e("s_lshr_b32 s9, s2, 7")
    e("s_add_u32 s8, s8, s9")
    e("s_bfe_u32 s9, s2, 0x40003")
    sreg = dict(par=56, src=40, ptr={0: 18, 1: 24, 2: 20, 3: 28}, w=3, w8k=33, t=10, m2=52, tab="s[12:15]", ones=32,
                b1=26, b2=30, xp=80, xsrd=48, x=16, m=9, c=8)
    p = P0(a, sreg, 8, 0, "s[4:7]", stf)
    p.lanes(2)
    e("s_waitcnt lgkmcnt(0)")
    p.x_issue(2)
    p.decode(0, 2)
    p.issue(0)
    e("s_lshr_b32 s10, s2, 3")
    e("s_lshl_b32 s10, s10, 2")
    e("s_add_u32 s10, s10, s3")
    e("s_lshl_b32 s10, s10, 10")
    a.vm("pf", "buffer_load_dword v63, v3, s[36:39], s10 offen")
    e("v_mov_b32 v62, 0")
    e("v_lshlrev_b32 v61, 2, v0")
    e("s_lshl_b32 s10, s2, 8")
    e("s_add_u32 s10, s10, %d" % FL)
    e("v_cmp_gt_u32 vcc, 64, v0")
    e("s_and_saveexec_b64 s[54:55], vcc")
    e("s_cbranch_execz prep_nz")
    e("buffer_store_dword v62, v61, s[4:7], s10 offen%s" % stf)
    a.label("prep_nz")
    e("s_mov_b64 exec, s[54:55]")
    p.decode(1, 2)
    if opts.get("pearly", 1):
        p.issue(1)
    hz = opts.get("hz", "no")
    if hz != "no":
        for k in range(4):
            e("v_mov_b32 v%d, 0" % (64 + k))
        e("s_lshl_b32 s10, s2, 2")
        e("s_add_u32 s10, s10, s3")
        e("s_mul_i32 s10, s10, 6144")
        e("s_add_u32 s10, s10, %d" % HB)
        e("s_add_u32 s11, s10, 4096")
        for k in range(6):
            a.vm("hz", "buffer_store_dwordx4 v[64:67], v3, s[4:7], s%d offen offset:%d%s" % (10 + k // 4, (k % 4) * 1024, hz.replace("_", " ")))
    p.x_finish(2, 3)
    p.finish(0, 32768)
    rs(1)
    if not opts.get("pearly", 1):
        p.issue(1)
        if diag:
            e("s_waitcnt vmcnt(5)")
    rs(2)
    p.finish(1, 33792)
    if diag:
        e("s_waitcnt vmcnt(0)")
        rs(3)
        e("s_waitcnt lgkmcnt(0)")
        for k in range(4):
            e("v_mov_b32 v%d, s%d" % (56 + k, 90 + 2 * k))
        e("s_lshl_b32 s45, s2, 2")
        e("s_add_u32 s45, s45, s3")
        e("s_lshl_b32 s45, s45, 4")
        e("s_add_u32 s45, s45, %d" % DBG)
        e("buffer_store_dwordx4 v[56:59], off, s[4:7], s45")
    if opts.get("odiag"):
        e("s_waitcnt vmcnt(0)")
        e("s_memrealtime s[92:93]")
        e("s_mov_b32 s98, 256")
        e("s_mov_b32 s99, 0x20000")
        e("s_waitcnt lgkmcnt(0)")
        e("v_mov_b32 v56, s90")
        e("v_not_b32 v57, v56")
        e("v_mov_b32 v58, s92")
        e("s_mov_b64 exec, 1")
        e("buffer_atomic_umax v57, off, s[96:99], 0")
        e("buffer_atomic_umax v56, off, s[96:99], 0 offset:4")
        e("buffer_atomic_umax v58, off, s[96:99], 0 offset:8")
    e("s_endpgm")
    table_asm(a)
    return a.text()
```

```python
import struct
from asmlib import Asm, Ins
from layout import *

LDS_BYTES_ = 163840
L_CT = 0
L_A = 4096
L_HALO = L_A + 81920
L_RED = L_A + 81920
L_EX = L_A + 102400
L_E3 = L_A + 102400
L_ST = 2048
STAGE = [L_HALO + 4096 * j for j in range(5)] + [L_E3 + 24576 + 4096 * j for j in range(8)]
LDS_BYTES = 163840
EXS = 264
EXT = 16 * EXS
SBH = 64 * 48 * KB

(vL0, vL1, vL2, vKv, vFl, vP3a, vP3b, vXw0, vX32, vXp, vXc, vXv, vM0, vM1, vM2, vM3, vSl, vE3w, vE3r,
 vRw1, vRw2, vRw3, vRr, vG, vHalf, vHh, vHf, vSt, vPoll, vT0, vT1, vT2, vAk, vHst) = range(1, 35)
vSg0, vSg1 = 35, vHst
vRes = 36
W0 = 48
vStamp = 255

sWS, sOUT, sXA, sXB, sCode = "s[4:7]", "s[8:11]", "s[12:15]", "s[16:19]", "s[20:23]"
sW, sC, sM, sCG, sMode, sSpin, sOnes, sFlBase, sFlOwn, sBcur = range(24, 34)
sMask16, sMaskA, sMaskB, sMaskW, sMaskX, sOdd, sPA, sPB, sG0, sPAx, sPBx, sTmp2, sStamp = range(34, 60, 2)
sWOb, sW1b, sW2b, sScale, sInv640, sEps, sNeg, sRtA, sRtT, sK256 = range(60, 70)
SP3 = {0: 70, 1: 71, 2: 72, 3: 73}
sR2, sR4 = 74, 78
sX1, sX3, sWk, sKvo, sKvi, sKfi, sD0 = range(82, 89)
sA0, sA1, sA2, sA3 = range(89, 93)
sOd, sHd, sXd0, sXdh, sStd, sSta, sWQ, sXcc, sXT = range(93, 102)
sKfo = 3
sFlip = 1
sW128 = 0


ODIAG = ["start", "p1_0_a", "p1_0_end", "p2_0_end", "p3_0_end", "p4_0_end", "p1_1_end", "p2_1_end", "p3_1_end", "p4_1_end"]


def fbits(x):
    return struct.unpack("<I", struct.pack("<f", x))[0]


def q(r):
    if isinstance(r, int):
        r = ("v", r)
    return "%s[%d:%d]" % (r[0], r[1], r[1] + 3)


def p2(n):
    return "v[%d:%d]" % (n, n + 1)


def sp(n):
    return "s[%d:%d]" % (n, n + 1)


class Op:
    def __init__(self, kind, fn, cost=4):
        self.kind, self.fn, self.cost = kind, fn, cost


def S_(fn):
    return Op("s", fn)


def V_(fn, cost=4):
    return Op("v", fn, cost)


def B_(fn):
    return Op("b", fn)


def Z_(fn):
    return Op("z", fn, 0)


class Load:
    def __init__(self, tag, pre, issue):
        self.tag, self.pre, self.issue = tag, list(pre), issue
        self.npre = len(self.pre)


class Core:
    def __init__(self, stamps=False, opts=None):
        self.a = Asm()
        self.stamps = stamps
        self.nstamp = 0
        self.stamp_names = []
        self.opts = opts or {}
        self.typ = 0
        self.reset_state()

    def reset_state(self):
        self.free = [("a", n) for n in range(160, 256, 4)] + [("v", n) for n in range(248 if self.stamps else 252, 172, -4)]
        self.retire = set()
        self.bq = []
        self.breg = {}
        self.bgroup = None
        self.b_stop = None
        self.b_on = False
        self.stream = []
        self.credit = 0
        self.fcredit = 0
        self.period = 64
        self.deadline = {}
        self.urgent = set()
        self.now = 0
        self.gap = 0
        self.cold = []
        self.bg = []
        self.hurry = 10 ** 9
        self.marks = set()
        self.timed = []
        self.minlead = None
        self.unit = 0
        self.gapdt = 16
        self.glen = 16
        self.bmin = 0
        self.stage_free = []
        self.sq = []
        self.unstage = False
        self.from_lds = set()
        self.bissue = {}
        self.log = []

    def opt(self, k, d):
        return self.opts.get(k, d)

    def e(self, t):
        return self.a.e(t)

    def ev(self, t, dt=5):
        self.a.e(t)
        self.advance(dt)
        self.try_load()

    def stamp(self, name, fine=False):
        if not fine:
            self.a.raw("    ; @@" + name)
        od = self.opt("odiag", 0)
        if od and name in ODIAG:
            k = ODIAG.index(name)
            sk = self.a.newlabel("od")
            self.a.wait_all(ds=True)
            self.e("s_or_b32 s%d, s2, s%d" % (sStamp, sW))
            self.e("s_cbranch_scc1 %s" % sk)
            self.e("s_memrealtime %s" % sp(sStamp))
            self.e("s_waitcnt lgkmcnt(0)")
            self.e("v_mov_b32 v%d, s%d" % (vT0, sStamp))
            self.e("buffer_store_dword v%d, off, s[20:23], 0 offset:%d" % (vT0, 8 + 4 * k))
            if k == len(ODIAG) - 1:
                self.e("s_mov_b32 s%d, %d" % (sStamp, DBG))
                self.e("buffer_load_dwordx2 v[46:47], off, %s, s%d" % (sWS, sStamp))
                self.e("s_waitcnt vmcnt(0)")
                self.e("buffer_store_dwordx2 v[46:47], off, s[20:23], 0")
            self.a.label(sk)
        if not self.stamps:
            return
        ws = self.opts.get("wst")
        if ws is not None:
            if name == ws + "_begin":
                self.a.whook = self.wstamp
            elif name == ws + "_end":
                self.a.whook = None
            elif name != "start":
                return
            self.wstamp(name)
            return
        only = self.opts.get("only")
        if only is not None:
            if name != "start" and not name.startswith(only):
                return
        elif fine:
            return
        if self.opt("clk", 0) and not (name == "start" or name.endswith("_end") or name.endswith("_a") or name.endswith("loop")):
            return
        self.a.wait_all(ds=True)
        self.e("s_memtime %s" % sp(sStamp))
        self.e("s_waitcnt lgkmcnt(0)")
        self.e("v_writelane_b32 v%d, s%d, %d" % (vStamp, sStamp, self.nstamp))
        if self.opt("clk", 0):
            self.rstamp(30 + self.nstamp)
        if self.typ == 0:
            self.stamp_names.append(name)
        self.nstamp += 1

    def wstamp(self, name):
        if self.nstamp >= 61 or (name != "start" and self.unit < self.opt("wfrom", 0)):
            return
        self.a.dsq = []
        self.e("s_memtime %s" % sp(sStamp))
        self.e("s_waitcnt lgkmcnt(0)")
        self.e("v_writelane_b32 v%d, s%d, %d" % (vStamp, sStamp, self.nstamp))
        if self.typ == self.opt("wtyp", 0) or name == "start":
            self.stamp_names.append("%02d u%d %s" % (self.nstamp, self.unit, name))
        self.nstamp += 1

    def rstamp(self, lane):
        if not self.stamps:
            return
        self.a.wait_all(ds=True)
        self.e("s_memrealtime %s" % sp(sStamp))
        self.e("s_waitcnt lgkmcnt(0)")
        self.e("v_writelane_b32 v%d, s%d, %d" % (vStamp, sStamp, lane))

    def mfma(self, d, wa, xb, first=False):
        self.e("v_mfma_f32_16x16x32_bf16 %s, %s, %s, %s" % (q(d), q(wa), q(xb), "0" if first else q(d)))

    def mfma32(self, d, wa, xb, first=False):
        dd = "v[%d:%d]" % (d, d + 15)
        self.e("v_mfma_f32_32x32x16_bf16 %s, %s, %s, %s" % (dd, q(wa), q(xb), "0" if first else dd))

    @staticmethod
    def voff(i):
        return (vL0, vL1, vL2)[i >> 2], (i & 3) * 1024

    def cur_period(self):
        if self.stream and self.stream[0].tag in self.urgent:
            return self.opt("uper", 32)
        if self.minlead is not None:
            ds = []
            if self.stream and self.stream[0].tag in self.deadline:
                ds.append(self.deadline[self.stream[0].tag])
            if self.b_ready() and self.bq[0][0] in self.deadline:
                ds.append(self.deadline[self.bq[0][0]])
            if ds and min(ds) - self.unit < self.minlead:
                return 16
        return self.period

    def advance(self, dt):
        self.now += dt
        self.credit = min(self.credit + dt, self.cur_period() + 24)
        self.fcredit = min(self.fcredit + dt, self.bmin + 40 if self.bmin else self.opt("fcap", 900))

    def b_ready(self):
        return bool(self.bq and (self.free or self.stage_free) and (self.b_stop is None or self.bq[0][0][0] == self.b_stop))

    def bcost(self):
        c = self.opt("w1cost", 110) if self.bq[0][0][0][0] == "W1" else self.opt("wcost", 72)
        return max(c, self.bmin)

    def pick_load(self):
        if self.credit < self.cur_period():
            return None
        if self.b_ready():
            db = self.deadline.get(self.bq[0][0])
            if db is not None:
                if (not self.stream) or db < self.deadline.get(self.stream[0].tag, -1):
                    return "b"
            elif self.b_on and self.fcredit >= self.bcost() and (
                    not self.stream or (self.opt("bmix", 0) and self.stream[0].tag not in self.urgent)):
                return "b"
        return "s" if self.stream else None

    def issue_head(self):
        ld = self.stream.pop(0)
        for t in ld.pre:
            self.e(t)
        ld.issue()

    def try_load(self):
        k = self.pick_load()
        if k is None:
            return False
        per = self.cur_period()
        if k == "b":
            self.bpref(1)
        else:
            self.issue_head()
        self.credit -= per
        return True

    def flush(self, upto=None, n=None):
        if n is None:
            if upto is None:
                n = len(self.stream)
            else:
                n = max([i + 1 for i, ld in enumerate(self.stream) if ld.tag in upto] or [0])
        n = min(n, len(self.stream))
        for _ in range(n):
            self.issue_head()

    def push_front(self, items):
        self.stream[1:1] = items

    def vwait(self, tags):
        self.flush(upto=tags)
        self.a.wait(vm=tags)

    def queue_b(self, name, base, n):
        self.bq += [((name, i), base, i) for i in range(n)]

    def b_pre(self):
        key, base, i = self.bq[0]
        if self.bgroup != (base, i // 12):
            return "s_add_u32 s%d, s%d, %d" % (sBcur, base, (i // 12) * 12288)
        return None

    def b_do_pre(self):
        t = self.b_pre()
        if t:
            self.e(t)
            self.bgroup = (self.bq[0][1], self.bq[0][2] // 12)

    def bpref(self, n=1):
        done = 0
        while done < n and self.b_ready():
            self.fcredit = max(self.fcredit - self.bcost(), -400)
            self.b_do_pre()
            if not self.free:
                if self.stream and len(self.stream[0].pre) < self.stream[0].npre:
                    self.issue_head()
                key, base, i = self.bq.pop(0)
                assert key[0][0] == "W2"
                slot = self.stage_free.pop(0)
                vo, imm = self.voff(i % 12)
                self.e("s_add_u32 m0, s%d, %d" % (sWk, STAGE[slot] - imm))
                if not self.opt("x_nob", 0):
                    self.a.vm(key, "buffer_load_dwordx4 v%d, %s, s%d offen offset:%d lds" % (vo, sWS, sBcur, imm))
                self.sq.append((key, slot))
                done += 1
                continue
            key, base, i = self.bq.pop(0)
            r = self.free.pop(0)
            self.breg[key] = r
            self.bissue[key] = self.now
            vo, imm = self.voff(i % 12)
            nt = " nt" if key[0][0] in str(self.opt("nt", "")).split("+") else ""
            if not self.opt("x_nob", 0):
                self.a.vm(key, "buffer_load_dwordx4 %s, v%d, %s, s%d offen offset:%d%s" % (q(r), vo, sWS, sBcur, imm, nt))
            done += 1
        return done

    def bget(self, keys):
        for key in keys:
            if key in self.from_lds:
                self.need(("un", key))
            while key not in self.breg:
                assert all(k != key for k, _ in self.sq), "staged fragment %s has no register" % (key,)
                assert self.bpref(1), "no free register for %s" % (key,)
            if key in self.bissue:
                self.log.append((key, self.now - self.bissue.pop(key)))
        self.a.wait(vm=list(keys), ds=[k for k in keys if k in self.from_lds])
        return [self.breg[k] for k in keys]

    def bfree(self, key):
        r = self.breg.pop(key)
        if self.unstage and self.sq:
            k2, slot = self.sq.pop(0)
            self.breg[k2] = r
            self.from_lds.add(k2)
            base, off = (vSg0, STAGE[slot] - STAGE[0]) if slot < 5 else (vSg1, STAGE[slot] - STAGE[5])
            self.bg += [S_(lambda: self.a.wait(vm=[k2])),
                        V_(lambda: self.a.ds(k2, "ds_read_b128 %s, v%d offset:%d" % (q(r), base, off))),
                        self.mark(("un", k2))]
            return
        if r not in self.retire:
            self.free.append(r)

    LEND = [("v", W0 + 116 + 4 * i) for i in range(3)]

    def lend(self):
        self.retire = set()
        self.free = self.LEND + self.free

    def unlend(self):
        self.retire = set(self.LEND)
        self.free = [r for r in self.free if r not in self.retire]

    def poll_issue(self, soff=sFlBase):
        self.a.vm("poll", "buffer_load_dword v%d, v%d, %s, s%d offen sc1" % (vPoll, vFl, sWS, soff))

    def poll_check(self, target, mask, soff=sFlBase, acquire=True):
        a = self.a
        again, top, acq, dn = a.newlabel("pollr"), a.newlabel("poll"), a.newlabel("acq"), a.newlabel("polld")
        a.wait(vm=["poll"])
        a.label(top)
        self.e("v_cmp_le_u32 vcc, %s, v%d" % (target, vPoll))
        self.e("s_andn2_b64 %s, %s, vcc" % (sp(sTmp2), sp(mask)))
        self.e("s_cbranch_scc1 %s" % again)
        self.cold += [again + ":",
                      "    buffer_load_dword v%d, v%d, %s, s%d offen sc1" % (vPoll, vFl, sWS, soff),
                      "    s_sub_u32 s%d, s%d, 1" % (sSpin, sSpin),
                      "    s_waitcnt vmcnt(0)",
                      "    s_cbranch_scc0 %s" % top,
                      "    s_endpgm"]
        if acquire:
            self.e("s_cmp_lg_u32 s%d, 0" % sMode)
            self.e("s_cbranch_scc1 %s" % acq)
            a.label(dn)
            self.cold += [acq + ":", "    buffer_inv sc1", "    s_waitcnt vmcnt(0)", "    s_branch %s" % dn]

    def poll(self, target, mask, soff=sFlBase, acquire=True):
        self.poll_issue(soff)
        self.poll_check(target, mask, soff, acquire)

    def publish(self, value, tags=("st",)):
        a = self.a
        slow, dn = a.newlabel("pubs"), a.newlabel("pubd")
        self.e("v_mov_b32 v%d, %d" % (vT0, value))
        self.e("s_mov_b64 exec, 1")
        self.e("s_cmp_lg_u32 s%d, 0" % sMode)
        a.wait(vm=list(tags))
        self.e("s_cbranch_scc1 %s" % slow)
        self.e("buffer_store_dword v%d, off, %s, s%d" % (vT0, sWS, sFlOwn))
        a.label(dn)
        self.cold += [slow + ":", "    buffer_wbl2 sc1", "    s_waitcnt vmcnt(0)",
                      "    buffer_store_dword v%d, off, %s, s%d sc1" % (vT0, sWS, sFlOwn), "    s_branch %s" % dn]
        a.vmq.append("flag")
        self.e("s_mov_b64 exec, -1")

    def mark(self, name):
        self.marks.discard(name)
        return Z_(lambda: self.marks.add(name))

    def run_op(self, x, paced=False):
        if isinstance(x, int):
            return
        if isinstance(x, Op):
            x.fn()
            if paced:
                self.advance(max(x.cost, 4))
                self.try_load()
        elif paced:
            self.ev(x)
        elif not self.opt("x_nobg", 0):
            self.e(x)

    def later(self, gaps, fn):
        self.timed.append([gaps, fn])

    def run_timed(self):
        while self.timed:
            self.timed.pop(0)[1]()

    def need(self, name):
        while name not in self.marks:
            self.run_op(self.bg.pop(0))

    def drain_bg(self, timed=True):
        self.gap = 0
        while self.bg:
            self.run_op(self.bg.pop(0), paced=True)
        while self.timed and timed:
            self.timed.pop(0)[1]()

    def fits(self, x, limit):
        t = self.a.t
        if isinstance(x, Op):
            if x.kind == "z":
                return True
            if x.kind == "b":
                return t <= limit - 12
            if x.kind == "s":
                return t + 4 <= limit
            return max(t, 8) + min(x.cost, 8) <= limit
        return Asm.after(t, Ins(x)) <= limit

    @staticmethod
    def is_scalar(x):
        if isinstance(x, Op):
            return x.kind in ("s", "z")
        return isinstance(x, str) and x.startswith("s_")

    def fill_gap(self, must_s=None, must_v=None):
        a = self.a
        self.advance(self.gapdt)
        limit = (self.opt("lim32", 32) if self.glen == 32 else 16) + (4 if len(self.bg) > self.hurry else 0) + (4 if len(self.bg) > 2 * self.hurry else 0)
        blocked = self.gap > 0
        if blocked:
            self.gap -= 1
        for x in self.timed:
            x[0] -= 1
        if self.timed and self.timed[0][0] <= 0:
            self.timed.pop(0)[1]()
        if must_s:
            must_s()
        while a.t <= 4:
            if self.stream and self.stream[0].pre:
                self.e(self.stream[0].pre.pop(0))
            elif self.bq and self.b_pre() and (self.b_on or self.deadline):
                self.b_do_pre()
            elif self.bg and not blocked and not isinstance(self.bg[0], int) and \
                    (self.is_scalar(self.bg[0]) or (isinstance(self.bg[0], Op) and self.bg[0].kind == "b")):
                self.run_op(self.bg.pop(0))
            else:
                break
        if must_v:
            must_v()
        k = self.pick_load()
        if k and max(a.t, 8) + 8 <= limit:
            npre = len(self.stream[0].pre) if k == "s" else (1 if self.b_pre() else 0)
            if npre == 0 or self.credit >= self.cur_period() + 16 or (self.glen > 16 and max(a.t, 8) + 8 + 4 * npre <= limit):
                self.try_load()
        while self.bg and not blocked:
            x = self.bg[0]
            if isinstance(x, int):
                self.bg.pop(0)
                self.gap = (x * 16 + self.glen - 1) // self.glen
                if x == 0 and self.glen > 16:
                    continue
                break
            if not self.fits(x, limit):
                break
            self.run_op(self.bg.pop(0))

    def unit_loop(self, n, read, compute, look, pre_read=None, pre_unit=None, wait_every=1, name="", every=4):
        a = self.a
        pre_read = pre_read or {}
        pre_unit = pre_unit or {}

        def rd(u):
            if u in pre_read:
                pre_read[u]()
            a.ds(("U", u), read(u))

        def wt(u):
            if u < n and u % wait_every == 0:
                a.wait(ds=[("U", min(u + wait_every - 1, n - 1))])

        for u in range(min(look, n)):
            rd(u)
        for u in range(n):
            self.unit = u
            if u % every == 0:
                self.stamp("%s_u%d" % (name, u), fine=True)
            if u in pre_unit:
                pre_unit[u]()
            ms = compute(u)
            wt(u)
            for j, m in enumerate(ms):
                m()
                self.fill_gap(must_s=(lambda: wt(u + 1)) if j == len(ms) - 1 else None,
                              must_v=(lambda: rd(u + look)) if (j == 0 and u + look < n) else None)
```

```python
from asmlib import Asm
from layout import *
from phase0 import P0, col_table

PREP_WGS = 256
PREP_BLOCK = 256
PREP_LDS = 36 * 1024


def table_asm(a):
    a.raw(".p2align 3")
    a.raw(".type prep_table,@object")
    a.label("prep_table")
    t = col_table()
    for i in range(0, len(t), 8):
        a.raw("    .long " + ", ".join("0x%x" % v for v in t[i:i + 8]))
    a.raw(".size prep_table, %d" % (len(t) * 4))


def gen_prep(main_label, main_end_label, opts=None):
    opts = opts or {}
    a = Asm()
    a._lab = 100000
    e = a.e
    stf = opts.get("pst", "").replace("_", " ")
    diag = opts.get("pdiag", 0)

    def rs(k):
        if diag:
            e("s_memrealtime s[%d:%d]" % (90 + 2 * k, 91 + 2 * k))

    a.label("prep_kernel")
    e("s_cmp_ge_u32 s2, %d" % PREP_WGS)
    e("s_cbranch_scc0 prep_go")
    e("s_endpgm")
    a.label("prep_go")
    rs(0)
    if opts.get("odiag"):
        e("s_memrealtime s[90:91]")
    e("s_load_dwordx16 s[16:31], s[0:1], 0x0")
    e("s_load_dwordx2 s[4:5], s[0:1], 0x50")
    e("v_lshrrev_b32 v1, 6, v0")
    e("v_and_b32 v2, 63, v0")
    e("v_readfirstlane_b32 s3, v1")
    e("v_lshlrev_b32 v3, 4, v2")
    e("s_getpc_b64 s[34:35]")
    a.label("prep_pc")
    e("s_mov_b32 s6, %d" % WS_USED)
    e("s_mov_b32 s7, 0x20000")
    e("s_add_u32 s12, s34, prep_table-prep_pc")
    e("s_addc_u32 s13, s35, 0")
    e("s_mov_b32 s14, %d" % (1184 * 8))
    e("s_mov_b32 s15, 0x20000")
    e("s_add_u32 s36, s34, %s-prep_pc" % main_label)
    e("s_addc_u32 s37, s35, 0")
    e("s_mov_b32 s38, %s-%s" % (main_end_label, main_label))
    e("s_mov_b32 s39, 0x20000")
    e("s_mov_b32 s32, 0x3f803f80")
    e("s_lshl_b32 s33, s3, 13")
    e("s_and_b32 s8, s2, 7")
    e("s_lshl_b32 s8, s8, 1")
    e("s_lshr_b32 s9, s2, 7")
    e("s_add_u32 s8, s8, s9")
    e("s_bfe_u32 s9, s2, 0x40003")
    sreg = dict(par=56, src=40, ptr={0: 18, 1: 24, 2: 20, 3: 28}, w=3, w8k=33, t=10, m2=52, tab="s[12:15]", ones=32,
                b1=26, b2=30, xp=80, xsrd=48, x=16, m=9, c=8)
    p = P0(a, sreg, 8, 0, "s[4:7]", stf, opts.get("pld", "_nt").replace("_", " "), opts.get("pxf", "_nt").replace("_", " "))
    p.lanes(2)
    e("s_waitcnt lgkmcnt(0)")
    p.x_issue(2)
    p.decode(0, 2)
    p.issue(0)
    e("s_lshr_b32 s10, s2, 3")
    e("s_lshl_b32 s10, s10, 2")
    e("s_add_u32 s10, s10, s3")
    e("s_lshl_b32 s10, s10, 10")
    a.vm("pf", "buffer_load_dword v63, v3, s[36:39], s10 offen")
    e("v_mov_b32 v62, 0")
    e("v_lshlrev_b32 v61, 2, v0")
    e("s_lshl_b32 s10, s2, 8")
    e("s_add_u32 s10, s10, %d" % FL)
    e("v_cmp_gt_u32 vcc, 64, v0")
    e("s_and_saveexec_b64 s[54:55], vcc")
    e("s_cbranch_execz prep_nz")
    e("buffer_store_dword v62, v61, s[4:7], s10 offen%s" % stf)
    a.label("prep_nz")
    e("s_mov_b64 exec, s[54:55]")
    p.decode(1, 2)
    if opts.get("pearly", 1):
        p.issue(1)
    hz = opts.get("hz", "no")
    if hz != "no":
        for k in range(4):
            e("v_mov_b32 v%d, 0" % (64 + k))
        e("s_lshl_b32 s10, s2, 2")
        e("s_add_u32 s10, s10, s3")
        e("s_mul_i32 s10, s10, 6144")
        e("s_add_u32 s10, s10, %d" % HB)
        e("s_add_u32 s11, s10, 4096")
        for k in range(6):
            a.vm("hz", "buffer_store_dwordx4 v[64:67], v3, s[4:7], s%d offen offset:%d%s" % (10 + k // 4, (k % 4) * 1024, hz.replace("_", " ")))
    p.x_finish(2, 3)
    p.finish(0, 32768)
    rs(1)
    if not opts.get("pearly", 1):
        p.issue(1)
        if diag:
            e("s_waitcnt vmcnt(5)")
    rs(2)
    p.finish(1, 33792)
    if diag:
        e("s_waitcnt vmcnt(0)")
        rs(3)
        e("s_waitcnt lgkmcnt(0)")
        for k in range(4):
            e("v_mov_b32 v%d, s%d" % (56 + k, 90 + 2 * k))
        e("s_lshl_b32 s45, s2, 2")
        e("s_add_u32 s45, s45, s3")
        e("s_lshl_b32 s45, s45, 4")
        e("s_add_u32 s45, s45, %d" % DBG)
        e("buffer_store_dwordx4 v[56:59], off, s[4:7], s45")
    if opts.get("odiag"):
        e("s_waitcnt vmcnt(0)")
        e("s_memrealtime s[92:93]")
        e("s_or_b32 s94, s2, s3")
        e("s_cbranch_scc1 prep_od")
        e("s_waitcnt lgkmcnt(0)")
        e("v_mov_b32 v56, s90")
        e("v_mov_b32 v57, s92")
        e("s_mov_b32 s94, %d" % DBG)
        e("buffer_store_dwordx2 v[56:57], off, s[4:7], s94")
        a.label("prep_od")
    e("s_endpgm")
    table_asm(a)
    return a.text()
```

```python
import math
from core import *


class Gen(Core):
    def dma(self, tag, srd, soff, vo=vL0, imm=0):
        def f():
            if not self.opt("x_nodma", 0):
                self.a.vm(tag, "buffer_load_dwordx4 v%d, %s, %s offen offset:%d%s lds" % (vo, srd, soff, imm, self.opt("dmaf", " sc1").replace("_", " ")))
        return f

    def items_p1(self, sb, half, tag, shift=0):
        out = []
        for j in range(5):
            for z in range(2):
                off = half * 40960 + j * 4096 + z * 1024
                pre = ["s_add_u32 m0, s%d, %d" % (sX1, L_A + off + shift)]
                if shift:
                    pre.append("s_add_u32 s%d, s%d, %d" % (sD0, sX1, L_A + off))
                out.append(Load((tag, half, j), pre, self.dma((tag, half, j), (sXA, sXB)[sb], "s%d" % sD0 if shift else "m0")))
        return out

    def items_p3(self, sb, i, tag):
        return [Load((tag, i, j), ["s_add_u32 m0, s%d, %d" % (SP3[i], L_A + j * 4096)],
                     self.dma((tag, i, j), (sXA, sXB)[sb], "m0")) for j in range(5)]

    def items_stats(self, sb, raw=None):
        return [Load(("S", sb), ["s_add_u32 s%d, s%d, %d" % (sD0, sSta, sb * 65536)],
                     lambda: self.a.vm(("S", sb), "buffer_load_dwordx4 %s, v%d, %s, s%d offen sc1" % (q(raw or self.RAW), vL0, sWS, sD0)))]

    def pk_order(self, is4):
        NK = 12 if is4 else 5
        head = NK - self.opt("p4tail", 4) if is4 else self.opt("p2head%d" % self.layer, (2, 0)[self.layer])
        order = [(i, k) for k in range(head) for i in (1, 2, 3, 0)]
        if head >= 2:
            order.remove((0, 0))
            order.insert(order.index((0, 1)), (0, 0))
        order += [(i, k) for i in (1, 2, 3, 0) for k in range(head, NK)]
        return order

    def item_pk(self, is4, n):
        i, k = self.pk_order(is4)[n]
        vo, imm = self.voff(k)
        return Load(("Ak", n), ["s_add_u32 m0, s%d, %d" % (sX3, L_A + (n % 20) * 1024 - imm)],
                    self.dma(("Ak", n), sWS, "s%d" % ((sR4 if is4 else sR2) + i), vo, imm))

    def item_touch(self, nlines, mstride, first=0):
        pre = ["v_lshrrev_b32 v%d, 2, v%d" % (vT2, vFl),
               "v_and_b32 v%d, 31, v%d" % (vT1, vT2),
               "v_min_u32 v%d, %d, v%d" % (vT1, nlines - 1, vT1),
               "v_lshlrev_b32 v%d, 7, v%d" % (vT1, vT1),
               "v_lshrrev_b32 v%d, 5, v%d" % (vT2, vT2),
               "s_mov_b32 s%d, %d" % (sD0, SBH),
               "v_mad_u32_u24 v%d, v%d, s%d, v%d" % (vT1, vT2, sD0, vT1),
               "s_mul_i32 s%d, s%d, %d" % (sD0, sM, mstride - 1280),
               "s_add_u32 s%d, s%d, s%d" % (sD0, sD0, sOd)]
        return Load("touch", pre, lambda: self.a.vm("touch", "buffer_load_dword v0, v%d, %s, s%d offen offset:%d%s" % (
            vT1, sWS, sD0, first * 128, self.opt("tf", "").replace("_", " ") if self.layer == 0 else "")))

    def item_code(self):
        pre = ["s_lshl_b32 s%d, s%d, 2" % (sD0, sCG),
               "s_add_u32 s%d, s%d, s%d" % (sD0, sD0, sW),
               "s_lshl_b32 s%d, s%d, 11" % (sD0, sD0),
               "v_lshlrev_b32 v%d, 5, v%d" % (vT1, vFl),
               "v_and_b32 v%d, 0x780, v%d" % (vT1, vT1)]
        return Load("touch", pre, lambda: self.a.vm("touch", "buffer_load_dword v0, v%d, %s, s%d offen" % (vT1, sCode, sD0)))

    def stats_ops(self, raw, dst):
        r = raw
        return [
            "v_add_f32 v%d, v%d, v%d" % (r, r, r + 2),
            "v_add_f32 v%d, v%d, v%d" % (r + 1, r + 1, r + 3), 0,
            "v_permlane16_swap_b32 v%d, v%d" % (r, r + 1),
            "v_add_f32 v%d, v%d, v%d" % (r, r, r + 1),
            "v_mov_b32 v%d, v%d" % (r + 1, r), 0,
            "v_permlane32_swap_b32 v%d, v%d" % (r, r + 1),
            "v_add_f32 v%d, v%d, v%d" % (r, r, r + 1),
            "v_mov_b32 v%d, v%d" % (r + 1, r), 0,
            "v_permlane16_swap_b32 v%d, v%d" % (r, r + 1),
            "v_mul_f32 v%d, s%d, v%d" % (dst, sInv640, r),
            "v_mul_f32 v%d, s%d, v%d" % (r + 1, sInv640, r + 1),
            "v_fma_f32 v%d, -v%d, v%d, v%d" % (r + 1, dst, dst, r + 1),
            "v_max_f32 v%d, 0, v%d" % (r + 1, r + 1),
            "v_add_f32 v%d, s%d, v%d" % (r + 1, sEps, r + 1),
            "v_rsq_f32 v%d, v%d" % (dst + 1, r + 1),
        ]

    def stats_share(self, sb, raw=None):
        r = raw or self.RAW
        return ([S_(lambda: self.vwait([("S", sb)]))] + self.stats_ops(r, r + 2) + ["v_add_u32 v%d, s%d, v%d" % (r, sW128, vSl)] +
                [V_(lambda: self.a.ds("sw", "ds_write_b64 v%d, %s offset:%d" % (r, p2(r + 2), sb * 512)), 16)])

    def DS(self, tag, txt, cost=4):
        return V_(lambda: self.a.ds(tag, txt), cost)

    def WD(self, tags):
        return S_(lambda: self.a.wait(ds=tags))

    def prologue(self):
        a, e, ev = self.a, self.e, self.ev
        e("s_cmp_ge_u32 s2, 256")
        e("s_cbranch_scc0 main_go")
        e("s_endpgm")
        a.label("main_go")
        e("s_load_dwordx2 s[4:5], s[0:1], 0x50")
        e("s_load_dwordx2 s[8:9], s[0:1], 0x40")
        if self.opt("odiag", 0):
            e("s_load_dwordx2 s[20:21], s[0:1], 0x48")
        lane, tok, g, t0, t1 = W0 + 112, W0 + 113, W0 + 114, W0 + 115, W0 + 116
        tid = W0 + 118
        vq1 = W0 + 117
        e("v_lshrrev_b32 v%d, 6, v0" % vT0)
        e("v_and_b32 v%d, 63, v0" % lane)
        e("v_readfirstlane_b32 s%d, v%d" % (sW, vT0))
        e("v_lshlrev_b32 v%d, 4, v%d" % (vL0, lane))
        e("s_mov_b32 s6, %d" % WS_USED)
        e("s_mov_b32 s7, 0x20000")
        e("s_mov_b32 s10, %d" % (S * D * 2))
        e("s_mov_b32 s11, 0x20000")
        e("s_mov_b32 s14, %d" % (L_A + 80 * KB))
        e("s_mov_b32 s15, 0x20000")
        e("s_mov_b32 s18, %d" % (L_A + 80 * KB))
        e("s_mov_b32 s19, 0x20000")
        e("s_and_b32 s%d, s2, 7" % sC)
        e("s_lshl_b32 s%d, s%d, 1" % (sC, sC))
        e("s_lshr_b32 s%d, s2, 7" % sA0)
        e("s_add_u32 s%d, s%d, s%d" % (sC, sC, sA0))
        e("s_bfe_u32 s%d, s2, 0x40003" % sM)
        e("s_lshl_b32 s%d, s%d, 2" % (sRtA, sC))
        e("s_mul_i32 s%d, s%d, %d" % (sD0, sC, 80 * KB))
        e("s_add_u32 s%d, s%d, %d" % (sD0, sD0, X0 - L_A))
        e("s_lshl_b32 s%d, s%d, 10" % (sWk, sW))
        e("s_and_b32 s%d, s%d, 1" % (sA0, sW))
        e("s_mul_i32 s%d, s%d, 20480" % (sX1, sA0))
        e("s_and_b32 s%d, s%d, 2048" % (sA0, sWk))
        e("s_add_u32 s%d, s%d, s%d" % (sX1, sX1, sA0))
        e("s_lshl_b32 s%d, s%d, 2" % (sA3, sM))
        e("s_add_u32 s%d, s%d, s%d" % (sA3, sA3, sW))
        e("s_mul_i32 s%d, s%d, %d" % (sWQ, sA3, 40 * KB))
        e("s_cmp_eq_u32 s%d, 3" % sW)
        e("s_cselect_b32 s%d, 128, 0" % sA1)
        e("v_lshrrev_b32 v%d, 1, v%d" % (vq1, vL0))
        e("v_and_b32 v%d, v%d, v%d" % (vq1, vq1, vL0))
        e("v_and_b32 v%d, s%d, v%d" % (vq1, sA1, vq1))
        e("v_sub_u32 v%d, v%d, v%d" % (vq1, vL0, vq1))
        e("v_add_u32 v%d, 4096, v%d" % (vL1, vL0))
        e("v_add_u32 v%d, 4096, v%d" % (vL2, vL1))
        e("s_add_u32 s%d, s%d, s%d" % (sOd, sW, sRtA))
        e("s_mul_i32 s%d, s%d, %d" % (sOd, sOd, 48 * KB))
        e("s_mul_i32 s%d, s%d, 1280" % (sA0, sM))
        e("s_add_u32 s%d, s%d, s%d" % (sOd, sOd, sA0))
        e("s_add_u32 s%d, s%d, %d" % (sOd, sOd, OB))
        e("v_lshlrev_b32 v%d, 2, v%d" % (vFl, lane))
        e("v_mov_b32 v%d, v0" % tid)
        e("s_waitcnt lgkmcnt(0)")
        e("s_add_u32 s12, s4, s%d" % sD0)
        e("s_addc_u32 s13, s5, 0")
        e("s_add_u32 s16, s12, %d" % (64 * 20 * KB))
        e("s_addc_u32 s17, s13, 0")
        if self.opt("odiag", 0):
            e("s_mov_b32 s22, 256")
            e("s_mov_b32 s23, 0x20000")
        self.rstamp(62)
        self.stamp("start")
        assert WQ == 0
        h0, h1 = self.items_p1(0, 0, "A0"), self.items_p1(0, 1, "A0")

        def wq(ks, t):
            pre = ["s_add_u32 s%d, s%d, 4096" % (sWQ, sWQ)] if (t == 0 and ks % 2 == 0 and ks > 0) else []
            nt = " nt" if "WQ" in str(self.opt("nt", "")).split("+") else ""
            return Load(("WQ", ks), pre, lambda: a.vm(("WQ", ks), "buffer_load_dwordx4 %s, v%d, %s, s%d offen offset:%d%s" % (
                q(("a", (ks * 2 + t) * 4)), vq1, sWS, sWQ, (ks % 2) * 2048 + t * 1024, nt)))

        def chunk(j):
            return ([wq(4 * j, 0), wq(4 * j, 1)] + h0[2 * j:2 * j + 2] + h1[2 * j:2 * j + 2] +
                    [wq(ks, t) for ks in range(4 * j + 1, 4 * j + 4) for t in range(2)])

        te = self.opt("tearly", 0)
        self.stream = chunk(0)
        if te == 1:
            self.stream = [self.item_touch(24, 3072)] + self.stream
        if te == 2:
            self.stream.append(self.item_touch(24, 3072))
        self.flush()
        self.stream = chunk(1)
        self.period = self.opt("pper", 60)
        ev("s_and_b32 s%d, s%d, 7" % (sCG, sM))
        ev("s_lshl_b32 s%d, s%d, 7" % (sW128, sW))
        ev("s_mul_i32 s%d, s%d, 20480" % (sX3, sW))
        ev("s_mul_i32 s%d, s%d, %d" % (sW1b, sA3, 30 * KB))
        ev("s_add_u32 s%d, s%d, %d" % (sW1b, sW1b, W1))
        ev("s_lshl_b32 s%d, s%d, 2" % (sFlOwn, sA3))
        ev("s_lshr_b32 s%d, s%d, 3" % (sRtT, sM))
        ev("s_lshl_b32 s%d, s%d, 6" % (sRtT, sRtT))
        ev("s_add_u32 s%d, s%d, s%d" % (sRtT, sRtT, sRtA))
        ev("s_lshl_b32 s%d, s%d, 10" % (sSta, sRtA))
        ev("s_add_u32 s%d, s%d, s%d" % (sSta, sSta, sWk))
        ev("s_add_u32 s%d, s%d, %d" % (sSta, sSta, ST0))
        ev("s_getreg_b32 s%d, hwreg(HW_REG_XCC_ID)" % sXcc)
        ev("s_and_b32 s%d, s%d, 15" % (sXcc, sXcc))
        ev("s_add_u32 s%d, s%d, 1" % (sXcc, sXcc))
        ev("s_lshl_b32 s%d, s%d, 7" % (sA2, sC))
        ev("s_add_u32 s%d, s%d, %d" % (sXT, sA2, XT))
        ev("s_lshl_b32 s%d, s%d, 2" % (sA2, sM))
        ev("s_add_u32 s%d, s%d, s%d" % (sA2, sA2, sXT))
        ev("v_mov_b32 v%d, s%d" % (vT0, sXcc))
        e("s_cmp_lg_u32 s%d, 0" % sW)
        e("s_cbranch_scc1 main_noxt")
        e("s_mov_b64 exec, 1")
        e("buffer_store_dword v%d, off, %s, s%d sc1" % (vT0, sWS, sA2))
        e("s_mov_b64 exec, -1")
        a.label("main_noxt")
        ev("v_and_b32 v%d, 15, v%d" % (tok, lane))
        ev("v_lshrrev_b32 v%d, 4, v%d" % (g, lane))
        ev("v_lshrrev_b32 v%d, 5, v%d" % (t0, lane))
        ev("v_lshlrev_b32 v%d, 8, v%d" % (t0, t0))
        ev("v_lshl_add_u32 v%d, v%d, 4, v%d" % (t0, tok, t0))
        ev("v_and_b32 v%d, 1, v%d" % (t1, g))
        ev("s_mov_b32 s%d, 20480" % sA0)
        ev("v_mad_u32_u24 v%d, v%d, s%d, v%d" % (vX32, t1, sA0, t0))
        ev("v_add_u32 v%d, %d, v%d" % (vX32, L_A, vX32))
        c0 = 176
        ev("s_lshl_b32 s%d, s%d, 11" % (sA0, sM))
        ev("s_add_u32 s%d, s%d, %d" % (sA0, sA0, CG))
        ev("s_lshl_b32 s%d, s%d, 9" % (sA1, sCG))
        ev("s_add_u32 s%d, s%d, %d" % (sA1, sA1, CB2 - 96 * 16))
        c0x = c0
        c0 = c0 + 4
        ev("v_lshlrev_b32 v%d, 4, v%d" % (c0 + 16, tid))
        ev("v_add_u32 v%d, s%d, v%d" % (c0 + 17, sA0, c0 + 16))
        ev("v_add_u32 v%d, s%d, v%d" % (c0 + 18, sA1, c0 + 16))
        ev("v_mov_b32 v%d, 0x7ffffff0" % (c0 + 19))
        ev("v_cmp_gt_u32 vcc, 54, v%d" % tid)
        ev("v_cndmask_b32 v%d, v%d, v%d, vcc" % (c0 + 20, c0 + 19, c0 + 17))
        ev("v_cmp_gt_u32 vcc, 78, v%d" % tid)
        ev("v_cndmask_b32 v%d, v%d, v%d, vcc" % (c0 + 17, c0 + 19, c0 + 17))
        ev("v_subrev_u32 v%d, 96, v%d" % (c0 + 21, tid))
        ev("v_cmp_gt_u32 vcc, 20, v%d" % (c0 + 21))
        ev("v_cndmask_b32 v%d, v%d, v%d, vcc" % (c0 + 17, c0 + 17, c0 + 18))
        ct = [Load("ct", [], lambda: a.vm("ct", "buffer_load_dwordx4 %s, v%d, %s, 0 offen" % (q(c0x), c0 + 17, sWS)))]
        for k in range(1, 5):
            ct.append(Load("ct", ["s_mov_b32 s%d, %d" % (sD0, k * 32768)], lambda k=k: a.vm(
                "ct", "buffer_load_dwordx4 %s, v%d, %s, s%d offen" % (q(c0x + 4 * k), c0 + 20, sWS, sD0))))
        self.ct_regs = c0x
        ev("s_mov_b32 s%d, 0x3f803f80" % sOnes)
        ev("s_mov_b32 s%d, 0x%x" % (sScale, fbits(20 ** -0.5 * math.log2(math.e))))
        ev("s_mov_b32 s%d, 0x%x" % (sInv640, fbits(1.0 / 640)))
        ev("s_mov_b32 s%d, 0x%x" % (sEps, fbits(1e-5)))
        ev("s_mov_b32 s%d, 0x%x" % (sNeg, fbits(-1e30)))
        ev("s_mov_b32 s%d, %d" % (sSpin, 400000))
        ev("s_mov_b32 s%d, 0" % sMode)
        ev("s_lshl_b64 %s, 1, s%d" % (sp(sMaskW), sW))
        ev("s_mov_b64 %s, 0xffff" % sp(sMaskX))
        ev("s_lshl_b32 s%d, s%d, 4" % (sA0, sW))
        ev("s_lshl_b64 %s, %s, s%d" % (sp(sMask16), sp(sMaskX), sA0))
        ev("s_mov_b32 s%d, -1" % sMaskA)
        ev("s_mov_b32 s%d, 0" % (sMaskA + 1))
        ev("s_mov_b32 s%d, 0" % sMaskB)
        ev("s_mov_b32 s%d, -1" % (sMaskB + 1))
        ev("s_lshl_b32 s%d, s%d, 8" % (sFlBase, sC))
        ev("s_add_u32 s%d, s%d, %d" % (sFlBase, sFlBase, FLAG))
        ev("s_add_u32 s%d, s%d, s%d" % (sFlOwn, sFlOwn, sFlBase))
        ev("s_lshl_b32 s%d, s%d, 2" % (sA0, sCG))
        ev("s_add_u32 s%d, s%d, s%d" % (sA0, sA0, sW))
        ev("s_mul_i32 s%d, s%d, %d" % (sWOb, sA0, 25 * KB))
        ev("s_add_u32 s%d, s%d, %d" % (sWOb, sWOb, WO))
        ev("s_mul_i32 s%d, s%d, %d" % (sW2b, sA0, 60 * KB))
        ev("s_add_u32 s%d, s%d, %d" % (sW2b, sW2b, W2))
        ev("s_and_b32 s%d, s%d, 1" % (sA1, sW))
        ev("s_lshl_b32 s%d, s%d, 8" % (sK256, sA1))
        ev("s_lshl_b32 s%d, s%d, 1" % (sA1, sA1))
        for i in range(4):
            ev("s_add_u32 s%d, s%d, %d" % (sA0, sA1, i))
            ev("s_and_b32 s%d, s%d, 3" % (sA0, sA0))
            ev("s_mul_i32 s%d, s%d, 20480" % (sA0, sA0))
            ev("s_add_u32 s%d, s%d, s%d" % (SP3[i], sA0, sWk))
        ev("s_add_u32 s%d, s%d, s%d" % (sHd, sA1, sRtA))
        ev("s_mul_i32 s%d, s%d, %d" % (sHd, sHd, 48 * KB))
        ev("s_mul_i32 s%d, s%d, 3072" % (sA0, sM))
        ev("s_add_u32 s%d, s%d, s%d" % (sHd, sHd, sA0))
        ev("s_add_u32 s%d, s%d, %d" % (sHd, sHd, HB))
        ev("s_mul_i32 s%d, s%d, 5" % (sA1, sWk))
        ev("s_mul_i32 s%d, s%d, 12" % (sA2, sWk))
        for i in range(4):
            ev("s_add_u32 s%d, s%d, %d" % (sA0, sW, i))
            ev("s_and_b32 s%d, s%d, 3" % (sA0, sA0))
            ev("s_add_u32 s%d, s%d, s%d" % (sA0, sA0, sRtT))
            ev("s_mul_i32 s%d, s%d, %d" % (sA0, sA0, 48 * KB))
            ev("s_add_u32 s%d, s%d, %d" % (sA0, sA0, HB))
            ev("s_add_u32 s%d, s%d, s%d" % (sR2 + i, sA0, sA1))
            ev("s_add_u32 s%d, s%d, s%d" % (sR4 + i, sA0, sA2))
        ev("s_lshr_b32 s%d, s%d, 1" % (sA0, sCG))
        ev("s_mul_i32 s%d, s%d, 5" % (sA0, sA0))
        ev("s_and_b32 s%d, s%d, 1" % (sA1, sCG))
        ev("s_add_u32 s%d, s%d, s%d" % (sA2, sRtT, sW))
        ev("s_lshl_b32 s%d, s%d, 10" % (sStd, sA2))
        ev("s_add_u32 s%d, s%d, %d" % (sStd, sStd, ST0))
        ev("s_mul_i32 s%d, s%d, 20" % (sA2, sA2))
        ev("s_add_u32 s%d, s%d, s%d" % (sA2, sA2, sA0))
        ev("s_lshl_b32 s%d, s%d, 10" % (sA2, sA2))
        ev("s_add_u32 s%d, s%d, %d" % (sXdh, sA2, X0 + 2048))
        ev("s_mul_i32 s%d, s%d, 3072" % (sA0, sA1))
        ev("s_add_u32 s%d, s%d, s%d" % (sXd0, sA2, sA0))
        ev("s_add_u32 s%d, s%d, %d" % (sXd0, sXd0, X0))
        ev("s_lshl_b32 s%d, s%d, 3" % (sA1, sA1))
        ev("v_add_u32 v%d, s%d, v%d" % (vHalf, sA1, vL0))
        ev("s_lshr_b32 s%d, s%d, 1" % (sA0, sCG))
        ev("s_lshl_b32 s%d, s%d, 8" % (sA0, sA0))
        ev("s_add_u32 s%d, s%d, s%d" % (sA0, sA0, sA1))
        ev("v_and_b32 v%d, 1, v%d" % (t0, g))
        ev("v_lshlrev_b32 v%d, 2, v%d" % (t0, t0))
        ev("v_lshl_add_u32 v%d, v%d, 4, v%d" % (vSt, tok, t0))
        ev("v_add_u32 v%d, s%d, v%d" % (vSt, sA0, vSt))
        ev("s_mov_b32 s%d, %d" % (sA0, L_ST))
        ev("v_lshl_add_u32 v%d, v%d, 3, s%d" % (vSl, tok, sA0))
        ev("v_lshlrev_b32 v%d, 4, v%d" % (vG, g))
        ev("v_add_u32 v%d, s%d, v%d" % (vAk, sX3, vL1))
        ev("s_and_b32 s%d, s%d, 1" % (sA0, sW))
        ev("s_lshr_b32 s%d, s%d, 1" % (sA1, sW))
        ev("s_mul_i32 s%d, s%d, %d" % (sA2, sA0, 40960 + 1024))
        ev("v_add_u32 v%d, s%d, v%d" % (vP3a, sA2, vL1))
        ev("s_mul_i32 s%d, s%d, %d" % (sA2, sA0, -40960 + 1024))
        ev("s_add_u32 s%d, s%d, 40960" % (sA2, sA2))
        ev("v_add_u32 v%d, s%d, v%d" % (vP3b, sA2, vL1))
        ev("s_lshl_b32 s%d, s%d, 3" % (sA2, sA1))
        ev("v_add_u32 v%d, s%d, v%d" % (vHh, sA2, vL0))
        ev("s_lshl_b32 s%d, s%d, 11" % (sA2, sA1))
        ev("v_add_u32 v%d, s%d, v%d" % (vHf, sA2, vL0))
        ev("s_mul_i32 s%d, s%d, 6144" % (sA2, sW))
        ev("s_add_u32 s%d, s%d, %d" % (sA2, sA2, L_E3))
        ev("v_add_u32 v%d, s%d, v%d" % (vE3w, sA2, vL0))
        ev("s_xor_b32 s%d, s%d, 1" % (sA2, sW))
        ev("s_mul_i32 s%d, s%d, 6144" % (sA2, sA2))
        ev("s_add_u32 s%d, s%d, %d" % (sA2, sA2, L_E3))
        ev("v_add_u32 v%d, s%d, v%d" % (vE3r, sA2, vL0))
        for i, vr in ((1, vRw1), (2, vRw2), (3, vRw3)):
            ev("s_add_u32 s%d, s%d, %d" % (sA2, sW, i))
            ev("s_and_b32 s%d, s%d, 3" % (sA2, sA2))
            ev("s_mul_i32 s%d, s%d, 15360" % (sA2, sA2))
            ev("s_add_u32 s%d, s%d, %d" % (sA2, sA2, L_RED + (i - 1) * 5120))
            ev("v_add_u32 v%d, s%d, v%d" % (vr, sA2, vL0))
        ev("s_mul_i32 s%d, s%d, 15360" % (sA2, sW))
        ev("s_add_u32 s%d, s%d, %d" % (sA2, sA2, L_RED))
        ev("v_add_u32 v%d, s%d, v%d" % (vRr, sA2, vL0))
        ev("v_and_b32 v%d, 31, v%d" % (t0, lane))
        ev("v_mul_u32_u24 v%d, %d, v%d" % (t0, EXS, t0))
        ev("v_lshrrev_b32 v%d, 5, v%d" % (t1, lane))
        ev("v_lshl_add_u32 v%d, v%d, 3, v%d" % (vXw0, t1, t0))
        ev("s_lshl_b32 s%d, s%d, 6" % (sA2, sW))
        ev("s_add_u32 s%d, s%d, %d" % (sA0, sA2, L_EX))
        ev("v_add_u32 v%d, s%d, v%d" % (vXw0, sA0, vXw0))
        ev("v_mul_u32_u24 v%d, %d, v%d" % (t0, EXS, tok))
        ev("s_add_u32 s%d, s%d, 2" % (sFlip, sW))
        ev("s_and_b32 s%d, s%d, 3" % (sFlip, sFlip))
        ev("s_sub_u32 s%d, s%d, s%d" % (sFlip, sFlip, sW))
        ev("s_sub_u32 s%d, s%d, 4" % (sFlip, sFlip))
        ev("s_mul_i32 s%d, s%d, %d" % (sFlip, sFlip, EXT))
        ev("v_mul_u32_u24 v%d, %d, v%d" % (vKv, EXS, g))
        ev("v_lshl_add_u32 v%d, v%d, 4, v%d" % (vKv, tok, vKv))
        ev("s_mul_i32 s%d, s%d, %d" % (sA0, sW, 4 * EXS))
        ev("s_add_u32 s%d, s%d, %d" % (sA0, sA0, L_EX))
        ev("v_add_u32 v%d, s%d, v%d" % (vKv, sA0, vKv))
        ev("s_lshl_b32 s%d, s%d, 4" % (sA0, sC))
        ev("s_add_u32 s%d, s%d, s%d" % (sA0, sA0, sM))
        ev("s_sub_u32 s%d, s%d, 16" % (sA1, sA0))
        ev("s_max_i32 s%d, s%d, s%d" % (sA1, sA1, sM))
        ev("s_lshl_b32 s%d, s%d, 12" % (sKvo, sA0))
        ev("s_add_u32 s%d, s%d, s%d" % (sKvo, sKvo, sWk))
        ev("s_add_u32 s%d, s%d, %d" % (sKvo, sKvo, KVH))
        ev("s_lshl_b32 s%d, s%d, 12" % (sKvi, sA1))
        ev("s_add_u32 s%d, s%d, s%d" % (sKvi, sKvi, sWk))
        ev("s_add_u32 s%d, s%d, %d" % (sKvi, sKvi, KVH))
        ev("s_lshl_b32 s%d, s%d, 7" % (sKfi, sA1))
        ev("s_add_u32 s%d, s%d, %d" % (sKfi, sKfi, KVF))
        ev("s_lshl_b32 s%d, s%d, 7" % (sKfo, sA0))
        ev("s_lshl_b32 s%d, s%d, 2" % (sA1, sW))
        ev("s_add_u32 s%d, s%d, s%d" % (sKfo, sKfo, sA1))
        ev("s_add_u32 s%d, s%d, %d" % (sKfo, sKfo, KVF))
        ev("s_mul_i32 s%d, s%d, %d" % (sA0, sW, EXT))
        ev("s_add_u32 s%d, s%d, %d" % (sA0, sA0, L_EX + 4 * EXT))
        ev("v_lshl_add_u32 v%d, v%d, 3, v%d" % (vXp, g, t0))
        ev("v_add_u32 v%d, s%d, v%d" % (vXp, sA0, vXp))
        ev("v_add_u32 v%d, %d, v%d" % (vXc, EXT, vXp))
        ev("v_lshrrev_b32 v%d, 2, v%d" % (t0, lane))
        ev("v_mul_u32_u24 v%d, %d, v%d" % (t0, EXS, t0))
        ev("v_and_b32 v%d, 3, v%d" % (t1, lane))
        ev("v_lshl_add_u32 v%d, v%d, 3, v%d" % (vXv, t1, t0))
        ev("s_add_u32 s%d, s%d, 160" % (sA0, sA0))
        ev("v_add_u32 v%d, s%d, v%d" % (vXv, sA0, vXv))
        ev("v_and_b32 v%d, 1, v%d" % (t0, tok))
        ev("v_cmp_eq_u32 %s, 1, v%d" % (sp(sOdd), t0))
        ev("v_lshl_add_u32 v%d, v%d, 2, v%d" % (t0, g, t0))
        ev("v_cmp_gt_u32 %s, v%d, v%d" % (sp(sPA), t0, tok))
        ev("v_add_u32 v%d, 2, v%d" % (t0, t0))
        ev("v_cmp_gt_u32 %s, v%d, v%d" % (sp(sPB), t0, tok))
        ev("v_cmp_eq_u32 %s, 0, v%d" % (sp(sG0), g))
        ev("v_mov_b32 v%d, 0xffff" % t0)
        ev("v_mov_b32 v%d, 0xffff0000" % t1)
        ev("v_cndmask_b32 v%d, v%d, v%d, %s" % (t0, t0, t1, sp(sOdd)))
        ev("v_cndmask_b32 v%d, 0, v%d, %s" % (vM0, t0, sp(sPA)))
        ev("v_cndmask_b32 v%d, v%d, 0, %s" % (vM2, t0, sp(sPA)))
        ev("v_cndmask_b32 v%d, 0, v%d, %s" % (vM1, t0, sp(sPB)))
        ev("v_cndmask_b32 v%d, v%d, 0, %s" % (vM3, t0, sp(sPB)))
        e("s_xor_b32 s%d, s%d, 2" % (sA0, sW))
        e("s_or_b32 s%d, s%d, s%d" % (sA0, sA0, sC))
        e("s_cmp_eq_u32 s%d, 0" % sA0)
        e("s_cselect_b64 %s, %s, 0" % (sp(sPAx), sp(sPA)))
        ev("s_cselect_b64 %s, %s, 0" % (sp(sPBx), sp(sPB)))
        res = [Load("res", [], lambda: a.vm("res", "buffer_load_dwordx4 %s, v%d, %s, s%d offen" % (q(vRes), vL0, sWS, sXd0))),
               Load("res", [], lambda: a.vm("res", "buffer_load_dwordx4 %s, v%d, %s, s%d offen offset:1024" % (q(vRes + 4), vL0, sWS, sXd0))),
               Load("res", [], lambda: a.vm("res", "buffer_load_dwordx2 %s, v%d, %s, s%d offen" % (p2(vRes + 8), vHalf, sWS, sXdh)))]
        flagtouch = Load("touch", [], lambda: a.vm("touch", "buffer_load_dword v0, v%d, %s, s%d offen sc1" % (vFl, sWS, sFlBase)))
        self.stream += (chunk(2) + ct + self.items_stats(0) + self.items_stats(1, self.RAW + 4) + chunk(3) + chunk(4) +
                        ([] if te else [self.item_touch(10, 1280)]) + [flagtouch] + res)
        self.period = self.opt("fper", 40)

    def ct_write(self):
        c0 = self.ct_regs
        ops = [S_(lambda: self.vwait(["ct"]))]
        ops += ["v_add_f32 v%d, v%d, v%d" % (c0 + r, c0 + r, c0 + 4 + r) for r in range(4)]
        ops += ["v_add_f32 v%d, v%d, v%d" % (c0 + 8 + r, c0 + 8 + r, c0 + 12 + r) for r in range(4)]
        ops += ["v_add_f32 v%d, v%d, v%d" % (c0 + r, c0 + r, c0 + 16 + r) for r in range(4)]
        ops += ["v_add_f32 v%d, v%d, v%d" % (c0 + r, c0 + r, c0 + 8 + r) for r in range(4)]
        assert L_CT == 0
        ops.append("v_min_u32 v%d, 2032, v%d" % (c0 + 20, c0 + 20))
        ops.append(self.DS("ctw", "ds_write_b128 v%d, %s" % (c0 + 20, q(c0)), 24))
        return ops

    def mode_check(self):
        e = self.e
        self.poll_check(1, sMaskX, soff=sXT, acquire=False)
        e("v_cmp_ne_u32 vcc, s%d, v%d" % (sXcc, vPoll))
        e("s_and_b64 %s, %s, vcc" % (sp(sTmp2), sp(sMaskX)))
        e("s_cselect_b32 s%d, 1, 0" % sMode)
        if self.opts.get("force_slow"):
            e("s_mov_b32 s%d, 1" % sMode)

    P1_ACC = W0
    P1_AB = W0 + 48
    P1_CS = W0 + 80
    RAW = W0 + 96
    P1_MS = W0 + 104
    P1_S32 = W0 + 106
    P1_XB = W0 + 107
    P1_KV = W0 + 108
    P1_ATT = [W0 + 112 + 4 * i for i in range(4)] + [W0 + 32 + 4 * i for i in range(4)]

    def attention_ops(self, layer, sb):
        a, e, DS = self.a, self.e, self.DS
        A = self.P1_ATT
        ops = []
        Q, Kp, Kc = [A[0], A[3]], [A[1], A[4]], [A[2], A[5]]
        Sp, Sc = [A[6], A[0]], [A[7], A[1]]
        sa, sbb, mx = [A[2], A[2] + 2], [A[2] + 1, A[2] + 3], [A[3], A[3] + 1]
        neg = A[3] + 2
        Va, Vb = [A[4], A[6]], [A[5], A[7]]
        P = [A[0], A[1]]
        Oa, Ob = [A[2], A[4]], [A[3], A[5]]
        G = [A[6], A[7]]
        for h in range(2):
            ops.append(DS(("q", h), "ds_read2_b64 %s, v%d offset0:%d offset1:%d" % (q(Q[h]), vXc, 10 + 5 * h, 14 + 5 * h)))
            ops.append(DS(("kp", h), "ds_read2_b64 %s, v%d offset0:%d offset1:%d" % (q(Kp[h]), vXp, 5 * h, 4 + 5 * h)))
            ops.append(DS(("kc", h), "ds_read2_b64 %s, v%d offset0:%d offset1:%d" % (q(Kc[h]), vXc, 5 * h, 4 + 5 * h)))
        ops += ["s_add_u32 s%d, s%d, %d" % (sA0, sOd, sb * SBH), 7]
        for h in range(2):
            ops.append(self.WD([("q", h)]))
            ops.append("v_cndmask_b32 v%d, 0, v%d, %s" % (Q[h] + 2, Q[h] + 2, sp(sG0)))
            ops.append("v_cndmask_b32 v%d, 0, v%d, %s" % (Q[h] + 3, Q[h] + 3, sp(sG0)))
        ops.append(self.WD([("kc", 1)]))
        for h in range(2):
            ops.append(B_(lambda h=h: self.mfma(Sp[h], Kp[h], Q[h], first=True)))
            ops.append(B_(lambda h=h: self.mfma(Sc[h], Kc[h], Q[h], first=True)))

        def vreads(h):
            o = []
            for vv, off in ((Va[h], 0), (Vb[h], 32)):
                o.append(DS(("v", h), "ds_read_b64_tr_b16 %s, v%d offset:%d" % (p2(vv), vXv, 40 * h + off)))
                o.append(DS(("v", h), "ds_read_b64_tr_b16 %s, v%d offset:%d" % (p2(vv + 2), vXv, 40 * h + off + EXT)))
            return o
        ops += vreads(0)
        if sb == 1:
            ops.append("v_mov_b32 v%d, s%d" % (neg, sNeg))
        for h in range(2):
            s_, c = Sp[h], Sc[h]
            ops += ["v_cndmask_b32 v%d, v%d, v%d, %s" % (s_, s_, s_ + 1, sp(sOdd)),
                    "v_cndmask_b32 v%d, v%d, v%d, %s" % (s_ + 2, s_ + 2, s_ + 3, sp(sOdd)),
                    "v_cndmask_b32 v%d, v%d, v%d, %s" % (c, c, c + 1, sp(sOdd)),
                    "v_cndmask_b32 v%d, v%d, v%d, %s" % (c + 2, c + 2, c + 3, sp(sOdd)),
                    "v_cndmask_b32 v%d, v%d, v%d, %s" % (sa[h], c, s_, sp(sPA)),
                    "v_cndmask_b32 v%d, v%d, v%d, %s" % (sbb[h], c + 2, s_ + 2, sp(sPB))]
            if sb == 1:
                ops += ["v_cndmask_b32 v%d, v%d, v%d, %s" % (sa[h], sa[h], neg, sp(sPAx)),
                        "v_cndmask_b32 v%d, v%d, v%d, %s" % (sbb[h], sbb[h], neg, sp(sPBx))]
            ops.append("v_max_f32 v%d, v%d, v%d" % (mx[h], sa[h], sbb[h]))

        def red2(op, x, y, pad):
            pad = list(pad) + [0] * 6
            return [pad[4], pad[5],
                    "v_permlane16_swap_b32 v%d, v%d" % (x, y), "%s v%d, v%d, v%d" % (op, x, x, y), "v_mov_b32 v%d, v%d" % (y, x),
                    pad[0], pad[1],
                    "v_permlane32_swap_b32 v%d, v%d" % (x, y), "%s v%d, v%d, v%d" % (op, x, x, y), "v_mov_b32 v%d, v%d" % (y, x),
                    pad[2], pad[3],
                    "v_permlane16_swap_b32 v%d, v%d" % (x, y)]
        ops += red2("v_max_f32", mx[0], mx[1], vreads(1))
        ops += ["v_mul_f32 v%d, s%d, v%d" % (mx[h], sScale, mx[h]) for h in range(2)]
        for h in range(2):
            ops += ["v_fma_f32 v%d, v%d, s%d, -v%d" % (sa[h], sa[h], sScale, mx[h]),
                    "v_fma_f32 v%d, v%d, s%d, -v%d" % (sbb[h], sbb[h], sScale, mx[h])]
        for h in range(2):
            ops += ["v_exp_f32 v%d, v%d" % (sa[h], sa[h]), "v_exp_f32 v%d, v%d" % (sbb[h], sbb[h])]
        ops += ["v_add_f32 v%d, v%d, v%d" % (mx[h], sa[h], sbb[h]) for h in range(2)]
        d = "v_add_u32" if sb == 0 else "v_subrev_u32"
        ops += red2("v_add_f32", mx[0], mx[1], ["%s v%d, s%d, v%d" % (d, r, sFlip, r) for r in (vXp, vXc, vXv)])
        ops += ["v_rcp_f32 v%d, v%d" % (mx[h], mx[h]) for h in range(2)]
        for h in range(2):
            ops += ["v_mul_f32 v%d, v%d, v%d" % (sa[h], sa[h], mx[h]), "v_mul_f32 v%d, v%d, v%d" % (sbb[h], sbb[h], mx[h])]
        for h in range(2):
            ops += ["v_cvt_pk_bf16_f32 v%d, v%d, v%d" % (sa[h], sa[h], sa[h]),
                    "v_cvt_pk_bf16_f32 v%d, v%d, v%d" % (sbb[h], sbb[h], sbb[h]),
                    "v_and_b32 v%d, v%d, v%d" % (P[h], vM0, sa[h]),
                    "v_and_b32 v%d, v%d, v%d" % (P[h] + 1, vM1, sbb[h]),
                    "v_and_b32 v%d, v%d, v%d" % (P[h] + 2, vM2, sa[h]),
                    "v_and_b32 v%d, v%d, v%d" % (P[h] + 3, vM3, sbb[h])]
        ops.append(self.WD([("v", 1)]))
        for h in range(2):
            ops.append(B_(lambda h=h: self.mfma(Oa[h], Va[h], P[h], first=True)))
            ops.append(B_(lambda h=h: self.mfma(Ob[h], Vb[h], P[h], first=True)))
        ops.append(3)
        for src, dst in ((Oa, G[0]), (Ob, G[1])):
            for h in range(2):
                ops += ["v_cvt_pk_bf16_f32 v%d, v%d, v%d" % (dst + 2 * h, src[h], src[h] + 1),
                        "v_cvt_pk_bf16_f32 v%d, v%d, v%d" % (dst + 2 * h + 1, src[h] + 2, src[h] + 3)]
            if src is Oa:
                ops.append(V_(lambda: a.vm("st", "buffer_store_dwordx4 %s, v%d, %s, s%d offen" % (q(G[0]), vL0, sWS, sA0))))

        def last():
            e("s_mov_b64 exec, %s" % sp(sMaskX))
            a.vm("st", "buffer_store_dwordx4 %s, v%d, %s, s%d offen offset:1024" % (q(G[1]), vL0, sWS, sA0))
            e("s_mov_b64 exec, -1")
        ops.append(B_(last))
        return ops

    def p1(self, layer):
        a, e, DS, WD = self.a, self.e, self.DS, self.WD
        typ = self.typ
        ACC, AB, NAB, MS = self.P1_ACC, self.P1_AB, 8, self.P1_MS
        self.stamp("p1_%d_begin" % layer)
        groups = [[1, 0], [2], [3]] if layer == 0 else [[1], [0], [2], [3]]
        units = [(p, ks, hk) for gr in groups for ks in range(20) for hk in range(2) for p in gr]
        idx = {u: i for i, u in enumerate(units)}
        accof = {1: ACC, 0: ACC + 16, 2: ACC + 32, 3: ACC}
        half = {1: 1, 0: 0, 2: 1, 3: 0}

        def read(u):
            p, ks, hk = units[u]
            base, off = vX32, half[p] * 40960
            return "ds_read_b128 %s, v%d offset:%d" % (q(AB + (u % NAB) * 4), base, off + ks * 1024 + hk * 512)

        def compute(u):
            p, ks, hk = units[u]

            def f():
                self.mfma32(accof[p], ("a", (ks * 2 + hk) * 4), AB + (u % NAB) * 4, first=(ks == 0 and hk == 0))
                if layer == 1 and p == 3:
                    self.free.append(("a", (ks * 2 + hk) * 4))
            return [f]

        def sync(tags, ds=None):
            def f():
                self.vwait(tags)
                if ds:
                    a.wait(ds=ds)
                e("s_barrier")
            return f

        def ms_read(p):
            return DS("ms", "ds_read_b64 %s, v%d offset:%d" % (p2(MS), self.P1_S32, p * 256))

        def fix(p, packed=False):
            ops = [WD(["ms", "cs"])]
            for j in range(4):
                acc = accof[p] + 4 * j
                cs = self.P1_CS + 4 * j
                if packed:
                    for hh in (0, 2):
                        ops.append("v_pk_fma_f32 %s, %s, %s, %s op_sel_hi:[1,0,1] neg_lo:[0,1,0] neg_hi:[0,1,0]" %
                                   (p2(acc + hh), p2(cs + hh), p2(MS), p2(acc + hh)))
                    for hh in (0, 2):
                        ops.append("v_pk_mul_f32 %s, %s, %s op_sel:[0,1] op_sel_hi:[1,1]" % (p2(acc + hh), p2(acc + hh), p2(MS)))
                else:
                    ops += ["v_fma_f32 v%d, -v%d, v%d, v%d" % (acc + r, cs + r, MS, acc + r) for r in range(4)]
                    ops += ["v_mul_f32 v%d, v%d, v%d" % (acc + r, acc + r, MS + 1) for r in range(4)]
                ops.append("v_cvt_pk_bf16_f32 v%d, v%d, v%d" % (acc, acc, acc + 1))
                ops.append("v_cvt_pk_bf16_f32 v%d, v%d, v%d" % (acc + 1, acc + 2, acc + 3))
                row = {0: 5, 1: 7, 2: 3, 3: 1}[p]
                ops.append(DS("xw", "ds_write_b64 v%d, %s offset:%d" % (vXw0, p2(acc), 16 * j + row * EXT), 16))
            return ops + [self.mark(("fix", p))]

        def fixr(p):
            return [ms_read(p), 8] + fix(p)

        def setup():
            c = self.P1_CS
            o = ["v_lshrrev_b32 v%d, 3, v%d" % (c + 12, vFl),
                 "v_and_b32 v%d, 16, v%d" % (c + 12, c + 12),
                 "v_add_u32 v%d, s%d, v%d" % (c + 12, sW128, c + 12)]
            o += [DS("cs", "ds_read_b128 %s, v%d offset:%d" % (q(c + 4 * j), c + 12, L_CT + 32 * j)) for j in range(4)]
            o += ["v_and_b32 v%d, 124, v%d" % (self.P1_S32, vFl),
                  "v_lshlrev_b32 v%d, 1, v%d" % (self.P1_S32, self.P1_S32),
                  "v_add_u32 v%d, %d, v%d" % (self.P1_S32, L_ST, self.P1_S32)]
            return o

        KV = self.P1_KV
        lo = layer * 256 * 4 * KB

        def kv_out():
            def flag():
                e("v_mov_b32 v%d, %d" % (vT0, layer + 1))
                e("s_mov_b64 exec, 1")
                a.wait(vm=["kvo"])
                a.vm("flag", "buffer_store_dword v%d, off, %s, s%d sc1" % (vT0, sWS, sKfo))
                e("s_mov_b64 exec, -1")
            return ["v_add_u32 v%d, %d, v%d" % (KV, 8 * EXT, vKv),
                    DS("kv", "ds_read2_b64 %s, v%d offset1:1" % (q(KV), KV)),
                    "s_add_u32 s%d, s%d, %d" % (sA2, sKvo, lo), 8, WD(["kv"]),
                    V_(lambda: a.vm("kvo", "buffer_store_dwordx4 %s, v%d, %s, s%d offen sc1" % (q(KV), vL0, sWS, sA2)), 8),
                    Z_(lambda: self.later(self.opt("kvd", 36), flag))]

        def kv_in():
            self.poll_check(layer + 1, sMaskW, sKfi, acquire=False)
            e("s_add_u32 s%d, s%d, %d" % (sA2, sKvi, lo))
            a.vm("kvi", "buffer_load_dwordx4 %s, v%d, %s, s%d offen sc1" % (q(KV), vL0, sWS, sA2))

        def kv_put():
            a.wait(vm=["kvi"])
            a.ds("xw", "ds_write2_b64 v%d, %s, %s offset1:1" % (vKv, p2(KV), p2(KV + 2)))

        self.bg = []
        pre_read, pre_unit = {}, {}

        def hook(d, u, f):
            u = idx[u if len(u) == 3 else (u[0], u[1], 0)]
            old = d.get(u)
            d[u] = f if old is None else (lambda: (old(), f()))

        def bgx(f):
            return lambda: self.bg.extend(f())

        def soon(f):
            return lambda: self.bg.insert(0, B_(f))

        nb0, nb1 = self.items_p1(1, 0, "A1", shift=40960), self.items_p1(1, 1, "A1", shift=-40960)
        allb0 = [("A1", 0, j) for j in range(5)]
        allb1 = [("A1", 1, j) for j in range(5)]

        def go():
            a.wait(ds=["xw"])
            e("s_barrier")
        if layer == 0:
            hook(pre_read, (1, 16), lambda: self.need("st0"))
            for j in range(5):
                hook(pre_read, (1, 4 * j), sync([("A0", 0, j), ("A0", 1, j)], ds=["sw", "ctw"]))
            hook(pre_read, (1, 16), lambda: self.stream.extend(nb0[:6] + nb1[:6]))
            for ks in range(20):
                hook(pre_unit, (1, ks), lambda ks=ks: self.vwait([("WQ", ks)]))
            hook(pre_unit, (1, 10), bgx(lambda: self.ct_write() + self.stats_share(0) + self.stats_share(1, self.RAW + 4) +
                                        [self.mark("st0")]))
            hook(pre_unit, (1, 16), bgx(lambda: setup() + [ms_read(1), V_(lambda: self.poll_issue(sXT))]))
            hook(pre_read, (2, 0), sync([("A1", 0, j) for j in range(3)]))

            def turn():
                self.stamp("p1_0_a")
                e("s_barrier")
                self.push_front(nb0[6:])
                self.stream.extend(nb1[6:])
                self.urgent = set(allb0)
                self.period = self.opt("per1", 64)
                self.b_on = True
                self.fcredit = 0
                self.drain_bg()
                self.bg = fix(1, True)
                self.drain_bg()
                self.bg = [2, B_(go)] + kv_out() + [B_(self.mode_check), self.mark("kvo")] + [20] + fixr(0)
            hook(pre_unit, (2, 0), turn)
            hook(pre_read, (2, 12), sync(allb0))
            kvi, kvc = (3, self.opt("kvi0", 8)), (3, self.opt("kvc0", 15))
        else:
            hook(pre_read, (1, 0), sync([("A0", 1, 0), ("A0", 1, 1)]))
            hook(pre_read, (1, 8), sync([("A0", 1, j) for j in range(2, 5)]))
            hook(pre_unit, (1, 1), bgx(setup))
            hook(pre_unit, (1, 7), bgx(lambda: self.stats_share(0) + [self.mark("st0")]))
            hook(pre_unit, (1, 8), soon(self.poll_issue))

            def refill(tags, items, pre=None):
                def f():
                    self.need("st0")
                    sync(tags, ds=["sw"])()
                    if pre:
                        pre()
                    self.urgent = set(ld.tag for ld in items) if self.opt("urgr", 1) else set()
                    self.stream.extend(items)
                return f
            hook(pre_read, (0, 0), refill([("A0", 0, j) for j in range(5)], self.items_stats(1) + nb0[:8],
                                          pre=lambda: self.poll_check(6, sMaskB)))
            hook(pre_unit, (0, 3), lambda: (e("s_barrier"), self.stream.extend(nb0[8:])))
            hook(pre_unit, (0, self.opt("fixat1", 4)), bgx(lambda: fixr(1) + [4, B_(go)] + kv_out() + [self.mark("kvo")] + self.stats_share(1) +
                                                             [self.mark("st0")]))
            hook(pre_read, (2, 0), refill(allb0, nb1[:8]))
            hook(pre_unit, (2, 3), lambda: (e("s_barrier"), self.stream.extend(nb1[8:])))
            hook(pre_unit, (2, self.opt("fixat", 9)), bgx(lambda: fixr(0)))
            hook(pre_unit, (3, 0), lambda: self.stamp("p1_1_a"))
            kvi, kvc = (3, self.opt("kvi", 1)), (3, self.opt("kvc", 10))
        hook(pre_read, (3, 0), sync(allb1))
        hook(pre_unit, (3, 0), lambda: self.need(("fix", 1)))
        hook(pre_unit, (3, 0), bgx(lambda: fixr(2) + [4, B_(go)] + self.attention_ops(layer, 0)))
        hook(pre_unit, kvi, lambda: (self.need("kvo"), self.poll_issue(sKfi)))
        hook(pre_unit, kvc, lambda: (self.run_timed(), kv_in()))
        hook(pre_unit, (3, 0), bgx(lambda: [ms_read(3)]))
        hook(pre_unit, (3, 0), lambda: setattr(self, "hurry", self.opt("hurry1", 15)))
        if layer == 1 or self.opt("tearly", 0):
            hook(pre_unit, (2, 14), lambda: self.stream.extend([self.item_touch(24, 3072), self.item_code()]))
        else:
            np_ = self.opt("tpieces", 8)
            for z in range(np_):
                at = idx[(2, 6, 0)] + z * self.opt("tstep", 4)
                hook(pre_unit, units[at], lambda z=z: self.stream.append(self.item_touch(24 // np_, 3072, z * (24 // np_))))
            hook(pre_unit, (2, 15), lambda: self.stream.append(self.item_code()))
        if layer == 1:
            self.period = self.opt("per1", 64)
            self.b_on = True
            self.bmin = self.opt("bmin1", 200)
            hook(pre_unit, (2, 10), lambda: setattr(self, "bmin", 0))
        if self.opt("bend1", 20) < 20:
            hook(pre_unit, (3, self.opt("bend1", 20)), lambda: setattr(self, "b_on", False))
        self.gapdt = self.opt("dt1", 34)
        self.glen = 32
        self.unit_loop(len(units), read, compute, look=self.opt("look1", 6), pre_read=pre_read, pre_unit=pre_unit,
                       wait_every=self.opt("we1", 2), name="p1_%d" % layer, every=self.opt("ev1", 8))
        self.glen = 16
        self.hurry = 10 ** 9
        self.stamp("p1_%d_loop" % layer)
        self.drain_bg()
        self.bg = fix(3, packed=True)
        self.drain_bg()
        kv_put()
        self.publish(6 * layer + 1)
        a.wait_all(ds=True)
        e("s_barrier")
        self.stamp("p1_%d_gemm" % layer)
        ops = self.attention_ops(layer, 1)
        self.b_on = True
        ops.insert(self.opt("batt%d" % layer, (100, 30)[layer]), Z_(lambda: setattr(self, "b_on", False)))
        if typ == 0:
            def a2go():
                self.poll_check(6 * layer + 1, sMask16)
                self.stream.extend([self.item_pk(False, n) for n in range(20)])
                self.period = self.opt("pera2", 32)
            ops.insert(self.opt("a2at", 75), B_(a2go))
            ops.insert(self.opt("a2is", 20), B_(self.poll_issue))
        self.bg = ops
        self.drain_bg()
        self.lend()
        self.flush(n=6)
        self.publish(6 * layer + 2)
        self.stamp("p1_%d_end" % layer)

    def pk(self, layer, which):
        a, e, ev, DS, WD = self.a, self.e, self.ev, self.DS, self.WD
        typ = self.typ
        is4 = which == 4
        name = ("W2" if is4 else "WO", layer)
        ACC, AB = W0, W0 + 80
        last = layer == 1 and is4
        order = self.pk_order(is4)
        n_units = len(order)
        self.stamp("p%d_%d_begin" % (which, layer))
        e("s_barrier")
        if typ == 1:
            if not is4:
                self.bpref(self.opt("bwait2_%d" % layer, (3, 0)[layer]))
            self.poll(6 * layer + (5 if is4 else 2), sMask16)
            self.stream.extend([self.item_pk(is4, n) for n in range(20)])
            self.flush(n=8)
        self.urgent = set(("Ak", n) for n in range(self.opt("urgk", 12)))
        self.stamp("p%d_%d_poll" % (which, layer))
        if is4:
            self.unlend()
        init = []
        if self.sq:
            init += ["s_add_u32 s%d, s%d, %d" % (sA0, sWk, STAGE[0]),
                     "v_add_u32 v%d, s%d, v%d" % (vSg0, sA0, vL0),
                     "v_add_u32 v%d, %d, v%d" % (vSg1, STAGE[5] - STAGE[0], vSg0)]
            self.unstage = True
        if layer == 0 and not is4:
            init.append(S_(lambda: self.vwait(["res"])))
        BT = W0 + 96
        if is4:
            init += [DS(("b2", ct), "ds_read_b128 %s, v%d offset:%d" % (q(BT + 4 * ct), vG, L_CT + 1536 + 64 * ct)) for ct in range(5)]
        for ct in range(5):
            for hh in range(2):
                src = vRes + 2 * ct + hh
                init.append("v_lshlrev_b32 v%d, 16, v%d" % (ACC + 4 * ct + 2 * hh, src))
                init.append("v_and_b32 v%d, 0xffff0000, v%d" % (ACC + 4 * ct + 2 * hh + 1, src))
        if is4:
            init.append(WD([("b2", 4)]))
            init += ["v_add_f32 v%d, v%d, v%d" % (ACC + r, ACC + r, BT + r) for r in range(20)]
        init.append(self.mark("init"))
        vOut, vOutH = BT, BT + 1
        if last:
            init += ["v_lshrrev_b32 v%d, 2, v%d" % (vOut, vFl),
                     "v_and_b32 v%d, 15, v%d" % (vOut, vOut),
                     "v_mul_u32_u24 v%d, 1280, v%d" % (vOut, vOut),
                     "v_add_u32 v%d, v%d, v%d" % (vOut, vOut, vG),
                     "v_sub_u32 v%d, v%d, v%d" % (vOutH, vHalf, vL0),
                     "v_add_u32 v%d, v%d, v%d" % (vOutH, vOutH, vOut),
                     "s_add_u32 s%d, s%d, s%d" % (sA0, sRtT, sW),
                     "s_mul_i32 s%d, s%d, %d" % (sA1, sA0, 20 * KB),
                     "s_add_u32 s%d, s%d, %d" % (sA1, sA1, X0),
                     "s_add_u32 s%d, s%d, %d" % (sA0, sW, 2 if typ else 4),
                     "s_and_b32 s%d, s%d, %d" % (sA0, sA0, 3 if typ else 7),
                     "s_lshl_b32 s%d, s%d, 3" % (sA2, sC),
                     "s_add_u32 s%d, s%d, s%d" % (sA0, sA0, sA2),
                     "s_mul_i32 s%d, s%d, %d" % (sA0, sA0, 20 * KB),
                     "s_sub_u32 s%d, s%d, s%d" % (sA2, sXd0, sA1),
                     "s_lshr_b32 s%d, s%d, 4" % (sA2, sA2),
                     "s_add_u32 s%d, s%d, s%d" % (sA2, sA2, sA0),
                     "s_sub_u32 s%d, s%d, s%d" % (sA3, sXdh, sA1),
                     "s_lshr_b32 s%d, s%d, 4" % (sA3, sA3),
                     "s_add_u32 s%d, s%d, s%d" % (sA3, sA3, sA0)]
        self.bg = init
        started = set()
        lastuse = {k: n for n, (i, k) in enumerate(order)}
        fin = {i: max(n for n, (ii, k) in enumerate(order) if ii == i) for i in range(4)}

        def read(n):
            return "ds_read_b128 %s, v%d offset:%d" % (q(AB + (n % 4) * 4), vAk, (n % 20) * 1024)

        def compute(n):
            i, k = order[n]
            if i == 0:
                self.need("init")
            regs = self.bget([(name, k * 5 + ct) for ct in range(5)])
            fst = i != 0 and i not in started
            started.add(i)

            def mk(ct):
                def f():
                    self.mfma(ACC + (i * 5 + ct) * 4, regs[ct], AB + (n % 4) * 4, first=fst)
                    if ct == 0 and n + 20 < n_units:
                        self.stream.append(self.item_pk(is4, n + 20))
                    if ct == 4 and lastuse[k] == n:
                        for c in range(5):
                            self.bfree((name, k * 5 + c))
                return f
            return [mk(ct) for ct in range(5)]

        pre_read = {n: (lambda n=n: self.vwait([("Ak", n)])) for n in range(n_units)}
        pre_unit = {}

        def writes(i):
            return [DS("rw", "ds_write_b128 v%d, %s offset:%d" % ((vRw1, vRw2, vRw3)[i - 1], q(ACC + (i * 5 + ct) * 4), ct * 1024), 24)
                    for ct in range(5)]

        def spaced(ws, n):
            out = []
            for w in ws:
                out += [w, n]
            return out

        staged = bool(self.sq)
        if not last and self.opt("xtouch%d" % which, 0):
            def xt(soff, imm):
                return Load("touch", [], lambda: a.vm("touch", "buffer_load_dword v0, v%d, %s, s%d offen offset:%d" % (vL0, sWS, soff, imm)))
            pre_unit[28 if is4 else 4] = lambda: self.stream.extend([xt(sXd0, 0), xt(sXd0, 1024), xt(sXdh, 0), xt(sStd, 0)])

        def first_writes():
            if staged:
                assert not self.sq
                e("s_barrier")
            self.bg.extend([1] + spaced(writes(1), 2))
        pre_unit[fin[1] + 1] = first_writes
        pre_unit[fin[2] + 1] = lambda: self.bg.extend([1] + spaced(writes(2), 2))

        def stage1():
            self.b_on = bool(self.opt("bst1_%d" % typ, 1))
            self.drain_bg()
            a.wait(ds=["rw"])
            e("s_barrier")
            ops = []
            w3 = writes(3)
            for ct in range(5):
                for j in range(2):
                    ops.append(DS(("rr", j, ct), "ds_read_b128 %s, v%d offset:%d" %
                                  (q(ACC + 20 + (j * 5 + ct) * 4), vRr, (j * 5 + ct) * 1024)))
                ops.append(w3[ct])
            ops.append(self.mark("w3"))
            for ct in range(5):
                ops.append(WD([("rr", 1, ct)]))
                ops += ["v_add_f32 v%d, v%d, v%d" % (ACC + 20 + 4 * ct + r, ACC + 20 + 4 * ct + r, ACC + 40 + 4 * ct + r)
                        for r in range(4)]
            self.bg.extend(ops)
        pre_unit[fin[3] + 1] = stage1
        self.deadline = {("Ak", n): n for n in range(n_units)}
        for n, (i, k) in reversed(list(enumerate(order))):
            for ct in range(5):
                self.deadline[(name, k * 5 + ct)] = n - self.opt("blead", 4)
        self.period = self.opt("perk", 64)
        self.minlead = self.opt("leadk", 12)
        self.gapdt = self.opt("dtk", 18)
        self.b_on = True
        self.b_stop = name if (is4 and self.opt("bstop4", 0)) else None
        self.unit_loop(n_units, read, compute, look=3, pre_read=pre_read, pre_unit=pre_unit, name="p%d_%d" % (which, layer))
        self.b_on = bool(self.opt("bepk_%d" % typ, typ))
        self.b_stop = None
        self.unstage = False
        self.minlead = None
        self.deadline = {}
        self.stamp("p%d_%d_loop" % (which, layer))
        self.need("w3")
        a.wait(ds=["rw"])
        e("s_barrier")
        self.stamp("p%d_%d_gemm" % (which, layer))
        for ct in range(5):
            a.ds(("rr", 2, ct), "ds_read_b128 %s, v%d offset:%d" % (q(ACC + 60 + ct * 4), vRr, (10 + ct) * 1024))
        self.period = self.opt("pere", 64)
        if typ == 1 and not last:
            self.poll_issue()
        self.drain_bg()
        for ct in range(5):
            for hh in (0, 2):
                ev("v_pk_add_f32 %s, %s, %s" % (p2(ACC + 4 * ct + hh), p2(ACC + 4 * ct + hh), p2(ACC + 20 + 4 * ct + hh)))
        srd, v0_, vh, o2, d0, dh = (sOUT, vOut, vOutH, 64, sA2, sA3) if last else (sWS, vL0, vHalf, 1024, sXd0, sXdh)
        s0, s1 = vT1, vT2
        for ct in range(5):
            a.wait(ds=[("rr", 2, ct)])
            for hh in (0, 2):
                ev("v_pk_add_f32 %s, %s, %s" % (p2(ACC + 4 * ct + hh), p2(ACC + 4 * ct + hh), p2(ACC + 60 + 4 * ct + hh)))
            ev("v_cvt_pk_bf16_f32 v%d, v%d, v%d" % (vRes + 2 * ct, ACC + 4 * ct, ACC + 4 * ct + 1))
            ev("v_cvt_pk_bf16_f32 v%d, v%d, v%d" % (vRes + 2 * ct + 1, ACC + 4 * ct + 2, ACC + 4 * ct + 3))
            if ct == 1:
                a.vm("st", "buffer_store_dwordx4 %s, v%d, %s, s%d offen" % (q(vRes), v0_, srd, d0))
            if ct == 3:
                a.vm("st", "buffer_store_dwordx4 %s, v%d, %s, s%d offen offset:%d" % (q(vRes + 4), v0_, srd, d0, o2))
            if ct == 4:
                a.vm("st", "buffer_store_dwordx2 %s, v%d, %s, s%d offen" % (p2(vRes + 8), vh, srd, dh))
        if last:
            self.stamp("p4_1_end")
            return
        for r in range(10):
            ev("v_dot2_f32_bf16 v%d, v%d, s%d, %s" % (s0, vRes + r, sOnes, "0" if r == 0 else "v%d" % s0))
            ev("v_dot2_f32_bf16 v%d, v%d, v%d, %s" % (s1, vRes + r, vRes + r, "0" if r == 0 else "v%d" % s1))
        ev("v_permlane16_swap_b32 v%d, v%d" % (s0, s1))
        ev("v_add_f32 v%d, v%d, v%d" % (s0, s0, s1))
        ev("v_mov_b32 v%d, v%d" % (s1, s0))
        ev("v_permlane32_swap_b32 v%d, v%d" % (s0, s1))
        ev("v_add_f32 v%d, v%d, v%d" % (vHst, s0, s1))
        e("s_mov_b64 exec, %s" % sp(sMaskA))
        a.vm("st", "buffer_store_dword v%d, v%d, %s, s%d offen" % (vHst, vSt, sWS, sStd))
        e("s_mov_b64 exec, -1")
        val = 6 * layer + (6 if is4 else 3)

        if typ == 0:
            self.publish(val)
            self.bpref(self.opt("bwait%d_%d" % (which + 10, layer), 6 if (layer == 0 and not is4) else 0))
            self.poll(val, sMaskA)
            self.next_fetch(layer, is4)
            self.flush(n=10)
        else:
            self.poll_check(val, sMaskA)
            self.next_fetch(layer, is4)
            self.flush(n=6)
            self.publish(val)
        self.stamp("p%d_%d_end" % (which, layer))

    def next_fetch(self, layer, is4):
        st = self.items_stats(0)
        if is4:
            i0, i1 = self.items_p1(0, 1, "A0"), self.items_p1(0, 0, "A0")
            it = i0[:4] + st + i0[4:] + i1
        else:
            it = self.items_p3(0, 2, "A0") + st + [x for i in (3, 0, 1) for x in self.items_p3(0, i, "A0")]
        self.urgent = set(ld.tag for ld in it)
        self.stream.extend(it)

    P3_ACC = W0
    P3_AB = W0 + 48
    P3_CT = [W0 + 80, W0 + 84, W0 + 88, W0 + 92, W0 + 100, W0 + 104]
    P3_OUT = W0 + 108
    P3_MS = [46, W0 + 114]

    def p3(self, layer):
        a, e, DS, WD = self.a, self.e, self.DS, self.WD
        typ = self.typ
        name = ("W1", layer)
        ACC, AB, CT, OUT = self.P3_ACC, self.P3_AB, self.P3_CT, self.P3_OUT
        self.stamp("p3_%d_begin" % layer)
        phases = [(sb, i) for sb in range(2) for i in (2, 3, 0, 1)]
        units = [(sb, i, k) for sb, i in phases for k in range(10)]

        def read(u):
            sb, i, k = units[u]
            return "ds_read_b128 %s, v%d offset:%d" % (q(AB + (u % 8) * 4), vP3a if i < 2 else vP3b, (i & 1) * 20480 + k * 2048)

        def compute(u):
            sb, i, k = units[u]
            regs = self.bget([(name, k * 3 + ct) for ct in range(3)])

            def mk(ct):
                def f():
                    self.mfma(ACC + (i * 3 + ct) * 4, regs[ct], AB + (u % 8) * 4, first=(k == 0))
                    if ct == 2 and u >= 70:
                        for c in range(3):
                            self.bfree((name, k * 3 + c))
                return f
            return [mk(ct) for ct in range(3)]

        pre_read, pre_unit = {}, {}

        def hook(d, u, f):
            old = d.get(u)
            d[u] = f if old is None else (lambda: (old(), f()))

        def tags(p):
            sb, i = phases[p]
            return [("A%d" % sb, i, j) for j in range(5)]

        def sync(tg):
            def f():
                self.vwait(tg)
                e("s_barrier")
            return f

        def soon(f):
            return lambda: self.bg.insert(0, B_(f))

        def writes(i):
            ops = [2]
            for ct in range(3):
                ops += [DS("ew", "ds_write_b128 v%d, %s offset:%d" % (vE3w, q(ACC + (i * 3 + ct) * 4), ((i - 2) * 3 + ct) * 1024), 24), 1]
            return ops + [self.mark("ew")]

        def consts():
            o = ["s_lshr_b32 s%d, s%d, 1" % (sA3, sW),
                 "s_mul_i32 s%d, s%d, 192" % (sA3, sA3),
                 "v_add_u32 v%d, s%d, v%d" % (OUT, sA3, vG)]
            for ct in range(3):
                for z in range(2):
                    o.append(DS("c3", "ds_read_b128 %s, v%d offset:%d" % (q(CT[2 * ct + z]), OUT, L_CT + 480 + z * 384 + ct * 64)))
            return o

        def fetch(sb):
            ops = []
            for i in range(2):
                ms = self.P3_MS[i]
                ops += ["v_add_u32 v%d, s%d, v%d" % (ms, sK256, vSl),
                        DS(("ms", i), "ds_read_b64 %s, v%d offset:%d" % (p2(ms), ms, sb * 512 + i * 128))]
                for ct in range(3):
                    ops.append(DS(("er", i, ct), "ds_read_b128 %s, v%d offset:%d" %
                                  (q(ACC + 24 + (i * 3 + ct) * 4), vE3r, (i * 3 + ct) * 1024)))
            return ops + [4]

        def zz(i):
            ms = self.P3_MS[i]
            ops = [WD([("er", i, 2), "c3"])]
            for ct in range(3):
                z = ACC + 24 + (i * 3 + ct) * 4
                ops += ["v_fma_f32 v%d, -v%d, v%d, v%d" % (z + r, CT[2 * ct] + r, ms, z + r) for r in range(4)]
                ops += ["v_fma_f32 v%d, v%d, v%d, v%d" % (z + r, z + r, ms + 1, CT[2 * ct + 1] + r) for r in range(4)]
            return ops

        def epi(sb, i, packed=False):
            ms = self.P3_MS[i]
            ops = ["s_add_u32 s%d, s%d, %d" % (sA1, sHd, sb * SBH + i * 48 * KB)]
            for ct in range(3):
                acc = ACC + (i * 3 + ct) * 4
                z = acc + 24
                if packed:
                    ops += ["v_pk_fma_f32 %s, %s, %s, %s op_sel:[0,1,0] op_sel_hi:[1,1,1]" %
                            (p2(acc + hh), p2(acc + hh), p2(ms), p2(z + hh)) for hh in (0, 2)]
                else:
                    ops += ["v_fma_f32 v%d, v%d, v%d, v%d" % (acc + r, acc + r, ms + 1, z + r) for r in range(4)]
            ops.append(self.mark(("zfree", i)))
            for ct in range(3):
                acc = ACC + (i * 3 + ct) * 4
                ops += ["v_mul_f32 v%d, v%d, abs(v%d)" % (acc + r, acc + r, acc + r) for r in range(4)]
                o = OUT + 2 * ct
                ops += ["v_cvt_pk_bf16_f32 v%d, v%d, v%d" % (o, acc, acc + 1),
                        "v_cvt_pk_bf16_f32 v%d, v%d, v%d" % (o + 1, acc + 2, acc + 3),
                        "v_pk_max_i16 v%d, v%d, 0" % (o, o),
                        "v_pk_max_i16 v%d, v%d, 0" % (o + 1, o + 1)]
                if ct == 1:
                    ops.append(V_(lambda: a.vm("st", "buffer_store_dwordx4 %s, v%d, %s, s%d offen" % (q(OUT), vHf, sWS, sA1))))
                if ct == 2:
                    ops.append(V_(lambda o=o: a.vm("st", "buffer_store_dwordx2 %s, v%d, %s, s%d offen offset:1024" %
                                                   (p2(o), vHh, sWS, sA1))))
            return ops + [self.mark(("epi", i))]

        self.bg = []
        MID = self.opt("mid3", 5)
        hook(pre_read, 0, sync(tags(0)))
        hook(pre_read, 10, sync(tags(1)))
        hook(pre_read, 20, sync(tags(2)))
        hook(pre_read, 30, sync(tags(3)))
        hook(pre_read, 40, sync(tags(4)))
        hook(pre_read, 50, sync(tags(5)))
        hook(pre_read, 60, sync(tags(6)))
        hook(pre_read, 70, sync(tags(7)))
        for sb in range(2):
            b = 40 * sb
            w2 = self.opt("w2at", 18)
            hook(pre_unit, b + w2, lambda: self.bg.__setitem__(slice(0, 0), writes(2)[1:]))
            hook(pre_unit, b + 20, lambda: (self.need("ew"), self.bg.__setitem__(slice(0, 0), writes(3))))
            hook(pre_unit, b + 31, lambda sb=sb: self.bg.extend(epi(sb, 0)))
        look = self.opt("look3", 5)

        def pre_mid(sb):
            def f():
                self.need("ew")
                self.need(("st", sb))
                a.wait(ds=["ew", "sw"])
            return f
        for sb in range(2):
            old = pre_read[40 * sb + 30]
            pre_read[40 * sb + 30] = (lambda sb=sb, old=old: (pre_mid(sb)(), old(), self.bg.extend(fetch(sb) + zz(0) + zz(1))))
        hook(pre_unit, 40, lambda: self.need(("zfree", 0)))
        hook(pre_unit, 41, lambda: self.bg.extend(epi(0, 1)))
        hook(pre_unit, 50, lambda: self.need(("zfree", 1)))
        hook(pre_unit, 60, lambda: self.need(("epi", 0)))
        hook(pre_unit, 1, lambda: self.bg.extend(consts()))
        if layer == 0:
            hook(pre_unit, 10, lambda: setattr(self, "stage_free", list(range(self.opt("nstage", 13)))))
            hook(pre_unit, 70, lambda: setattr(self, "stage_free", []))
        hook(pre_unit, 8, lambda: self.bg.extend(self.stats_share(0) + [self.mark(("st", 0))]))
        hook(pre_unit, self.opt("iss3", 8), soon(self.poll_issue))
        self.marks.discard("chk3")
        hook(pre_unit, self.opt("chk3", 20), lambda: (self.need(("st", 0)), self.bg.insert(0, B_(lambda: (
            self.poll_check(6 * layer + 3, sMaskB),
            self.stream.extend(self.items_p3(1, 2, "A1") + self.items_stats(1)), self.marks.add("chk3"))))))
        hook(pre_read, 30, lambda: (self.need("chk3"), self.stream.extend(self.items_p3(1, 3, "A1"))))
        hook(pre_read, 40, lambda: self.stream.extend(self.items_p3(1, 0, "A1")))
        hook(pre_read, 50, lambda: (self.urgent.update(tags(7) if self.opt("urg7", 1) else []),
                                    self.stream.extend(self.items_p3(1, 1, "A1") + [self.item_code()])))
        hook(pre_unit, 52, lambda: self.bg.extend(self.stats_share(1) + [self.mark(("st", 1))]))
        hook(pre_unit, 40, lambda: self.stamp("p3_%d_a" % layer))
        hook(pre_unit, 62, lambda: (self.need(("epi", 1)), self.bg.insert(0, B_(lambda: self.publish(6 * layer + 4)))))
        self.deadline = {}
        for n, (sb, i, k) in reversed(list(enumerate(units))):
            self.deadline[("A%d" % sb, i, k // 2)] = n
            for ct in range(3):
                self.deadline[(name, k * 3 + ct)] = n - self.opt("blead3", 12)
        self.period = self.opt("per3", 64)
        self.gapdt = self.opt("dt3", 18)
        self.b_on = True
        self.hurry = self.opt("hurry3", 45)
        hook(pre_unit, 80 - self.opt("bstop3", 2), lambda: setattr(self, "b_on", bool(self.opt("bep3_%d" % layer, 1 - layer))))
        self.unit_loop(len(units), read, compute, look=look, pre_read=pre_read, pre_unit=pre_unit, wait_every=2,
                       name="p3_%d" % layer, every=self.opt("ev3", 5))
        self.hurry = 10 ** 9
        self.deadline = {}
        self.stamp("p3_%d_loop" % layer)
        self.period = self.opt("pere", 64)
        if typ == 0:
            self.poll_issue()
        self.drain_bg()
        self.bg = epi(1, 1, packed=True)
        self.drain_bg()
        if typ == 0:
            e("s_barrier")
            self.poll_check(6 * layer + 4, sMask16)
            self.stream.extend([self.item_pk(True, n) for n in range(20)])
            self.flush(n=6)
            self.bpref(self.opt("bwait3a_%d" % layer, 0))
        else:
            self.bpref(self.opt("bwait3_%d" % layer, (6, 0)[layer]))
        self.publish(6 * layer + 5)
        self.stamp("p3_%d_end" % layer)

    def program(self):
        e = self.e
        lab = "prog_%d" % self.typ
        self.a.label(lab)
        if not self.opt("odiag", 0):
            e("s_getpc_b64 s[20:21]")
            e("s_mov_b32 s22, %s-%s-4" % ("main_typeb" if self.typ == 0 else "main_end", lab))
            e("s_mov_b32 s23, 0x20000")
        for layer in range(2):
            self.queue_b(("WO", layer), sWOb, 25)
            self.queue_b(("W1", layer), sW1b, 30)
            self.queue_b(("W2", layer), sW2b, 60)
        for layer in range(2):
            self.layer = layer
            self.p1(layer)
            self.pk(layer, 2)
            self.p3(layer)
            self.pk(layer, 4)
        if self.stamps:
            self.rstamp(63)
            e("s_lshl_b32 s%d, s2, 2" % sA0)
            e("s_add_u32 s%d, s%d, s%d" % (sA0, sA0, sW))
            e("s_lshl_b32 s%d, s%d, 8" % (sA0, sA0))
            e("s_add_u32 s%d, s%d, %d" % (sA0, sA0, DBG))
            e("buffer_store_dword v%d, v%d, %s, s%d offen" % (vStamp, vFl, sWS, sA0))
        e("s_endpgm")
        for l in self.cold:
            self.a.raw(l)

    def build(self):
        import copy
        a, e = self.a, self.e
        a.label("main_kernel")
        self.layer = 0
        self.prologue()
        e("s_cmp_lt_u32 s%d, 8" % sM)
        e("s_cbranch_scc0 main_typeb")
        st = [Load(ld.tag, ld.pre, ld.issue) for ld in self.stream]
        saved = (list(a.vmq), list(a.dsq), st, self.credit, self.period, self.nstamp, list(a.hist))
        self.program()
        a.label("main_typeb")
        self.log_a = self.log
        self.reset_state()
        self.typ = 1
        a.vmq, a.dsq, self.stream, self.credit, self.period, self.nstamp, a.hist = saved
        self.program()
        a.label("main_end")
        return a.text()
```

```python
from layout import *

MATS = {0: (3840, 30, 5), 1: (3072, 24, 5), 2: (1280, 10, 5), 3: (1280, 10, 12)}
TAB_BASE = {0: 0, 1: 480, 2: 864, 3: 1024}
NKQ = 5


def jobs():
    lst = []
    for mat in (0, 2, 1, 3):
        pitch, ncb, nkq = MATS[mat]
        lst += [(mat, cb, kq) for kq in range(nkq) for cb in range(ncb)]
    assert len(lst) == 440
    return lst + [(4, 0, 0)] * (512 - len(lst))


def col_table():
    t = []
    for c in range(480):
        t += list(wq_col(4 * c))
    for c in range(384):
        t += list(w1_col(4 * c))
    for c in range(160):
        t += list(wo_col(4 * c))
    for c in range(160):
        t += list(w2_col(4 * c))
    return t


def job_table():
    return [m | cb << 8 | kq << 16 for m, cb, kq in jobs()]


class P0:
    def __init__(self, a, sreg, v0, lds, ws, stf, ldf="", xf=""):
        self.a, self.s, self.v, self.lds, self.ws, self.stf = a, sreg, v0, lds, ws, stf
        self.ldf, self.xf = ldf, xf

    def decode(self, r, wg):
        e, s = self.a.e, self.s
        P = s["par"] + 12 * r
        mat, cb, ks, pitch, tab, gst, ksoff, kq, A, B, Dd, tmp = range(P, P + 12)
        srd = s["src"] + 4 * r
        lab = self.a.newlabel
        done = lab("p0d")
        e("s_add_u32 s%d, s%d, %d" % (tmp, wg, 256 * r))
        bounds = [(0, 0, 150), (2, 150, 200), (1, 200, 320), (3, 320, 440)]
        magic = {30: 2185, 24: 2731, 10: 6554}
        e("s_mov_b32 s%d, 4" % mat)
        for x in (cb, ks, pitch, tab, gst, ksoff, A, B, Dd):
            e("s_mov_b32 s%d, 0" % x)
        e("s_mov_b32 s%d, -1" % kq)
        e("s_mov_b32 s%d, s%d" % (srd, s["ptr"][0]))
        e("s_mov_b32 s%d, s%d" % (srd + 1, s["ptr"][0] + 1))
        e("s_mov_b32 s%d, 0" % (srd + 2))
        e("s_mov_b32 s%d, 0x20000" % (srd + 3))
        for m, lo, hi in bounds:
            if hi <= 256 * r or lo >= 256 * (r + 1):
                continue
            nxt = lab("p0n")
            pit, ncb, nkq = MATS[m]
            e("s_cmp_ge_u32 s%d, %d" % (tmp, hi))
            e("s_cbranch_scc1 %s" % nxt)
            e("s_mov_b32 s%d, %d" % (mat, m))
            e("s_sub_u32 s%d, s%d, %d" % (tmp, tmp, lo))
            e("s_mul_i32 s%d, s%d, %d" % (ks, tmp, magic[ncb]))
            e("s_lshr_b32 s%d, s%d, 16" % (ks, ks))
            e("s_mul_i32 s%d, s%d, %d" % (cb, ks, ncb))
            e("s_sub_u32 s%d, s%d, s%d" % (cb, tmp, cb))
            if m in (0, 1):
                e("s_mov_b32 s%d, s%d" % (kq, ks))
            e("s_lshl_b32 s%d, s%d, 2" % (ks, ks))
            e("s_add_u32 s%d, s%d, s%d" % (ks, ks, s["w"]))
            e("s_mov_b32 s%d, %d" % (pitch, pit))
            e("s_mov_b32 s%d, %d" % (tab, TAB_BASE[m] * 8))
            e("s_mov_b32 s%d, %d" % (gst, 512 if m == 0 else 256))
            e("s_mov_b32 s%d, s%d" % (srd, s["ptr"][m]))
            e("s_mov_b32 s%d, s%d" % (srd + 1, s["ptr"][m] + 1))
            e("s_mov_b32 s%d, %d" % (srd + 2, {0: D * 3 * D * 2, 1: D * F * 2, 2: D * D * 2, 3: F * D * 2}[m]))
            for x, val in ((A, 4 if m == 2 else 8), (B, 20 if m == 2 else 0), (Dd, 20 if m == 2 else 4)):
                e("s_mov_b32 s%d, %d" % (x, val))
            if m == 1:
                e("s_lshr_b32 s%d, s%d, 1" % (ksoff, ks))
                e("s_mul_i32 s%d, s%d, %d" % (ksoff, ksoff, 3 * KB))
                e("s_and_b32 s%d, s%d, 1" % (tmp, ks))
                e("s_mul_i32 s%d, s%d, %d" % (tmp, tmp, 30 * KB))
                e("s_add_u32 s%d, s%d, s%d" % (ksoff, ksoff, tmp))
            else:
                e("s_mul_i32 s%d, s%d, %d" % (ksoff, ks, (2 if m == 0 else 5) * KB))
            e("s_branch %s" % done)
            self.a.label(nxt)
        self.a.label(done)

    def lanes(self, lane):
        e, v = self.a.e, self.v
        e("v_lshrrev_b32 v%d, 3, v%d" % (v, lane))
        e("v_and_b32 v%d, 7, v%d" % (v + 1, lane))
        e("v_lshlrev_b32 v%d, 4, v%d" % (v + 1, v + 1))
        e("v_lshrrev_b32 v%d, 4, v%d" % (v + 2, lane))
        e("v_and_b32 v%d, 15, v%d" % (v + 3, lane))

    def issue(self, r):
        a, e, s, v = self.a, self.a.e, self.s, self.v
        P = s["par"] + 12 * r
        mat, cb, ks, pitch, tab, gst, ksoff, kq, A, B, Dd, tmp = range(P, P + 12)
        srd = "s[%d:%d]" % (s["src"] + 4 * r, s["src"] + 4 * r + 3)
        t0, t1 = v + 4, v + 5
        e("v_and_b32 v%d, 3, v%d" % (t0, v))
        e("v_lshrrev_b32 v%d, 2, v%d" % (t1, v))
        e("v_mad_u32_u24 v%d, v%d, s%d, v%d" % (t0, t1, Dd, t0))
        e("v_mad_u32_u24 v%d, v%d, s%d, v%d" % (t0, t0, pitch, v + 1))
        x, y = s["t"], s["t"] + 1
        for g in range(4):
            e("s_lshl_b32 s%d, s%d, 2" % (x, ks))
            e("s_add_u32 s%d, s%d, %d" % (x, x, g))
            e("s_mul_i32 s%d, s%d, 205" % (y, x))
            e("s_lshr_b32 s%d, s%d, 10" % (y, y))
            e("s_mul_i32 s%d, s%d, s%d" % (y, y, B))
            e("s_mul_i32 s%d, s%d, s%d" % (x, x, A))
            e("s_add_u32 s%d, s%d, s%d" % (x, x, y))
            e("s_mul_i32 s%d, s%d, s%d" % (x, x, pitch))
            e("s_lshl_b32 s%d, s%d, 7" % (y, cb))
            e("s_add_u32 s%d, s%d, s%d" % (x, x, y))
            e("s_add_u32 m0, s%d, %d" % (s["w8k"], self.lds + r * 4096 + g * 1024))
            a.vm(("p0", r), "buffer_load_dwordx4 v%d, %s, s%d offen%s lds" % (t0, srd, x, self.ldf))
        c4r, c4d = v + 6 + 4 * r, v + 7 + 4 * r
        e("s_cmp_eq_u32 s%d, 0" % mat)
        e("s_cselect_b64 s[%d:%d], -1, 0" % (s["m2"], s["m2"] + 1))
        for dst, sh in ((c4r, None), (c4d, 2)):
            if sh is None:
                e("v_and_b32 v%d, 3, v%d" % (t0, v + 3))
            else:
                e("v_lshrrev_b32 v%d, 2, v%d" % (t0, v + 3))
            e("v_lshl_add_u32 v%d, v%d, 2, v%d" % (dst, v + 2, t0))
            e("v_lshrrev_b32 v%d, 1, v%d" % (t1, v + 2))
            e("v_lshlrev_b32 v%d, 2, v%d" % (t1, t1))
            e("v_add_u32 v%d, v%d, v%d" % (t0, t0, t1))
            e("v_and_b32 v%d, 1, v%d" % (t1, v + 2))
            e("v_lshl_add_u32 v%d, v%d, 1, v%d" % (t0, t0, t1))
            e("v_cndmask_b32 v%d, v%d, v%d, s[%d:%d]" % (dst, t0, dst, s["m2"], s["m2"] + 1))
        e("s_lshl_b32 s%d, s%d, 7" % (x, cb))
        e("s_add_u32 s%d, s%d, s%d" % (x, x, tab))
        e("v_lshlrev_b32 v%d, 3, v%d" % (t0, c4d))
        a.vm(("p0", r), "buffer_load_dwordx2 v[%d:%d], v%d, %s, s%d offen" % (v + 8 + 4 * r, v + 9 + 4 * r, t0, s["tab"], x))
        e("v_lshrrev_b32 v%d, 2, v%d" % (t0, v + 3))
        e("v_lshlrev_b32 v%d, 7, v%d" % (t0, t0))
        e("v_lshl_add_u32 v%d, v%d, 3, v%d" % (c4r, c4r, t0))
        e("v_add_u32 v%d, s%d, v%d" % (c4r, s["w8k"], c4r))

    def finish(self, r, red):
        a, e, s, v = self.a, self.a.e, self.s, self.v
        P = s["par"] + 12 * r
        mat, cb, ks, pitch, tab, gst, ksoff, kq, A, B, Dd, tmp = range(P, P + 12)
        c4r, c4d, dst, cso = v + 6 + 4 * r, v + 7 + 4 * r, v + 8 + 4 * r, v + 9 + 4 * r
        G = v + 16
        t0, t1 = v + 4, v + 5
        skip = a.newlabel("p0s")
        a.wait(vm=[("p0", r)])
        for g in range(4):
            for z in range(2):
                a.ds(("p0t", g), "ds_read_b64_tr_b16 v[%d:%d], v%d offset:%d" %
                     (G + 4 * g + 2 * z, G + 4 * g + 2 * z + 1, c4r, self.lds + r * 4096 + g * 1024 + z * 512))
        e("v_and_b32 v%d, 3, v%d" % (t0, v + 3))
        e("v_lshl_add_u32 v%d, v%d, 4, v%d" % (dst, t0, dst))
        e("v_lshl_add_u32 v%d, v%d, 2, v%d" % (cso, t0, cso))
        e("v_lshl_add_u32 v%d, v%d, 2, v%d" % (c4d, c4d, t0))
        a.wait_all(ds=True)
        e("s_cmp_eq_u32 s%d, 4" % mat)
        e("s_cbranch_scc1 %s" % skip)
        for g in range(4):
            e("buffer_store_dwordx4 v[%d:%d], v%d, %s, s%d offen%s" % (G + 4 * g, G + 4 * g + 3, dst, self.ws, ksoff, self.stf))
            if g < 3:
                e("s_add_u32 s%d, s%d, s%d" % (ksoff, ksoff, gst))
        nob = a.newlabel("p0b")
        e("s_and_b32 s%d, s%d, 1" % (tmp, mat))
        e("s_cmp_eq_u32 s%d, 0" % ks)
        e("s_cselect_b32 s%d, s%d, 0" % (tmp, tmp))
        e("s_cmp_eq_u32 s%d, 0" % tmp)
        e("s_cbranch_scc1 %s" % nob)
        srd = s["src"] + 4 * r
        e("s_cmp_eq_u32 s%d, 1" % mat)
        e("s_cselect_b32 s%d, s%d, s%d" % (srd, s["b1"], s["b2"]))
        e("s_cselect_b32 s%d, s%d, s%d" % (srd + 1, s["b1"] + 1, s["b2"] + 1))
        e("s_cselect_b32 s%d, 384, 0" % tmp)
        e("s_mov_b32 s%d, %d" % (srd + 2, D * 2))
        e("s_cselect_b32 s%d, %d, s%d" % (srd + 2, F * 2, srd + 2))
        e("s_lshl_b32 s%d, s%d, 7" % (cb, cb))
        e("v_lshlrev_b32 v%d, 1, v%d" % (t0, c4d))
        e("buffer_load_ushort v%d, v%d, s[%d:%d], s%d offen" % (t0, t0, srd, srd + 3, cb))
        e("s_waitcnt vmcnt(0)")
        e("v_lshlrev_b32 v%d, 16, v%d" % (t0, t0))
        e("buffer_store_dword v%d, v%d, %s, s%d offen%s" % (t0, cso, self.ws, tmp, self.stf))
        a.label(nob)
        a.label(skip)
        for k in range(16):
            e("v_dot2_f32_bf16 v%d, v%d, s%d, %s" % (t0, G + k, s["ones"], "0" if k == 0 else "v%d" % t0))
        e("v_lshlrev_b32 v%d, 2, v0" % t1)
        e("ds_write_b32 v%d, v%d offset:%d" % (t1, t0, red))
        e("s_waitcnt lgkmcnt(0)")
        e("s_barrier")
        noc = a.newlabel("p0c")
        e("s_cmp_lt_i32 s%d, 0" % kq)
        e("s_cbranch_scc1 %s" % noc)
        e("s_cmp_lg_u32 s%d, 0" % s["w"])
        e("s_cbranch_scc1 %s" % noc)
        for k in range(1, 4):
            e("ds_read_b32 v%d, v%d offset:%d" % (G + k, t1, red + 256 * k))
        e("s_waitcnt lgkmcnt(0)")
        e("v_add_f32 v%d, v%d, v%d" % (t0, t0, G + 1))
        e("v_add_f32 v%d, v%d, v%d" % (G + 2, G + 2, G + 3))
        e("v_add_f32 v%d, v%d, v%d" % (t0, t0, G + 2))
        e("s_lshl_b32 s%d, s%d, 15" % (kq, kq))
        e("buffer_store_dword v%d, v%d, %s, s%d offen%s" % (t0, cso, self.ws, kq, self.stf))
        a.label(noc)

    def x_issue(self, lane):
        a, e, s, v = self.a, self.a.e, self.s, self.v
        X = s["xp"]
        tile, w5, xd, sd, t = range(X, X + 5)
        srd = s["xsrd"]
        e("s_lshl_b32 s%d, s%d, 2" % (t, s["m"]))
        e("s_add_u32 s%d, s%d, s%d" % (t, t, s["w"]))
        e("s_mul_i32 s%d, s%d, 205" % (tile, t))
        e("s_lshr_b32 s%d, s%d, 10" % (tile, tile))
        e("s_mul_i32 s%d, s%d, 5" % (w5, tile))
        e("s_sub_u32 s%d, s%d, s%d" % (w5, t, w5))
        e("s_add_u32 s%d, s%d, 2" % (xd, tile))
        e("s_and_b32 s%d, s%d, 3" % (xd, xd))
        e("s_add_u32 s%d, s%d, 4" % (t, tile))
        e("s_cmp_gt_u32 s%d, 3" % tile)
        e("s_cselect_b32 s%d, s%d, s%d" % (t, xd, t))
        e("s_lshl_b32 s%d, s%d, 3" % (xd, s["c"]))
        e("s_add_u32 s%d, s%d, s%d" % (t, t, xd))
        e("s_mul_i32 s%d, s%d, %d" % (t, t, 16 * 1280))
        e("s_lshl_b32 s%d, s%d, 8" % (xd, w5))
        e("s_add_u32 s%d, s%d, s%d" % (t, t, xd))
        e("s_mov_b32 s%d, s%d" % (srd, s["x"]))
        e("s_mov_b32 s%d, s%d" % (srd + 1, s["x"] + 1))
        e("s_cmp_gt_u32 s%d, 7" % tile)
        e("s_cselect_b32 s%d, 0, %d" % (srd + 2, S * D * 2))
        e("s_mov_b32 s%d, 0x20000" % (srd + 3))
        e("v_mul_u32_u24 v%d, 1280, v%d" % (v + 4, v + 3))
        e("v_lshl_add_u32 v%d, v%d, 4, v%d" % (v + 4, v + 2, v + 4))
        for k in range(4):
            a.vm("p0x", "buffer_load_dwordx4 v[%d:%d], v%d, s[%d:%d], s%d offen offset:%d%s" %
                 (v + 32 + 4 * k, v + 35 + 4 * k, v + 4, srd, srd + 3, t, 64 * k, self.xf))
        e("s_and_b32 s%d, s%d, 3" % (t, tile))
        e("s_lshl_b32 s%d, s%d, 2" % (xd, s["c"]))
        e("s_add_u32 s%d, s%d, s%d" % (t, t, xd))
        e("s_lshr_b32 s%d, s%d, 2" % (xd, tile))
        e("s_lshl_b32 s%d, s%d, 6" % (xd, xd))
        e("s_add_u32 s%d, s%d, s%d" % (t, t, xd))
        e("s_mul_i32 s%d, s%d, %d" % (xd, t, 20 * KB))
        e("s_lshl_b32 s%d, s%d, 10" % (sd, t))
        e("s_add_u32 s%d, s%d, %d" % (xd, xd, X0))
        e("s_add_u32 s%d, s%d, %d" % (sd, sd, ST0))
        e("s_lshl_b32 s%d, s%d, 12" % (t, w5))
        e("s_add_u32 s%d, s%d, s%d" % (xd, xd, t))

    def x_finish(self, lane, vl16):
        a, e, s, v = self.a, self.a.e, self.s, self.v
        X = s["xp"]
        tile, w5, xd, sd, t = range(X, X + 5)
        skip = a.newlabel("p0x")
        a.wait(vm=["p0x"])
        e("s_cmp_gt_u32 s%d, 7" % tile)
        e("s_cbranch_scc1 %s" % skip)
        for k in range(4):
            e("buffer_store_dwordx4 v[%d:%d], v%d, %s, s%d offen offset:%d%s" %
              (v + 32 + 4 * k, v + 35 + 4 * k, vl16, self.ws, xd, 1024 * k, self.stf))
        s0, s1, z0, z1 = v + 48, v + 49, v + 50, v + 51
        for r in range(16):
            e("v_dot2_f32_bf16 v%d, v%d, s%d, %s" % (s0, v + 32 + r, s["ones"], "0" if r == 0 else "v%d" % s0))
            e("v_dot2_f32_bf16 v%d, v%d, v%d, %s" % (s1, v + 32 + r, v + 32 + r, "0" if r == 0 else "v%d" % s1))
        e("v_permlane16_swap_b32 v%d, v%d" % (s0, s1))
        e("v_add_f32 v%d, v%d, v%d" % (s0, s0, s1))
        e("v_mov_b32 v%d, v%d" % (s1, s0))
        e("v_permlane32_swap_b32 v%d, v%d" % (s0, s1))
        e("v_add_f32 v%d, v%d, v%d" % (s0, s0, s1))
        e("s_min_u32 s%d, s%d, 2" % (t, w5))
        e("s_add_u32 s%d, s%d, 5" % (t, t))
        e("v_mov_b32 v%d, s%d" % (z0, w5))
        e("v_mov_b32 v%d, s%d" % (z1, t))
        e("v_cmp_gt_u32 vcc, 32, v%d" % lane)
        e("v_cndmask_b32 v%d, v%d, v%d, vcc" % (z0, z1, z0))
        e("v_cndmask_b32 v%d, 0, v%d, vcc" % (s0, s0))
        e("v_lshrrev_b32 v%d, 1, v%d" % (z1, z0))
        e("v_lshlrev_b32 v%d, 8, v%d" % (z1, z1))
        e("v_and_b32 v%d, 1, v%d" % (z0, z0))
        e("v_lshl_add_u32 v%d, v%d, 3, v%d" % (z1, z0, z1))
        e("v_lshl_add_u32 v%d, v%d, 4, v%d" % (z1, v + 3, z1))
        e("v_and_b32 v%d, 1, v%d" % (z0, v + 2))
        e("v_lshl_add_u32 v%d, v%d, 2, v%d" % (z1, z0, z1))
        e("buffer_store_dword v%d, v%d, %s, s%d offen%s" % (s0, z1, self.ws, sd, self.stf))
        a.label(skip)
```
